```python
import torch

def _softmax(x, axis=-1):
    return torch.softmax(x, dim=axis)
def _gelu(x):
    return torch.nn.functional.gelu(x, approximate="tanh")
def _silu(x):
    return torch.nn.functional.silu(x)
def _sigmoid(x):
    return torch.sigmoid(x)
def _layernorm(x, axis=-1, eps=1e-5):
    m = x.mean(dim=axis, keepdim=True)
    v = x.var(dim=axis, keepdim=True, unbiased=False)
    return (x - m) / torch.sqrt(v + eps)
def _scatter_add(tgt, idx, src, axis=0):
    return tgt.clone().index_add_(axis, idx, src)
def _segment_sum(src, seg, n):
    out = torch.zeros((n,) + src.shape[1:], dtype=src.dtype)
    return out.index_add_(0, seg, src)
def _pad(x, pw):
    flat = tuple(v for pair in reversed(pw) for v in pair)
    return torch.nn.functional.pad(x, flat)

kernel_name = 'recurrent_scan__sliding_block_cached__swiglu_ffn__decode'

def setup_inputs():

    _w = (lambda a: (lambda t: t.to(torch.bfloat16) if t.is_floating_point() else t)(torch.as_tensor(a)))
    def _A_setup():
        B, Sq, D = 1, 1, 576
        Hq, Hkv, Sk, Dh = 32, 16, 65536, 128
        assert Hq % Hkv == 0, (Hq, Hkv)
        return {
            "x": _w((lambda *s: torch.randn(*s, dtype=torch.bfloat16) * 0.05)(B, Sq, D)),
            "k_cache": _w((lambda *s: torch.randn(*s, dtype=torch.bfloat16) * 0.8)(B, Hkv, Sk, Dh)),
            "v_cache": _w((lambda *s: torch.randn(*s, dtype=torch.bfloat16) * 0.2)(B, Hkv, Sk, Dh)),
            "wq": _w((lambda *s: torch.randn(*s, dtype=torch.bfloat16) * 0.8)(D, Hq * Dh) * (D ** -0.5)),
            "wo": _w((lambda *s: torch.randn(*s, dtype=torch.bfloat16) * 0.2)(Hq * Dh, D) * ((Hq * Dh) ** -0.5)),
        }
    _A_in = _A_setup()

    def _B_setup():
        B, S, D, F = 1, 1, 576, 4608
        return {
            "x": _w((lambda *s: torch.randn(*s, dtype=torch.bfloat16) * 0.05)(B, S, D)),
            "w_gate": _w((lambda *s: torch.randn(*s, dtype=torch.bfloat16) * 0.1)(D, F)),
            "w_up": _w((lambda *s: torch.randn(*s, dtype=torch.bfloat16) * 0.1)(D, F)),
            "w_down": _w((lambda *s: torch.randn(*s, dtype=torch.bfloat16) * 0.1)(F, D)),
        }
    _B_in = _B_setup()

    return {
        "A_x": _A_in["x"],
        "A_k_cache": _A_in["k_cache"],
        "A_v_cache": _A_in["v_cache"],
        "A_wq": _A_in["wq"],
        "A_wo": _A_in["wo"],
        "B_x": _B_in["x"],
        "B_w_gate": _B_in["w_gate"],
        "B_w_up": _B_in["w_up"],
        "B_w_down": _B_in["w_down"],
    }

def reference(A_x, A_k_cache, A_v_cache, A_wq, A_wo, B_x, B_w_gate, B_w_up, B_w_down):
    def _A_ref(x, k_cache, v_cache, wq, wo):
        B, Sq, D = x.shape
        Hq, Dh = 32, 128
        Hkv, Sk = k_cache.shape[1], k_cache.shape[2]
        W = min(4096, max(256, Sk // 4))
        rep = Hq // Hkv
        q = (lambda x, *d: x.permute(*d))((x @ wq).reshape(B, Sq, Hq, Dh), 0, 2, 1, 3)
        k = (lambda x, n, axis: torch.repeat_interleave(x, n, dim=axis))(k_cache[:, :, Sk - W:, :], rep, axis=1)
        v = (lambda x, n, axis: torch.repeat_interleave(x, n, dim=axis))(v_cache[:, :, Sk - W:, :], rep, axis=1)
        scores = torch.einsum("bhqd,bhkd->bhqk", q, k) * (Dh ** -0.5)
        p = _softmax(scores, axis=-1)
        o = torch.einsum("bhqk,bhkd->bhqd", p, v)
        return (lambda x, *d: x.permute(*d))(o, 0, 2, 1, 3).reshape(B, Sq, Hq * Dh) @ wo

    def _B_ref(x, w_gate, w_up, w_down):
        g = _silu(x @ w_gate)
        u = x @ w_up
        return (g * u) @ w_down

    x = A_x
    xn = _layernorm(x, axis=-1)
    s = _A_ref(xn, A_k_cache, A_v_cache, A_wq, A_wo)
    g = _silu(_B_ref(xn, B_w_gate, B_w_up, B_w_down))
    return x + s * g
```

```python
import sys, argparse
NAME = "recurrent_scan__sliding_block_cached__swiglu_ffn__decode"

WS_EPOCH = 0x0
WS_QG = 0x1000
WS_XG = 0x8000
WS_AG = 0x20000
WS_LG = 0x60000
WS_PG = 0x80000
WS_STAMP = 0x200000
L_CNTP1, L_CNTKVI, L_FLAGQ, L_CNTKV, L_FLAGX0, L_FLAGX1, L_CNTH3 = 0, 4, 8, 12, 16, 20, 24
L_XRAW = 0x40
L_QL = 0x500
L_ML = 0x700
L_X2U = 0x780
L_H3S = 0x880
L_P1 = 0x1000
L_OK = 0x3000
L_TB = 0x5000
LDS_BYTES = 0x7600

SPIN_G = 40000
SPIN_L = 400000

class G:
    def __init__(self, stamps=False):
        self.L = []
        self.stamps = stamps
        self.nlab = 0
        self.nst = 0
    def A(self, s): self.L.append(s)
    def lab(self, base="L"):
        self.nlab += 1
        return f"{base}_{self.nlab}"
    def srd(self, d, lo, hi, size):
        A = self.A
        A(f"s_mov_b32 s{d}, s{lo}"); A(f"s_mov_b32 s{d+1}, s{hi}"); A(f"s_mov_b32 s{d+2}, {size}"); A(f"s_mov_b32 s{d+3}, 0x20000")
    def stamp(self, i):
        if self.stamps:
            assert i < 16
            self.A(f"s_memrealtime s[{40+2*i}:{41+2*i}]")
    def nop(self, n):
        while n > 0:
            k = min(n, 16); self.A(f"s_nop {k-1}"); n -= k
    def lds_wait(self, addr, val, vt=6, vz=7):
        A = self.A
        l = self.lab("LW"); e = self.lab("LWE")
        A(f"v_mov_b32 v{vz}, 0")
        A(f"s_mov_b32 s73, {SPIN_L}")
        A(f"{l}:")
        A(f"ds_read_b32 v{vt}, v{vz} offset:{addr}")
        A("s_waitcnt lgkmcnt(0)")
        A(f"v_readfirstlane_b32 s72, v{vt}")
        A(f"s_cmp_ge_u32 s72, {val}")
        A(f"s_cbranch_scc1 {e}")
        A("s_sub_u32 s73, s73, 1")
        A("s_cmp_eq_u32 s73, 0")
        A(f"s_cbranch_scc1 {e}")
        A("s_sleep 1")
        A(f"s_branch {l}")
        A(f"{e}:")
    def lds_signal(self, addr, vt=6, vz=7):
        A = self.A
        A("s_waitcnt lgkmcnt(0)")
        A(f"v_mov_b32 v{vz}, 0"); A(f"v_mov_b32 v{vt}, 1")
        A("s_mov_b64 s[74:75], exec"); A("s_mov_b64 exec, 1")
        A(f"ds_add_u32 v{vz}, v{vt} offset:{addr}")
        A("s_mov_b64 exec, s[74:75]")
    def lds_arrive(self, addr, vt=6, vz=7):
        A = self.A
        A("s_waitcnt lgkmcnt(0)")
        A(f"v_mov_b32 v{vz}, 0"); A(f"v_mov_b32 v{vt}, 1")
        A("s_mov_b64 s[74:75], exec"); A("s_mov_b64 exec, 1")
        A(f"ds_add_rtn_u32 v{vt}, v{vz}, v{vt} offset:{addr}")
        A("s_waitcnt lgkmcnt(0)")
        A(f"v_readfirstlane_b32 s72, v{vt}")
        A("s_mov_b64 exec, s[74:75]")
    def xrow(self, op, v, t):
        A = self.A
        A(f"v_mov_b32 v{t}, v{v}"); self.nop(2)
        A(f"v_permlane16_swap_b32 v{v}, v{t}"); self.nop(1)
        A(f"{op} v{v}, v{v}, v{t}")
        A(f"v_mov_b32 v{t}, v{v}"); self.nop(2)
        A(f"v_permlane32_swap_b32 v{v}, v{t}"); self.nop(1)
        A(f"{op} v{v}, v{v}, v{t}")
    def xrow_multi(self, op, vs, ts):
        A = self.A
        n = len(vs)
        for v, t in zip(vs, ts): A(f"v_mov_b32 v{t}, v{v}")
        self.nop(max(0, 2 - (n - 1)) if n < 3 else 0)
        if n >= 3: pass
        for v, t in zip(vs, ts): A(f"v_permlane16_swap_b32 v{v}, v{t}")
        self.nop(1)
        for v, t in zip(vs, ts): A(f"{op} v{v}, v{v}, v{t}")
        for v, t in zip(vs, ts): A(f"v_mov_b32 v{t}, v{v}")
        self.nop(2)
        for v, t in zip(vs, ts): A(f"v_permlane32_swap_b32 v{v}, v{t}")
        self.nop(1)
        for v, t in zip(vs, ts): A(f"{op} v{v}, v{v}, v{t}")
    def dpp(self, op, d, s0, s1, ctrl):
        self.A(f"{op}_dpp v{d}, v{s0}, v{s1} {ctrl} row_mask:0xf bank_mask:0xf")
    def wave_sum(self, v, t):
        A = self.A
        for ctrl in ["quad_perm:[1,0,3,2]", "quad_perm:[2,3,0,1]", "row_half_mirror", "row_mirror"]:
            self.nop(2)
            self.dpp("v_add_f32", v, v, v, ctrl)
        self.nop(1)
        self.xrow("v_add_f32", v, t)
    def rne(self, v):
        A = self.A
        A(f"v_cvt_pk_bf16_f32 v{v}, v{v}, v{v}")
        A(f"v_and_b32 v{v}, 0xffff0000, v{v}")

def gen(stamps=False):
    g = G(stamps); A = g.A
    A(f"; @launch grid=(256,1,1) block=(1024,1,1) lds={LDS_BYTES}")
    A('.amdgcn_target "amdgcn-amd-amdhsa--gfx950"')
    A(".text"); A(f".globl {NAME}_kernel"); A(".p2align 8"); A(f".type {NAME}_kernel,@function")
    A(f"{NAME}_kernel:")
    g.stamp(0)
    A("s_cmp_ge_u32 s2, 256"); A("s_cbranch_scc1 L_end")
    A("s_load_dwordx16 s[4:19], s[0:1], 0")
    A("s_load_dwordx8 s[20:27], s[0:1], 64")
    A("v_and_b32 v1, 63, v0")
    A("v_lshrrev_b32 v2, 6, v0")
    A("s_and_b32 s90, s2, 7")
    A("v_readfirstlane_b32 s3, v2")
    A("s_lshr_b32 s91, s2, 3")
    A("s_lshl_b32 s92, s90, 1"); A("s_lshr_b32 s72, s91, 4"); A("s_add_u32 s92, s92, s72")
    A("s_and_b32 s93, s91, 15")
    A("v_and_b32 v2, 1, v1")
    A("v_mov_b32 v3, 0xffff")
    A("v_lshlrev_b32 v2, 4, v2")
    A("v_lshlrev_b32 v3, v2, v3")
    A("v_bfe_u32 v2, v1, 1, 2")
    for t in range(4):
        A(f"v_cmp_eq_u32 vcc, {t}, v2"); g.nop(2)
        A(f"v_cndmask_b32 v{124+t}, 0, v3, vcc")
    if stamps:
        for i in range(1, 16): A(f"s_mov_b64 s[{40+2*i}:{41+2*i}], 0")
    A("s_waitcnt lgkmcnt(0)")
    A(f"s_load_dword s94, s[26:27], {WS_EPOCH}")
    g.srd(96, 26, 27, 0x40000000)
    A("s_cmp_lt_u32 s3, 4"); A("s_cbranch_scc1 L_aux0")
    A("s_cmp_lt_u32 s3, 12"); A("s_cbranch_scc1 L_KV")
    A("s_sub_u32 s95, s3, 8"); A("s_branch L_aux")
    A("L_aux0:"); A("s_mov_b32 s95, s3")
    A("L_aux:")
    A("s_setprio 2")
    A("v_lshrrev_b32 v3, 4, v1"); A("v_lshlrev_b32 v3, 1, v3"); A("v_bfe_u32 v4, v1, 3, 1"); A("v_add_u32 v3, v3, v4")
    A("v_and_b32 v4, 7, v1"); A("v_lshlrev_b32 v4, 4, v4")
    A("s_cmp_ge_u32 s91, 26"); A("s_cbranch_scc1 L_auxO")
    g.srd(32, 4, 5, 1152)
    A("v_lshlrev_b32 v5, 4, v1")
    A("buffer_load_dwordx4 v[44:47], v5, s[32:35], 0 offen")
    A("buffer_load_dwordx4 v[48:51], v5, s[32:35], 0 offen offset:1024")
    A("s_cmp_ge_u32 s91, 18"); A("s_cbranch_scc1 L_auxQ")
    A("s_mul_i32 s88, s90, 9"); A("s_lshr_b32 s72, s91, 1"); A("s_add_u32 s88, s88, s72")
    A("s_and_b32 s89, s91, 1")
    A("s_mul_i32 s87, s89, 288"); A("s_and_b32 s72, s95, 3"); A("s_mul_i32 s72, s72, 72"); A("s_add_u32 s87, s87, s72")
    A("s_cmp_lt_u32 s95, 4"); A("s_cselect_b32 s28, s16, s18"); A("s_cselect_b32 s29, s17, s19")
    A(f"s_mov_b32 s30, {576*4608*2}"); A("s_mov_b32 s31, 0x20000")
    A("s_mul_i32 s72, s87, 9216"); A("s_lshl_b32 s73, s88, 7"); A("s_add_u32 s72, s72, s73")
    A("v_mul_u32_u24 v5, 9216, v3"); A("v_add_u32 v5, v5, v4"); A("v_add_u32 v5, s72, v5")
    A(f"s_mov_b32 s76, {8*9216}")
    A("s_branch L_p1load")
    A("L_auxQ:")
    A("s_lshl_b32 s88, s90, 3"); A("s_add_u32 s88, s88, s91"); A("s_sub_u32 s88, s88, 18")
    A("s_mul_i32 s87, s95, 72")
    g.srd(28, 10, 11, 576*4096*2)
    A("s_lshl_b32 s72, s87, 13"); A("s_lshl_b32 s73, s88, 7"); A("s_add_u32 s72, s72, s73")
    A("v_lshlrev_b32 v5, 13, v3"); A("v_add_u32 v5, v5, v4"); A("v_add_u32 v5, s72, v5")
    A(f"s_mov_b32 s76, {8*8192}")
    A("L_p1load:")
    A("s_mov_b32 s77, 0")
    for t in range(9):
        A(f"buffer_load_dwordx4 v[{8+4*t}:{11+4*t}], v5, s[28:31], s77 offen nt")
        if t < 8: A("s_add_u32 s77, s77, s76")
    g.stamp(1)
    A("s_waitcnt lgkmcnt(0)")
    A("s_mul_i32 s94, s94, 1664525"); A("s_add_u32 s94, s94, 1013904223")
    A("s_barrier")
    g.stamp(2)
    A("s_waitcnt vmcnt(9)")
    A("v_lshlrev_b32 v5, 4, v1")
    A(f"ds_write_b128 v5, v[44:47] offset:{L_XRAW}")
    A("s_mov_b64 s[74:75], exec"); A("s_mov_b64 exec, 0xff")
    A(f"ds_write_b128 v5, v[48:51] offset:{L_XRAW+1024}")
    A("s_mov_b64 exec, s[74:75]")
    A("v_mov_b32 v52, 0"); A("v_mov_b32 v53, 0")
    A("s_mov_b32 s72, 0x3f803f80")
    A("v_mov_b32 v54, s72")
    for r in range(44, 52):
        A(f"v_dot2c_f32_bf16 v52, v{r}, v54")
        A(f"v_dot2c_f32_bf16 v53, v{r}, v{r}")
    g.nop(3)
    g.wave_sum(52, 55)
    g.wave_sum(53, 55)
    A(f"s_mov_b32 s72, 0x{f32bits(1.0/576):08x}")
    A("v_mul_f32 v52, s72, v52")
    A("v_mul_f32 v53, s72, v53")
    A("v_fma_f32 v53, -v52, v52, v53")
    A("v_max_f32 v53, 0, v53")
    g.rne(52)
    g.rne(53)
    A(f"v_add_f32 v53, 0x{f32bits(1e-5):08x}, v53")
    g.rne(53)
    A("v_sqrt_f32 v53, v53"); g.nop(1)
    g.rne(53)
    A("v_rcp_f32 v53, v53")
    A("s_lshl_b32 s72, s87, 1")
    A("v_lshlrev_b32 v5, 1, v3"); A("v_add_u32 v5, s72, v5")
    A("s_waitcnt lgkmcnt(0)")
    for t in range(9):
        A(f"ds_read_u16 v{56+t}, v5 offset:{L_XRAW + 16*t}")
    for t in range(9):
        A(f"s_waitcnt lgkmcnt({8-t})")
        r = 56 + t
        A(f"v_lshlrev_b32 v{r}, 16, v{r}")
        A(f"v_sub_f32 v{r}, v{r}, v52")
        g.rne(r)
        A(f"v_mul_f32 v{r}, v{r}, v53")
        A(f"v_cvt_pk_bf16_f32 v{r}, v{r}, v{r}")
    g.stamp(3)
    for r in range(72, 76): A(f"v_mov_b32 v{r}, 0")
    for t in range(9):
        at = 68 if t % 2 == 0 else 44
        for r in range(4):
            A(f"v_and_b32 v{at+r}, v{56+t}, v{124+r}")
        A(f"s_waitcnt vmcnt({8-t})")
        g.nop(1)
        A(f"v_mfma_f32_16x16x32_bf16 v[72:75], v[{at}:{at+3}], v[{8+4*t}:{11+4*t}], v[72:75]")
    g.stamp(4)
    A("s_lshl_b32 s72, s95, 10")
    A("v_lshlrev_b32 v5, 4, v1"); A("v_add_u32 v5, s72, v5")
    g.nop(6)
    A(f"ds_write_b128 v5, v[72:75] offset:{L_P1}")
    g.lds_signal(L_CNTP1)
    A("s_cmp_eq_u32 s95, 6"); A("s_cbranch_scc1 L_a6")
    A("s_cmp_eq_u32 s95, 7"); A("s_cbranch_scc1 L_a7")
    A("s_branch L_auxD")
    A("L_auxO:")
    A("s_waitcnt lgkmcnt(0)")
    A("s_mul_i32 s94, s94, 1664525"); A("s_add_u32 s94, s94, 1013904223")
    A("s_barrier")
    g.stamp(2)
    A("s_cmp_eq_u32 s95, 6"); A("s_cbranch_scc1 L_a6_h2")
    A("s_cmp_eq_u32 s95, 7"); A("s_cbranch_scc1 L_a7")
    A("s_branch L_auxD")

    A("L_a6:")
    A("s_setprio 3")
    g.lds_wait(L_CNTP1, 8)
    g.stamp(5)
    A("v_bfe_u32 v8, v1, 1, 3"); A("v_and_b32 v9, 1, v1"); A("v_lshlrev_b32 v9, 4, v9"); A("v_add_u32 v8, v8, v9")
    A("v_lshlrev_b32 v8, 4, v8")
    A("v_bfe_u32 v9, v1, 4, 1"); A("v_lshlrev_b32 v9, 12, v9"); A("v_add_u32 v8, v8, v9")
    for w in range(4):
        A(f"ds_read_b128 v[{12+8*w}:{15+8*w}], v8 offset:{L_P1 + w*1024}")
        A(f"ds_read_b128 v[{16+8*w}:{19+8*w}], v8 offset:{L_P1 + w*1024 + 40*16}")
    A("s_waitcnt lgkmcnt(6)")
    A("v_pk_add_f32 v[12:13], v[12:13], v[16:17]"); A("v_pk_add_f32 v[14:15], v[14:15], v[18:19]")
    for w in range(1, 4):
        A(f"s_waitcnt lgkmcnt({6-2*w})")
        for o in (0, 4):
            b = 12 + 8*w + o
            A(f"v_pk_add_f32 v[12:13], v[12:13], v[{b}:{b+1}]"); A(f"v_pk_add_f32 v[14:15], v[14:15], v[{b+2}:{b+3}]")
    A("s_cmp_lt_u32 s91, 18"); A("s_cbranch_scc1 L_a6_F")
    for r in range(4): A(f"v_mov_b32 v{16+r}, v{12+r}")
    g.nop(1)
    for r in range(4): A(f"v_permlane16_swap_b32 v{12+r}, v{16+r}")
    g.nop(1)
    for r in range(4): A(f"v_add_f32 v{12+r}, v{12+r}, v{16+r}")
    A("v_cvt_pk_bf16_f32 v20, v12, v13"); A("v_mov_b32 v21, s94"); A("v_cvt_pk_bf16_f32 v22, v14, v15"); A("v_mov_b32 v23, s94")
    A("s_lshl_b32 s72, s88, 8"); A(f"s_add_u32 s72, s72, {WS_QG}")
    A("v_lshlrev_b32 v8, 4, v1")
    A("s_mov_b64 exec, 0xffff")
    A("buffer_store_dwordx4 v[20:23], v8, s[96:99], s72 offen sc1")
    A("s_mov_b64 exec, -1")
    g.stamp(6)
    A("s_cmp_lt_u32 s91, 22"); A("s_cbranch_scc1 L_a6_h2")
    A("s_cmp_lt_u32 s91, 25"); A("s_cbranch_scc1 L_h3_slot16")
    A("s_branch L_fin")
    A("L_a6_F:")
    A("v_bfe_u32 v8, v1, 3, 1")
    A("v_cmp_eq_u32 s[76:77], s89, v8")
    A("s_mov_b32 s78, -1"); A("s_mov_b32 s79, 0")
    A("v_bfe_u32 v8, v1, 4, 1"); A("v_lshlrev_b32 v8, 8, v8"); A("v_and_b32 v9, 7, v1"); A("v_lshlrev_b32 v9, 5, v9"); A("v_add_u32 v8, v8, v9")
    A("s_lshl_b32 s72, s88, 10"); A(f"s_add_u32 s72, s72, {WS_XG}")
    A("s_xor_b32 s73, s89, 1"); A("s_lshl_b32 s73, s73, 9"); A("s_add_u32 s80, s72, s73")
    A("s_lshl_b32 s73, s89, 9"); A("s_add_u32 s81, s72, s73")
    A("v_mov_b32 v20, v12"); A("v_mov_b32 v21, s94"); A("v_mov_b32 v22, v13"); A("v_mov_b32 v23, s94")
    A("v_mov_b32 v24, v14"); A("v_mov_b32 v25, s94"); A("v_mov_b32 v26, v15"); A("v_mov_b32 v27, s94")
    A("s_andn2_b64 exec, s[78:79], s[76:77]")
    A("buffer_store_dwordx4 v[20:23], v8, s[96:99], s80 offen sc1")
    A("buffer_store_dwordx4 v[24:27], v8, s[96:99], s80 offen offset:16 sc1")
    g.stamp(6)
    A("s_and_b64 exec, s[78:79], s[76:77]")
    A(f"s_mov_b32 s73, {SPIN_G}")
    lp = g.lab("XP"); le = g.lab("XPE")
    A(f"{lp}:")
    A("buffer_load_dwordx4 v[28:31], v8, s[96:99], s81 offen sc1")
    A("buffer_load_dwordx4 v[32:35], v8, s[96:99], s81 offen offset:16 sc1")
    A("s_waitcnt vmcnt(0)")
    A("v_cmp_ne_u32 vcc, s94, v29"); A("v_cmp_ne_u32 s[82:83], s94, v31"); A("s_or_b64 vcc, vcc, s[82:83]")
    A("v_cmp_ne_u32 s[82:83], s94, v33"); A("s_or_b64 vcc, vcc, s[82:83]")
    A("v_cmp_ne_u32 s[82:83], s94, v35"); A("s_or_b64 s[82:83], vcc, s[82:83]")
    A("s_cmp_eq_u64 s[82:83], 0"); A(f"s_cbranch_scc1 {le}")
    A("s_sub_u32 s73, s73, 1"); A("s_cmp_eq_u32 s73, 0"); A(f"s_cbranch_scc1 {le}")
    A("s_sleep 4")
    A(f"s_branch {lp}")
    A(f"{le}:")
    g.stamp(7)
    A("v_add_f32 v12, v12, v28"); A("v_add_f32 v13, v13, v30"); A("v_add_f32 v14, v14, v32"); A("v_add_f32 v15, v15, v34")
    A("s_mov_b64 exec, -1")
    for r in range(4): A(f"v_mov_b32 v{16+r}, v{12+r}")
    g.nop(1)
    for r in range(4): A(f"v_permlane16_swap_b32 v{12+r}, v{16+r}")
    g.nop(1)
    for r in range(4):
        g.rne(12+r); g.rne(16+r)
    for r in range(4):
        A(f"v_mul_f32 v{20+r}, 0x{f32bits(-1.4426950408889634):08x}, v{12+r}")
    for r in range(4): A(f"v_exp_f32 v{20+r}, v{20+r}")
    g.nop(1)
    for r in range(4): A(f"v_add_f32 v{20+r}, 1.0, v{20+r}")
    for r in range(4): A(f"v_rcp_f32 v{20+r}, v{20+r}")
    g.nop(1)
    for r in range(4): A(f"v_mul_f32 v{20+r}, v{20+r}, v{12+r}")
    for r in range(4): g.rne(20+r)
    for r in range(4): A(f"v_mul_f32 v{20+r}, v{20+r}, v{16+r}")
    for r in range(4): A(f"v_cvt_pk_bf16_f32 v{20+r}, v{20+r}, v{20+r}")
    A("v_and_b32 v8, 7, v1"); A("v_lshlrev_b32 v8, 4, v8")
    A("s_mov_b32 s78, 0xffff"); A("s_mov_b32 s79, 0")
    A("s_and_b64 exec, s[78:79], s[76:77]")
    A(f"ds_write_b128 v8, v[20:23] offset:{L_X2U}")
    A("s_mov_b64 exec, -1")
    g.lds_signal(L_FLAGX0)
    g.stamp(8)
    A("s_branch L_fin")

    A("L_a6_h2:")
    A("s_mov_b32 s86, 0")
    A("L_h2:")
    A("s_setprio 3")
    A("s_cmp_ge_u32 s91, 26"); A("s_cbranch_scc1 L_h2_O")
    A("s_sub_u32 s85, s91, 6"); A("s_branch L_h2_go")
    A("L_h2_O:")
    A("s_sub_u32 s85, s91, 26"); A("s_lshl_b32 s85, s85, 1"); A("s_add_u32 s85, s85, s86")
    A("L_h2_go:")
    A("s_lshl_b32 s72, s90, 4"); A("s_add_u32 s85, s85, s72")
    A("s_lshr_b32 s84, s85, 2"); A("s_and_b32 s83, s85, 3")
    A("s_lshl_b32 s72, s84, 13"); A("s_lshl_b32 s73, s83, 7"); A("s_add_u32 s80, s72, s73"); A(f"s_add_u32 s80, s80, {WS_AG}")
    A("s_add_u32 s81, s80, 4096")
    A("v_lshrrev_b32 v8, 3, v1"); A("v_lshlrev_b32 v9, 9, v8"); A("v_and_b32 v10, 7, v1"); A("v_lshlrev_b32 v10, 4, v10"); A("v_add_u32 v9, v9, v10")
    A("v_lshlrev_b32 v8, 4, v8")
    A("s_lshl_b32 s82, s84, 7"); A(f"s_add_u32 s82, s82, {WS_LG}")
    g.lds_wait(L_CNTKV, 8)
    g.stamp(9)
    A(f"s_mov_b32 s73, {SPIN_G}")
    lp = g.lab("HP"); le = g.lab("HPE")
    A(f"{lp}:")
    A("buffer_load_dwordx4 v[12:15], v9, s[96:99], s80 offen sc1")
    A("buffer_load_dwordx4 v[16:19], v9, s[96:99], s81 offen sc1")
    A("buffer_load_dwordx4 v[20:23], v8, s[96:99], s82 offen sc1")
    A("s_waitcnt vmcnt(0)")
    A("v_cmp_ne_u32 vcc, s94, v13")
    for r in (15, 17, 19, 21, 23):
        A(f"v_cmp_ne_u32 s[76:77], s94, v{r}"); A("s_or_b64 vcc, vcc, s[76:77]")
    A("s_cmp_eq_u64 vcc, 0"); A(f"s_cbranch_scc1 {le}")
    A("s_sub_u32 s73, s73, 1"); A("s_cmp_eq_u32 s73, 0"); A(f"s_cbranch_scc1 {le}")
    A("s_sleep 2")
    A(f"s_branch {lp}")
    A(f"{le}:")
    g.stamp(10)
    A("v_max_f32 v24, v20, v22"); g.nop(2)
    g.dpp("v_max_f32", 24, 24, 24, "row_ror:8"); g.nop(1)
    g.xrow("v_max_f32", 24, 25)
    A("v_sub_f32 v20, v20, v24"); A("v_sub_f32 v22, v22, v24")
    A("v_exp_f32 v20, v20"); A("v_exp_f32 v22, v22"); g.nop(1)
    A("v_add_f32 v24, v20, v22")
    A("v_lshlrev_b32 v26, 16, v12"); A("v_and_b32 v27, 0xffff0000, v12"); A("v_lshlrev_b32 v28, 16, v14"); A("v_and_b32 v29, 0xffff0000, v14")
    A("v_lshlrev_b32 v30, 16, v16"); A("v_and_b32 v31, 0xffff0000, v16"); A("v_lshlrev_b32 v32, 16, v18"); A("v_and_b32 v33, 0xffff0000, v18")
    for r in range(4): A(f"v_mul_f32 v{26+r}, v{26+r}, v20")
    for r in range(4): A(f"v_fma_f32 v{26+r}, v{30+r}, v22, v{26+r}")
    g.nop(1)
    for r in (24, 26, 27, 28, 29): g.dpp("v_add_f32", r, r, r, "row_ror:8")
    g.nop(1)
    g.xrow_multi("v_add_f32", [24, 26, 27, 28, 29], [34, 35, 36, 37, 38])
    A("v_rcp_f32 v24, v24"); g.nop(1)
    for r in range(4): A(f"v_mul_f32 v{26+r}, v{26+r}, v24")
    for r in range(4): A(f"v_cvt_pk_bf16_f32 v{26+r}, v{26+r}, v{26+r}")
    A("s_lshl_b32 s72, s86, 7")
    A("v_lshlrev_b32 v8, 4, v1"); A("v_add_u32 v8, s72, v8")
    A("s_mov_b64 exec, 0xff")
    A(f"ds_write_b128 v8, v[26:29] offset:{L_X2U}")
    A("s_mov_b64 exec, -1")
    A("s_cmp_eq_u32 s86, 0"); A("s_cbranch_scc1 L_h2_f0")
    g.lds_signal(L_FLAGX1)
    g.stamp(11)
    A("s_branch L_fin")
    A("L_h2_f0:")
    g.lds_signal(L_FLAGX0)
    g.stamp(11)
    A("s_cmp_ge_u32 s91, 26"); A("s_cbranch_scc1 L_h3_slot16")
    A("s_branch L_fin")

    A("L_a7:")
    A("s_setprio 3")
    A("s_lshl_b32 s72, s92, 10"); A(f"s_add_u32 s80, s72, {WS_QG}")
    A("v_lshlrev_b32 v8, 4, v1")
    A(f"s_mov_b32 s73, {SPIN_G}")
    lp = g.lab("QP"); le = g.lab("QPE")
    A(f"{lp}:")
    A("buffer_load_dwordx4 v[12:15], v8, s[96:99], s80 offen sc1")
    A("s_waitcnt vmcnt(0)")
    A("v_cmp_ne_u32 vcc, s94, v13"); A("v_cmp_ne_u32 s[76:77], s94, v15"); A("s_or_b64 vcc, vcc, s[76:77]")
    A("s_cmp_eq_u64 vcc, 0"); A(f"s_cbranch_scc1 {le}")
    A("s_sub_u32 s73, s73, 1"); A("s_cmp_eq_u32 s73, 0"); A(f"s_cbranch_scc1 {le}")
    A("s_sleep 4")
    A(f"s_branch {lp}")
    A(f"{le}:")
    g.stamp(9)
    A("v_mov_b32 v13, v14")
    A("v_lshlrev_b32 v8, 3, v1")
    A(f"ds_write_b64 v8, v[12:13] offset:{L_QL}")
    g.lds_signal(L_FLAGQ)
    g.stamp(10)
    A("s_cmp_ge_u32 s91, 26"); A("s_cbranch_scc0 L_fin")
    A("s_mov_b32 s86, 1"); A("s_branch L_h2")

    A("L_auxD:")
    A("s_mov_b32 s86, 0"); A("s_mov_b32 s84, s95")
    A("s_cmp_ge_u32 s91, 26"); A("s_cbranch_scc1 L_D_O")
    A("s_cmp_ge_u32 s95, 3"); A("s_cbranch_scc1 L_fin")
    A("s_cmp_ge_u32 s91, 22"); A("s_cbranch_scc1 L_fin")
    A("s_cmp_ge_u32 s91, 18"); A("s_cbranch_scc1 L_D_Q")
    g.srd(28, 20, 21, 4608*576*2)
    A("s_mul_i32 s85, s90, 18"); A("s_add_u32 s85, s85, s91")
    A("s_mov_b32 s83, s85")
    A("s_branch L_D_go")
    A("L_D_Q:")
    A("s_sub_u32 s85, s91, 6"); A("s_branch L_D_wo")
    A("L_D_O:")
    A("s_cmp_ge_u32 s95, 6"); A("s_cbranch_scc1 L_fin")
    A("s_cmp_ge_u32 s95, 3"); A("s_cselect_b32 s86, 1, 0"); A("s_mul_i32 s72, s86, 3"); A("s_sub_u32 s84, s95, s72")
    A("s_sub_u32 s85, s91, 26"); A("s_lshl_b32 s85, s85, 1"); A("s_add_u32 s85, s85, s86")
    A("L_D_wo:")
    g.srd(28, 12, 13, 4096*576*2)
    A("s_lshl_b32 s72, s90, 4"); A("s_add_u32 s85, s85, s72")
    A("s_add_u32 s83, s85, 144")
    A("L_D_go:")
    A("s_setprio 0")
    A(f"s_mul_i32 s72, s85, {32*1152}"); A("s_mul_i32 s73, s84, 384"); A("s_add_u32 s82, s72, s73")
    A("v_mul_u32_u24 v5, 1152, v3"); A("v_add_u32 v5, v5, v4"); A("v_add_u32 v5, s82, v5")
    g.lds_wait(L_CNTKVI, 8)
    g.stamp(9)
    A("s_mov_b32 s77, 0")
    for rg in range(4):
        for sg in range(3):
            b = 76 + 4*(rg*3+sg)
            A(f"buffer_load_dwordx4 v[{b}:{b+3}], v5, s[28:31], s77 offen offset:{sg*128} nt")
        if rg < 3: A(f"s_add_u32 s77, s77, {8*1152}")
    g.stamp(10)
    A("s_setprio 2")
    A("s_cmp_eq_u32 s86, 0"); A("s_cbranch_scc1 L_D_w0")
    g.lds_wait(L_FLAGX1, 1)
    A("s_branch L_D_w1")
    A("L_D_w0:")
    g.lds_wait(L_FLAGX0, 1)
    A("L_D_w1:")
    g.stamp(11)
    A("s_lshl_b32 s72, s86, 7")
    A("v_lshlrev_b32 v5, 2, v3"); A("v_add_u32 v5, s72, v5")
    for rg in range(4):
        A(f"ds_read_b32 v{56+rg}, v5 offset:{L_X2U + 32*rg}")
    for r in range(8, 20): A(f"v_mov_b32 v{r}, 0")
    for rg in range(4):
        at = 68 if rg % 2 == 0 else 44
        A(f"s_waitcnt lgkmcnt({3-rg})")
        for r in range(4):
            A(f"v_and_b32 v{at+r}, v{56+rg}, v{124+r}")
        for sg in range(3):
            b = 76 + 4*(rg*3+sg)
            A(f"s_waitcnt vmcnt({11-(rg*3+sg)})")
            if sg == 0: g.nop(1)
            A(f"v_mfma_f32_16x16x32_bf16 v[{8+4*sg}:{11+4*sg}], v[{at}:{at+3}], v[{b}:{b+3}], v[{8+4*sg}:{11+4*sg}]")
    g.stamp(12)
    A("v_bfe_u32 v20, v1, 3, 1"); A("v_lshrrev_b32 v21, 5, v1")
    A("v_cmp_eq_u32 s[76:77], v20, v21")
    A("v_mul_u32_u24 v20, 768, v21"); A("v_and_b32 v21, 7, v1"); A("v_lshlrev_b32 v21, 5, v21"); A("v_add_u32 v20, v20, v21")
    A("v_bfe_u32 v21, v1, 4, 1"); A("v_lshlrev_b32 v21, 4, v21"); A("v_add_u32 v20, v20, v21")
    A("s_mul_i32 s72, s95, 1536")
    A("v_add_u32 v20, s72, v20")
    A("v_lshlrev_b32 v21, 3, v1"); A("v_add_u32 v21, s72, v21")
    A("s_mov_b64 exec, s[76:77]")
    g.nop(2)
    for sg in range(3):
        A(f"ds_write_b128 v20, v[{8+4*sg}:{11+4*sg}] offset:{L_TB + sg*256}")
    A("s_mov_b64 exec, -1")
    A("s_waitcnt lgkmcnt(0)")
    A(f"ds_read_b64 v[24:25], v21 offset:{L_TB}")
    A(f"ds_read_b64 v[26:27], v21 offset:{L_TB+768}")
    A(f"ds_read_b64 v[28:29], v21 offset:{L_TB+512}")
    A(f"ds_read_b64 v[30:31], v21 offset:{L_TB+768+512}")
    A("s_mul_i32 s72, s83, 4608"); A("s_mul_i32 s73, s84, 1536"); A("s_add_u32 s72, s72, s73"); A(f"s_add_u32 s72, s72, {WS_PG}")
    A("v_lshlrev_b32 v22, 4, v1")
    A("v_mov_b32 v33, s94"); A("v_mov_b32 v35, s94"); A("v_mov_b32 v37, s94"); A("v_mov_b32 v39, s94")
    A("s_waitcnt lgkmcnt(2)")
    A("v_add_f32 v32, v24, v26"); A("v_add_f32 v34, v25, v27")
    A("buffer_store_dwordx4 v[32:35], v22, s[96:99], s72 offen sc1")
    A("s_waitcnt lgkmcnt(0)")
    A("v_add_f32 v36, v28, v30"); A("v_add_f32 v38, v29, v31")
    A("s_mov_b32 exec_hi, 0")
    A("buffer_store_dwordx4 v[36:39], v22, s[96:99], s72 offen offset:1024 sc1")
    A("s_mov_b64 exec, -1")
    g.stamp(13)
    A("s_branch L_fin")

    A("L_KV:")
    A("s_sub_u32 s95, s3, 4")
    A("s_setprio 1")
    A("s_cmp_lg_u32 s95, 0"); A("s_cbranch_scc1 L_KV_ni")
    A("v_mov_b32 v5, 0"); A("v_lshlrev_b32 v6, 2, v1")
    A("s_mov_b64 exec, 0xffff")
    A("ds_write_b32 v6, v5")
    A("s_mov_b64 exec, -1")
    A("L_KV_ni:")
    g.srd(28, 6, 7, 0x10000000); g.srd(32, 8, 9, 0x10000000)
    A("s_lshl_b32 s76, s92, 24"); A("s_lshl_b32 s77, s93, 16"); A("s_add_u32 s76, s76, s77"); A(f"s_add_u32 s76, s76, {61440*256}")
    A("s_lshl_b32 s77, s95, 13"); A("s_add_u32 s76, s76, s77")
    A("v_bfe_u32 v3, v1, 2, 2"); A("v_lshlrev_b32 v3, 8, v3"); A("v_lshrrev_b32 v4, 4, v1"); A("v_lshlrev_b32 v4, 6, v4"); A("v_add_u32 v3, v3, v4")
    A("v_and_b32 v4, 3, v1"); A("v_lshlrev_b32 v4, 4, v4"); A("v_add_u32 v3, v3, v4"); A("v_add_u32 v3, s76, v3")
    A("v_lshlrev_b32 v4, 4, v1"); A("v_add_u32 v4, s76, v4")
    A("s_movk_i32 s77, 0x1000")
    A("s_waitcnt lgkmcnt(0)")
    A("s_mul_i32 s94, s94, 1664525"); A("s_add_u32 s94, s94, 1013904223")
    A("s_barrier")
    g.stamp(2)
    for t in range(8):
        so = "0" if t < 4 else "s77"
        A(f"buffer_load_dwordx4 v[{8+4*t}:{11+4*t}], v3, s[28:31], {so} offen offset:{(t%4)*1024} nt")
    for t in range(8):
        so = "0" if t < 4 else "s77"
        A(f"buffer_load_dwordx4 v[{40+4*t}:{43+4*t}], v4, s[32:35], {so} offen offset:{(t%4)*1024} nt")
    g.lds_signal(L_CNTKVI)
    g.stamp(3)
    g.lds_wait(L_FLAGQ, 1)
    g.stamp(4)
    A("s_setprio 2")
    A("v_bfe_u32 v3, v1, 3, 1"); A("v_lshlrev_b32 v3, 8, v3"); A("v_lshrrev_b32 v4, 4, v1"); A("v_lshlrev_b32 v4, 6, v4"); A("v_add_u32 v3, v3, v4")
    A("v_and_b32 v4, 3, v1"); A("v_lshlrev_b32 v4, 4, v4"); A("v_add_u32 v3, v3, v4")
    A(f"ds_read_b128 v[76:79], v3 offset:{L_QL}")
    A("v_bfe_u32 v4, v1, 2, 1"); A("v_cmp_eq_u32 vcc, 0, v4")
    A("s_waitcnt lgkmcnt(0)")
    g.nop(1)
    for r in range(4): A(f"v_cndmask_b32 v{72+r}, 0, v{76+r}, vcc")
    for r in range(4): A(f"v_cndmask_b32 v{76+r}, v{76+r}, 0, vcc")
    g.nop(1)
    for p in range(4):
        A(f"s_waitcnt vmcnt({15-2*p-1})")
        d = 80 + 4*p
        A(f"v_mfma_f32_16x16x32_bf16 v[{d}:{d+3}], v[{8+8*p}:{11+8*p}], v[72:75], 0")
        A(f"v_mfma_f32_16x16x32_bf16 v[{d}:{d+3}], v[{12+8*p}:{15+8*p}], v[76:79], v[{d}:{d+3}]")
    g.stamp(5)
    g.nop(8)
    for p in range(4):
        d = 80 + 4*p
        A(f"v_mov_b32_dpp v{96+p}, v{d} quad_perm:[0,0,0,0] row_mask:0xf bank_mask:0xf")
    for q in range(1, 4):
        for p in range(4):
            d = 80 + 4*p
            g.dpp("v_add_f32", 96+p, d+q, 96+p, f"quad_perm:[{q},{q},{q},{q}]")
    A("v_max3_f32 v116, v96, v97, v98"); A("v_max_f32 v116, v116, v99"); g.nop(2)
    g.dpp("v_max_f32", 116, 116, 116, "row_half_mirror"); g.nop(1)
    g.xrow("v_max_f32", 116, 117)
    c = 128**-0.5 * 1.4426950408889634
    A(f"s_mov_b32 s72, 0x{f32bits(c):08x}")
    A("v_mul_f32 v116, s72, v116")
    for p in range(4): A(f"v_fma_f32 v{96+p}, v{96+p}, s72, -v116")
    for p in range(4): A(f"v_exp_f32 v{96+p}, v{96+p}")
    g.nop(1)
    for p in range(4): A(f"v_cvt_pk_bf16_f32 v{100+p}, v{96+p}, v{96+p}")
    for p in range(4): A(f"v_and_b32 v{96+p}, 0xffff0000, v{100+p}")
    A("v_add_f32 v118, v96, v97"); A("v_add_f32 v119, v98, v99"); A("v_add_f32 v118, v118, v119"); g.nop(2)
    g.dpp("v_add_f32", 118, 118, 118, "row_half_mirror"); g.nop(1)
    g.xrow("v_add_f32", 118, 117)
    for t in range(8):
        p, u = t // 2, t % 2
        at = 104 if t % 2 == 0 else 108
        for r in range(4):
            direct = (r < 2) if u == 0 else (r >= 2)
            if direct: A(f"v_and_b32 v{at+r}, v{100+p}, v{124+r}")
            else: g.dpp("v_and_b32", at+r, 100+p, 124+r, "row_half_mirror")
        A(f"s_waitcnt vmcnt({7-t})")
        g.nop(1)
        cin = "0" if t == 0 else "v[112:115]"
        A(f"v_mfma_f32_16x16x32_bf16 v[112:115], v[{at}:{at+3}], v[{40+4*t}:{43+4*t}], {cin}")
    g.stamp(6)
    A("v_lshrrev_b32 v3, 5, v1"); A("v_lshlrev_b32 v3, 9, v3"); A("v_and_b32 v4, 15, v1"); A("v_lshlrev_b32 v4, 5, v4"); A("v_add_u32 v3, v3, v4")
    A("v_bfe_u32 v4, v1, 4, 1"); A("v_lshlrev_b32 v4, 4, v4"); A("v_add_u32 v3, v3, v4")
    A("s_lshl_b32 s72, s95, 10"); A("v_add_u32 v3, s72, v3")
    A("v_mov_b32 v117, v118")
    A("v_and_b32 v4, 8, v1"); A("s_lshl_b32 s72, s95, 4"); A("v_add_u32 v4, s72, v4")
    A("s_mov_b64 exec, 0x101")
    A(f"ds_write_b64 v4, v[116:117] offset:{L_ML}")
    A("s_mov_b64 exec, -1")
    g.nop(2)
    A(f"ds_write_b128 v3, v[112:115] offset:{L_OK}")
    g.lds_arrive(L_CNTKV)
    A("s_cmp_eq_u32 s72, 7"); A("s_cbranch_scc0 L_KV_done")
    A("s_setprio 3")
    A("v_lshlrev_b32 v3, 4, v1")
    A("v_lshrrev_b32 v4, 5, v1"); A("v_lshlrev_b32 v4, 3, v4")
    for k in range(8):
        A(f"ds_read_b64 v[{8+2*k}:{9+2*k}], v4 offset:{L_ML + 16*k}")
    for k in range(8):
        A(f"ds_read_b128 v[{24+4*k}:{27+4*k}], v3 offset:{L_OK + 1024*k}")
    A("s_waitcnt lgkmcnt(8)")
    A("v_max3_f32 v56, v8, v10, v12"); A("v_max3_f32 v56, v56, v14, v16"); A("v_max3_f32 v56, v56, v18, v20"); A("v_max_f32 v56, v56, v22")
    for k in range(8): A(f"v_sub_f32 v{8+2*k}, v{8+2*k}, v56")
    for k in range(8): A(f"v_exp_f32 v{8+2*k}, v{8+2*k}")
    g.nop(1)
    A("v_mul_f32 v57, v8, v9")
    for k in range(1, 8): A(f"v_fma_f32 v57, v{8+2*k}, v{9+2*k}, v57")
    A("s_waitcnt lgkmcnt(0)")
    for r in range(4): A(f"v_mul_f32 v{60+r}, v{24+r}, v8")
    for k in range(1, 8):
        for r in range(4): A(f"v_fma_f32 v{60+r}, v{24+4*k+r}, v{8+2*k}, v{60+r}")
    A("v_rcp_f32 v58, v57"); A("v_log_f32 v59, v57"); g.nop(1)
    for r in range(4): A(f"v_mul_f32 v{60+r}, v{60+r}, v58")
    A("v_cvt_pk_bf16_f32 v64, v60, v61"); A("v_mov_b32 v65, s94"); A("v_cvt_pk_bf16_f32 v66, v62, v63"); A("v_mov_b32 v67, s94")
    A("v_add_f32 v68, v56, v59"); A("v_mov_b32 v69, s94")
    A("s_lshl_b32 s72, s92, 14"); A("s_lshl_b32 s73, s93, 9"); A("s_add_u32 s72, s72, s73"); A(f"s_add_u32 s72, s72, {WS_AG}")
    A("v_lshrrev_b32 v4, 5, v1"); A("v_lshlrev_b32 v5, 13, v4"); A("v_and_b32 v6, 31, v1"); A("v_lshlrev_b32 v6, 4, v6"); A("v_add_u32 v5, v5, v6")
    A("buffer_store_dwordx4 v[64:67], v5, s[96:99], s72 offen sc1")
    A("s_lshl_b32 s72, s92, 8"); A("s_and_b32 s73, s93, 7"); A("s_lshl_b32 s73, s73, 4"); A("s_add_u32 s72, s72, s73")
    A("s_lshr_b32 s73, s93, 3"); A("s_lshl_b32 s73, s73, 3"); A("s_add_u32 s72, s72, s73"); A(f"s_add_u32 s72, s72, {WS_LG}")
    A("v_lshlrev_b32 v5, 7, v4")
    A("s_mov_b32 exec_lo, 1"); A("s_mov_b32 exec_hi, 1")
    A("buffer_store_dwordx2 v[68:69], v5, s[96:99], s72 offen sc1")
    A("s_mov_b64 exec, -1")
    g.stamp(7)
    A("L_KV_done:")
    A("s_cmp_ge_u32 s91, 26"); A("s_cbranch_scc1 L_h3_kv")
    A("s_cmp_lt_u32 s91, 22"); A("s_cbranch_scc1 L_fin")
    A("s_cmp_ge_u32 s91, 25"); A("s_cbranch_scc1 L_fin")
    A("L_h3_kv:")
    A("s_mov_b32 s86, s95"); A("s_add_u32 s87, s95, 9")
    A("s_branch L_h3")
    A("L_h3_slot16:")
    A("s_mov_b32 s86, 8"); A("s_mov_b32 s87, 17")
    A("L_h3:")
    A("s_setprio 3")
    A("s_mul_i32 s85, s90, 9")
    A("s_cmp_ge_u32 s91, 26"); A("s_cselect_b32 s72, 26, 16"); A("s_sub_u32 s72, s91, s72"); A("s_add_u32 s85, s85, s72")
    A("s_lshl_b32 s80, s86, 4")
    A("s_cmp_eq_u32 s87, 17"); A("s_cselect_b32 s81, 8, s87"); A("s_lshl_b32 s81, s81, 4")
    A("s_mul_i32 s80, s80, 4608"); A("s_mul_i32 s81, s81, 4608")
    A("s_lshl_b32 s72, s85, 6"); A(f"s_add_u32 s72, s72, {WS_PG}")
    A("s_add_u32 s80, s80, s72"); A("s_add_u32 s81, s81, s72")
    A("v_lshrrev_b32 v8, 2, v1"); A("v_mul_u32_u24 v8, 4608, v8"); A("v_and_b32 v9, 3, v1"); A("v_lshlrev_b32 v9, 4, v9"); A("v_add_u32 v8, v8, v9")
    g.stamp(13)
    A(f"s_mov_b32 s73, {SPIN_G}")
    A("s_mov_b32 exec_lo, 0"); A("s_mov_b32 exec_hi, 0xf0000000")
    lp = g.lab("SP"); le = g.lab("SPE")
    A(f"{lp}:")
    A("buffer_load_dwordx4 v[12:15], v8, s[96:99], s80 offen sc1")
    A("s_waitcnt vmcnt(0)")
    A("v_cmp_ne_u32 vcc, s94, v13"); A("v_cmp_ne_u32 s[76:77], s94, v15"); A("s_or_b64 vcc, vcc, s[76:77]")
    A("s_cmp_eq_u64 vcc, 0"); A(f"s_cbranch_scc1 {le}")
    A("s_sub_u32 s73, s73, 1"); A("s_cmp_eq_u32 s73, 0"); A(f"s_cbranch_scc1 {le}")
    A("s_sleep 2")
    A(f"s_branch {lp}")
    A(f"{le}:")
    A("s_mov_b64 exec, -1")
    lp = g.lab("FP"); le = g.lab("FPE")
    A(f"{lp}:")
    A("buffer_load_dwordx4 v[12:15], v8, s[96:99], s80 offen sc1")
    A("buffer_load_dwordx4 v[16:19], v8, s[96:99], s81 offen sc1")
    A("s_waitcnt vmcnt(0)")
    A("v_cmp_ne_u32 vcc, s94, v13")
    for r in (15, 17, 19):
        A(f"v_cmp_ne_u32 s[76:77], s94, v{r}"); A("s_or_b64 vcc, vcc, s[76:77]")
    A("s_cmp_eq_u64 vcc, 0"); A(f"s_cbranch_scc1 {le}")
    A("s_sub_u32 s73, s73, 1"); A("s_cmp_eq_u32 s73, 0"); A(f"s_cbranch_scc1 {le}")
    A("s_sleep 1")
    A(f"s_branch {lp}")
    A(f"{le}:")
    g.stamp(14)
    for ctrl in ("row_ror:4", "row_ror:8"):
        g.nop(1)
        for r in (12, 14, 16, 18): g.dpp("v_add_f32", r, r, r, ctrl)
    g.nop(1)
    g.xrow_multi("v_add_f32", [12, 14, 16, 18], [20, 21, 22, 23])
    A("v_mov_b32 v13, v14"); A("v_mov_b32 v17, v18")
    A("v_lshlrev_b32 v9, 3, v1")
    A("s_lshl_b32 s72, s86, 5"); A("v_add_u32 v10, s72, v9")
    A("s_lshl_b32 s72, s87, 5"); A("v_add_u32 v11, s72, v9")
    A("s_mov_b64 exec, 0xf")
    A(f"ds_write_b64 v10, v[12:13] offset:{L_H3S}")
    A(f"ds_write_b64 v11, v[16:17] offset:{L_H3S}")
    A("s_mov_b64 exec, -1")
    g.lds_arrive(L_CNTH3)
    A("s_cmp_eq_u32 s72, 8"); A("s_cbranch_scc0 L_fin")
    g.srd(32, 4, 5, 1152)
    A("s_lshl_b32 s72, s85, 4")
    A("v_lshlrev_b32 v9, 1, v1"); A("v_add_u32 v9, s72, v9")
    A("s_mov_b64 exec, 0xff")
    A("buffer_load_ushort v10, v9, s[32:35], 0 offen")
    A("v_lshlrev_b32 v8, 2, v1")
    for sl in range(17):
        A(f"ds_read_b32 v{12+sl}, v8 offset:{L_H3S + 32*sl}")
    A("s_waitcnt lgkmcnt(8)")
    for sl in range(1, 9): A(f"v_add_f32 v12, v12, v{12+sl}")
    A("s_waitcnt lgkmcnt(0)")
    for sl in range(10, 17): A(f"v_add_f32 v21, v21, v{12+sl}")
    g.rne(12); g.rne(21)
    A(f"v_mul_f32 v13, 0x{f32bits(-1.4426950408889634):08x}, v12")
    A("v_exp_f32 v13, v13"); g.nop(1)
    A("v_add_f32 v13, 1.0, v13"); A("v_rcp_f32 v13, v13"); g.nop(1)
    A("v_mul_f32 v13, v13, v12")
    g.rne(13)
    A("v_mul_f32 v13, v13, v21")
    g.rne(13)
    A("s_waitcnt vmcnt(0)")
    A("v_lshlrev_b32 v10, 16, v10")
    A("v_add_f32 v13, v13, v10")
    A("v_cvt_pk_bf16_f32 v13, v13, v13")
    g.srd(28, 22, 23, 1152)
    A("buffer_store_short v13, v9, s[28:31], 0 offen")
    A("s_cmp_lg_u32 s85, 0"); A("s_cbranch_scc1 L_fin_x")
    A("s_mov_b64 exec, 1")
    A("v_mov_b32 v14, s94"); A("v_mov_b32 v15, 0")
    A(f"buffer_store_dword v14, v15, s[96:99], 0 offen offset:{WS_EPOCH} sc1")
    A("L_fin_x:")
    A("s_mov_b64 exec, -1")
    g.stamp(15)
    A("L_fin:")
    if stamps:
        g.stamp(15) if False else None
        A("s_mov_b64 exec, -1")
        A("s_waitcnt lgkmcnt(0)")
        for i in range(16):
            A(f"v_writelane_b32 v8, s{40+2*i}, {i}"); A(f"v_writelane_b32 v9, s{41+2*i}, {i}")
        A("s_lshl_b32 s72, s2, 4"); A("s_add_u32 s72, s72, s3"); A("s_lshl_b32 s72, s72, 7"); A(f"s_add_u32 s72, s72, {WS_STAMP}")
        A("v_lshlrev_b32 v3, 3, v1")
        A("s_mov_b64 exec, 0xffff")
        A("buffer_store_dwordx2 v[8:9], v3, s[96:99], s72 offen")
    A("L_end:"); A("s_endpgm")
    A('.section .rodata,"a"'); A(".p2align 6"); A(f".amdhsa_kernel {NAME}_kernel")
    A("  .amdhsa_next_free_vgpr 128"); A("  .amdhsa_next_free_sgpr 102"); A("  .amdhsa_accum_offset 128")
    A("  .amdhsa_group_segment_fixed_size 0"); A("  .amdhsa_kernarg_size 96"); A("  .amdhsa_user_sgpr_count 2")
    A("  .amdhsa_user_sgpr_kernarg_segment_ptr 1"); A("  .amdhsa_system_sgpr_workgroup_id_x 1")
    A("  .amdhsa_float_denorm_mode_32 3")
    A(".end_amdhsa_kernel")
    return "\n".join(g.L) + "\n"

import struct
def f32bits(x): return struct.unpack("<I", struct.pack("<f", x))[0]

if __name__ == "__main__":
    ap = argparse.ArgumentParser(); ap.add_argument("-o", default="k1.s"); ap.add_argument("--stamps", action="store_true")
    a = ap.parse_args()
    open(a.o, "w").write(gen(a.stamps))
```

```python
import sys, argparse
NAME = "recurrent_scan__sliding_block_cached__swiglu_ffn__decode"

WS_EPOCH = 0x0
WS_QG = 0x10000
WS_XG = 0x20000
WS_LG = 0x68000
WS_AG = 0x70000
WS_PG = 0xC0000
WS_XT = 0x8000
WS_B = 0x400000
WS_STAMP = 0x800000
L_CNTP1, L_CNTKVI, L_FLAGQ, L_CNTKV, L_FLAGX0, L_FLAGX1, L_CNTH3 = 0, 4, 8, 12, 16, 20, 24
L_XRAW = 0x40
L_QL = 0x500
L_ML = 0x700
L_X2U = 0x780
L_H3S = 0x880
L_P1 = 0x1000
L_OK = 0x3000
L_TB = 0x5000
LDS_BYTES = 0x7600

KVD = 3
FORCE_B = 0
H2SENT = 1
H3SENT = 1
SLP_Q = 4
SLP_X = 4
SLP_H = 2
SLP_F = 2
DD_F = 8
DD_O = 4
SPIN_G = 40000
SPIN_L = 400000

class G:
    def __init__(self, stamps=False):
        self.L = []
        self.stamps = stamps
        self.nlab = 0
        self.nst = 0
    def A(self, s): self.L.append(s)
    def lab(self, base="L"):
        self.nlab += 1
        return f"{base}_{self.nlab}"
    def srd(self, d, lo, hi, size):
        A = self.A
        A(f"s_mov_b32 s{d}, s{lo}"); A(f"s_mov_b32 s{d+1}, s{hi}"); A(f"s_mov_b32 s{d+2}, {size}"); A(f"s_mov_b32 s{d+3}, 0x20000")
    def stamp(self, i):
        if self.stamps:
            assert i < 16
            self.A(f"s_memrealtime s[{40+2*i}:{41+2*i}]")
    def nop(self, n):
        while n > 0:
            k = min(n, 16); self.A(f"s_nop {k-1}"); n -= k
    def lds_wait(self, addr, val, vt=6, vz=7):
        A = self.A
        l = self.lab("LW"); e = self.lab("LWE")
        A(f"v_mov_b32 v{vz}, 0")
        A(f"s_mov_b32 s73, {SPIN_L}")
        A(f"{l}:")
        A(f"ds_read_b32 v{vt}, v{vz} offset:{addr}")
        A("s_waitcnt lgkmcnt(0)")
        A(f"v_readfirstlane_b32 s72, v{vt}")
        A(f"s_cmp_ge_u32 s72, {val}")
        A(f"s_cbranch_scc1 {e}")
        A("s_sub_u32 s73, s73, 1")
        A("s_cmp_eq_u32 s73, 0")
        A(f"s_cbranch_scc1 {e}")
        A("s_sleep 1")
        A(f"s_branch {l}")
        A(f"{e}:")
    def lds_signal(self, addr, vt=6, vz=7):
        A = self.A
        A("s_waitcnt lgkmcnt(0)")
        A(f"v_mov_b32 v{vz}, 0"); A(f"v_mov_b32 v{vt}, 1")
        A("s_mov_b64 s[74:75], exec"); A("s_mov_b64 exec, 1")
        A(f"ds_add_u32 v{vz}, v{vt} offset:{addr}")
        A("s_mov_b64 exec, s[74:75]")
    def lds_arrive(self, addr, vt=6, vz=7):
        A = self.A
        A("s_waitcnt lgkmcnt(0)")
        A(f"v_mov_b32 v{vz}, 0"); A(f"v_mov_b32 v{vt}, 1")
        A("s_mov_b64 s[74:75], exec"); A("s_mov_b64 exec, 1")
        A(f"ds_add_rtn_u32 v{vt}, v{vz}, v{vt} offset:{addr}")
        A("s_waitcnt lgkmcnt(0)")
        A(f"v_readfirstlane_b32 s72, v{vt}")
        A("s_mov_b64 exec, s[74:75]")
    def xrow(self, op, v, t):
        A = self.A
        A(f"v_mov_b32 v{t}, v{v}"); self.nop(2)
        A(f"v_permlane16_swap_b32 v{v}, v{t}"); self.nop(1)
        A(f"{op} v{v}, v{v}, v{t}")
        A(f"v_mov_b32 v{t}, v{v}"); self.nop(2)
        A(f"v_permlane32_swap_b32 v{v}, v{t}"); self.nop(1)
        A(f"{op} v{v}, v{v}, v{t}")
    def xrow_multi(self, op, vs, ts):
        A = self.A
        n = len(vs)
        for v, t in zip(vs, ts): A(f"v_mov_b32 v{t}, v{v}")
        self.nop(max(0, 2 - (n - 1)) if n < 3 else 0)
        if n >= 3: pass
        for v, t in zip(vs, ts): A(f"v_permlane16_swap_b32 v{v}, v{t}")
        self.nop(1)
        for v, t in zip(vs, ts): A(f"{op} v{v}, v{v}, v{t}")
        for v, t in zip(vs, ts): A(f"v_mov_b32 v{t}, v{v}")
        self.nop(2)
        for v, t in zip(vs, ts): A(f"v_permlane32_swap_b32 v{v}, v{t}")
        self.nop(1)
        for v, t in zip(vs, ts): A(f"{op} v{v}, v{v}, v{t}")
    def sentinel(self, execmask, vaddr, soff, imm, dst, slp, name):
        A = self.A
        lp = self.lab(name); le = self.lab(name + "E")
        A(f"s_mov_b64 exec, {execmask}")
        A(f"s_mov_b32 s73, {SPIN_G}")
        A(f"{lp}:")
        A(f"buffer_load_dwordx4 v[{dst}:{dst+3}], v{vaddr}, s[96:99], {soff} offen offset:{imm} sc1")
        A("s_waitcnt vmcnt(0)")
        A(f"v_cmp_ne_u32 vcc, s94, v{dst+1}"); A(f"v_cmp_ne_u32 s[74:75], s94, v{dst+3}"); A("s_or_b64 vcc, vcc, s[74:75]")
        A("s_cmp_eq_u64 vcc, 0"); A(f"s_cbranch_scc1 {le}")
        A("s_sub_u32 s73, s73, 1"); A("s_cmp_eq_u32 s73, 0"); A(f"s_cbranch_scc1 {le}")
        A(f"s_sleep {slp}")
        A(f"s_branch {lp}")
        A(f"{le}:")
        A("s_mov_b64 exec, -1")
    def xt_issue(self, vwg, dst):
        A = self.A
        A(f"v_lshlrev_b32 v{vwg}, 3, v{vwg}")
        A(f"buffer_load_dwordx2 v[{dst}:{dst+1}], v{vwg}, s[96:99], s100 offen sc1")
    def xt_finish(self, vwg, dst, sdst):
        A = self.A
        lp = self.lab("XT"); le = self.lab("XTE")
        A(f"s_mov_b32 s73, {SPIN_G}")
        A(f"{lp}:")
        A("s_waitcnt vmcnt(0)")
        A(f"v_cmp_ne_u32 vcc, s94, v{dst+1}")
        A("s_cmp_eq_u64 vcc, 0"); A(f"s_cbranch_scc1 {le}")
        A("s_sub_u32 s73, s73, 1"); A("s_cmp_eq_u32 s73, 0"); A(f"s_cbranch_scc1 {le}")
        A("s_sleep 4")
        A(f"buffer_load_dwordx2 v[{dst}:{dst+1}], v{vwg}, s[96:99], s100 offen sc1")
        A(f"s_branch {lp}")
        A(f"{le}:")
        A(f"v_cmp_ne_u32 vcc, s101, v{dst}")
        A("s_cmp_eq_u64 vcc, 0")
        A(f"s_cselect_b32 {sdst}, 0, {WS_B if not FORCE_B else WS_B}")
        if FORCE_B: A(f"s_mov_b32 {sdst}, {WS_B}")
    def dpp(self, op, d, s0, s1, ctrl):
        self.A(f"{op}_dpp v{d}, v{s0}, v{s1} {ctrl} row_mask:0xf bank_mask:0xf")
    def wave_sum(self, v, t):
        A = self.A
        for ctrl in ["quad_perm:[1,0,3,2]", "quad_perm:[2,3,0,1]", "row_half_mirror", "row_mirror"]:
            self.nop(2)
            self.dpp("v_add_f32", v, v, v, ctrl)
        self.nop(1)
        self.xrow("v_add_f32", v, t)
    def rne(self, v):
        A = self.A
        A(f"v_cvt_pk_bf16_f32 v{v}, v{v}, v{v}")
        A(f"v_and_b32 v{v}, 0xffff0000, v{v}")

def gen(stamps=False):
    g = G(stamps); A = g.A
    A(f"; @launch grid=(256,1,1) block=(1024,1,1) lds={LDS_BYTES}")
    A('.amdgcn_target "amdgcn-amd-amdhsa--gfx950"')
    A(".text"); A(f".globl {NAME}_kernel"); A(".p2align 8"); A(f".type {NAME}_kernel,@function")
    A(f"{NAME}_kernel:")
    g.stamp(0)
    A("s_cmp_ge_u32 s2, 256"); A("s_cbranch_scc1 L_end")
    A("s_load_dwordx16 s[4:19], s[0:1], 0")
    A("s_load_dwordx8 s[20:27], s[0:1], 64")
    A("v_and_b32 v1, 63, v0")
    A("v_lshrrev_b32 v2, 6, v0")
    A("s_and_b32 s90, s2, 7")
    A("v_readfirstlane_b32 s3, v2")
    A("s_lshr_b32 s91, s2, 3")
    A("s_lshl_b32 s92, s90, 1"); A("s_lshr_b32 s72, s91, 4"); A("s_add_u32 s92, s92, s72")
    A("s_and_b32 s93, s91, 15")
    A("v_and_b32 v2, 1, v1")
    A("v_mov_b32 v3, 0xffff")
    A("v_lshlrev_b32 v2, 4, v2")
    A("v_lshlrev_b32 v3, v2, v3")
    A("v_bfe_u32 v2, v1, 1, 2")
    for t in range(4):
        A(f"v_cmp_eq_u32 vcc, {t}, v2"); g.nop(2)
        A(f"v_cndmask_b32 v{124+t}, 0, v3, vcc")
    if stamps:
        for i in range(1, 16): A(f"s_mov_b64 s[{40+2*i}:{41+2*i}], 0")
    A("s_waitcnt lgkmcnt(0)")
    A(f"s_load_dword s94, s[26:27], {WS_EPOCH}")
    g.srd(96, 26, 27, 0x40000000)
    A(f"s_mov_b32 s100, {WS_XT}")
    A("s_getreg_b32 s101, hwreg(HW_REG_XCC_ID)"); A("s_and_b32 s101, s101, 15")
    A("s_cmp_lt_u32 s3, 4"); A("s_cbranch_scc1 L_aux0")
    A("s_cmp_lt_u32 s3, 12"); A("s_cbranch_scc1 L_KV")
    A("s_sub_u32 s95, s3, 8"); A("s_branch L_aux")
    A("L_aux0:"); A("s_mov_b32 s95, s3")
    A("L_aux:")
    A("s_setprio 2")
    A("v_lshrrev_b32 v3, 4, v1"); A("v_lshlrev_b32 v3, 1, v3"); A("v_bfe_u32 v4, v1, 3, 1"); A("v_add_u32 v3, v3, v4")
    A("v_and_b32 v4, 7, v1"); A("v_lshlrev_b32 v4, 4, v4")
    A("s_cmp_ge_u32 s91, 26"); A("s_cbranch_scc1 L_auxO")
    g.srd(32, 4, 5, 1152)
    A("v_lshlrev_b32 v5, 4, v1")
    A("buffer_load_dwordx4 v[44:47], v5, s[32:35], 0 offen")
    A("buffer_load_dwordx4 v[48:51], v5, s[32:35], 0 offen offset:1024")
    A("v_lshrrev_b32 v52, 4, v1"); A("v_and_b32 v53, 15, v1"); A("v_lshlrev_b32 v53, 4, v53")
    A("s_cmp_ge_u32 s91, 18"); A("s_cbranch_scc1 L_auxQ")
    A("s_mul_i32 s72, s90, 18"); A("s_add_u32 s72, s72, s91")
    A("s_lshr_b32 s88, s72, 2"); A("s_and_b32 s89, s72, 3")
    A("s_mul_i32 s87, s89, 144"); A("s_and_b32 s72, s95, 3"); A("s_mul_i32 s72, s72, 36"); A("s_add_u32 s87, s87, s72")
    A("s_cmp_lt_u32 s95, 4"); A("s_cselect_b32 s28, s16, s18"); A("s_cselect_b32 s29, s17, s19")
    A(f"s_mov_b32 s30, {576*4608*2}"); A("s_mov_b32 s31, 0x20000")
    A("s_mul_i32 s72, s87, 9216"); A("s_lshl_b32 s73, s88, 8"); A("s_add_u32 s72, s72, s73")
    A("v_mul_u32_u24 v5, 9216, v52"); A("v_add_u32 v5, v5, v53"); A("v_add_u32 v5, s72, v5")
    A(f"s_mov_b32 s76, {4*9216}")
    A("s_branch L_p1load")
    A("L_auxQ:")
    A("s_lshl_b32 s72, s90, 3"); A("s_add_u32 s72, s72, s91"); A("s_sub_u32 s72, s72, 18")
    A("s_lshr_b32 s88, s72, 1"); A("s_and_b32 s89, s72, 1")
    A("s_mul_i32 s87, s89, 288"); A("s_mul_i32 s72, s95, 36"); A("s_add_u32 s87, s87, s72")
    g.srd(28, 10, 11, 576*4096*2)
    A("s_lshl_b32 s72, s87, 13"); A("s_lshl_b32 s73, s88, 8"); A("s_add_u32 s72, s72, s73")
    A("v_lshlrev_b32 v5, 13, v52"); A("v_add_u32 v5, v5, v53"); A("v_add_u32 v5, s72, v5")
    A(f"s_mov_b32 s76, {4*8192}")
    A("L_p1load:")
    A("s_mov_b32 s77, 0")
    for t in range(9):
        A(f"buffer_load_dwordx4 v[{8+4*t}:{11+4*t}], v5, s[28:31], s77 offen nt")
        if t < 8: A("s_add_u32 s77, s77, s76")
    g.stamp(1)
    A("s_waitcnt lgkmcnt(0)")
    A("s_mul_i32 s94, s94, 1664525"); A("s_add_u32 s94, s94, 1013904223")
    A("s_barrier")
    g.stamp(2)
    A("s_waitcnt vmcnt(9)")
    A("v_lshlrev_b32 v5, 4, v1")
    A(f"ds_write_b128 v5, v[44:47] offset:{L_XRAW}")
    A("s_mov_b64 s[74:75], exec"); A("s_mov_b64 exec, 0xff")
    A(f"ds_write_b128 v5, v[48:51] offset:{L_XRAW+1024}")
    A("s_mov_b64 exec, s[74:75]")
    A("v_mov_b32 v52, 0"); A("v_mov_b32 v53, 0")
    A("s_mov_b32 s72, 0x3f803f80")
    A("v_mov_b32 v54, s72")
    for r in range(44, 52):
        A(f"v_dot2c_f32_bf16 v52, v{r}, v54")
        A(f"v_dot2c_f32_bf16 v53, v{r}, v{r}")
    g.nop(3)
    g.wave_sum(52, 55)
    g.wave_sum(53, 55)
    A(f"s_mov_b32 s72, 0x{f32bits(1.0/576):08x}")
    A("v_mul_f32 v52, s72, v52")
    A("v_mul_f32 v53, s72, v53")
    A("v_fma_f32 v53, -v52, v52, v53")
    A("v_max_f32 v53, 0, v53")
    g.rne(52)
    g.rne(53)
    A(f"v_add_f32 v53, 0x{f32bits(1e-5):08x}, v53")
    g.rne(53)
    A("v_sqrt_f32 v53, v53"); g.nop(1)
    g.rne(53)
    A("v_rcp_f32 v53, v53")
    A("s_lshl_b32 s72, s87, 1")
    A("v_lshrrev_b32 v5, 4, v1"); A("v_lshlrev_b32 v5, 1, v5"); A("v_add_u32 v5, s72, v5")
    A("s_waitcnt lgkmcnt(0)")
    for t in range(9):
        A(f"ds_read_u16 v{56+t}, v5 offset:{L_XRAW + 8*t}")
    for t in range(9):
        A(f"s_waitcnt lgkmcnt({8-t})")
        r = 56 + t
        A(f"v_lshlrev_b32 v{r}, 16, v{r}")
        A(f"v_sub_f32 v{r}, v{r}, v52")
        g.rne(r)
        A(f"v_mul_f32 v{r}, v{r}, v53")
        A(f"v_cvt_pk_bf16_f32 v{r}, v{r}, v{r}")
    g.stamp(3)
    for r in range(72, 76): A(f"v_mov_b32 v{r}, 0")
    for t in range(9):
        at = 68 if t % 2 == 0 else 44
        for r in range(4):
            A(f"v_and_b32 v{at+r}, v{56+t}, v{124+r}")
        A(f"s_waitcnt vmcnt({8-t})")
        g.nop(1)
        A(f"v_mfma_f32_16x16x32_bf16 v[72:75], v[{at}:{at+3}], v[{8+4*t}:{11+4*t}], v[72:75]")
    g.stamp(4)
    A("s_lshl_b32 s72, s95, 10")
    A("v_lshlrev_b32 v5, 4, v1"); A("v_add_u32 v5, s72, v5")
    g.nop(6)
    A(f"ds_write_b128 v5, v[72:75] offset:{L_P1}")
    g.lds_signal(L_CNTP1)
    A("s_cmp_eq_u32 s95, 6"); A("s_cbranch_scc1 L_a6")
    A("s_cmp_eq_u32 s95, 7"); A("s_cbranch_scc1 L_a7")
    A("s_branch L_auxD")
    A("L_auxO:")
    A("s_waitcnt lgkmcnt(0)")
    A("s_mul_i32 s94, s94, 1664525"); A("s_add_u32 s94, s94, 1013904223")
    A("s_barrier")
    g.stamp(2)
    A("s_cmp_eq_u32 s95, 6"); A("s_cbranch_scc1 L_a6_h2")
    A("s_cmp_eq_u32 s95, 7"); A("s_cbranch_scc1 L_a7")
    A("s_branch L_auxD")

    A("L_a6:")
    A("s_setprio 3")
    g.lds_wait(L_CNTP1, 8)
    g.stamp(5)
    A("s_cmp_lt_u32 s91, 18"); A("s_cbranch_scc1 L_a6_F")
    A("v_bfe_u32 v8, v1, 1, 4"); A("v_and_b32 v9, 1, v1"); A("v_lshlrev_b32 v9, 4, v9"); A("v_add_u32 v8, v8, v9"); A("v_lshlrev_b32 v8, 4, v8")
    A("v_lshrrev_b32 v9, 5, v1"); A("v_lshlrev_b32 v9, 12, v9"); A("v_add_u32 v8, v8, v9")
    for w in range(4):
        A(f"ds_read_b128 v[{12+4*w}:{15+4*w}], v8 offset:{L_P1 + w*1024}")
    for w in range(1, 4):
        A(f"s_waitcnt lgkmcnt({3-w})")
        b = 12 + 4*w
        A(f"v_pk_add_f32 v[12:13], v[12:13], v[{b}:{b+1}]"); A(f"v_pk_add_f32 v[14:15], v[14:15], v[{b+2}:{b+3}]")
    for r in range(4): A(f"v_mov_b32 v{16+r}, v{12+r}")
    g.nop(1)
    for r in range(4): A(f"v_permlane32_swap_b32 v{12+r}, v{16+r}")
    g.nop(1)
    A("v_add_f32 v20, v12, v16"); A("v_mov_b32 v21, s94"); A("v_add_f32 v22, v13, v17"); A("v_mov_b32 v23, s94")
    A("v_add_f32 v24, v14, v18"); A("v_mov_b32 v25, s94"); A("v_add_f32 v26, v15, v19"); A("v_mov_b32 v27, s94")
    A("s_lshl_b32 s72, s88, 11"); A("s_lshl_b32 s73, s89, 10"); A("s_add_u32 s72, s72, s73"); A(f"s_add_u32 s72, s72, {WS_QG}")
    A("v_lshlrev_b32 v8, 5, v1")
    A("s_mov_b32 exec_hi, 0")
    A("buffer_store_dwordx4 v[20:23], v8, s[96:99], s72 offen")
    A("buffer_store_dwordx4 v[24:27], v8, s[96:99], s72 offen offset:16")
    A(f"s_add_u32 s72, s72, {WS_B}")
    A("buffer_store_dwordx4 v[20:23], v8, s[96:99], s72 offen sc1")
    A("buffer_store_dwordx4 v[24:27], v8, s[96:99], s72 offen offset:16 sc1")
    A("s_mov_b64 exec, -1")
    g.stamp(6)
    if stamps:
        A("s_waitcnt vmcnt(0)")
        g.stamp(7)
    A("s_cmp_ge_u32 s91, 22"); A("s_cbranch_scc1 L_a6_h2")
    A("s_cmp_lt_u32 s91, 21"); A("s_cbranch_scc1 L_h3_slot16")
    A("s_branch L_fin")
    A("L_a6_F:")
    A("v_lshrrev_b32 v10, 4, v1")
    A("s_lshl_b32 s72, s88, 2"); A("v_add_u32 v40, s72, v10")
    A("v_mul_u32_u24 v41, 3641, v40"); A("v_lshrrev_b32 v41, 16, v41")
    A("v_mul_u32_u24 v42, 18, v41"); A("v_sub_u32 v40, v40, v42"); A("v_lshlrev_b32 v40, 3, v40"); A("v_add_u32 v40, v40, v41")
    g.xt_issue(40, 42)
    A("v_lshlrev_b32 v8, 2, v10"); A("v_bfe_u32 v9, v1, 1, 2"); A("v_add_u32 v8, v8, v9"); A("v_and_b32 v9, 1, v1"); A("v_lshlrev_b32 v9, 4, v9"); A("v_add_u32 v8, v8, v9")
    A("v_lshlrev_b32 v8, 4, v8")
    A("v_bfe_u32 v9, v1, 3, 1"); A("v_lshlrev_b32 v9, 12, v9"); A("v_add_u32 v8, v8, v9")
    for w in range(4):
        A(f"ds_read_b128 v[{12+4*w}:{15+4*w}], v8 offset:{L_P1 + w*1024}")
    A("v_cmp_ne_u32 s[76:77], s89, v10")
    A("v_and_b32 v9, 15, v1"); A("v_lshlrev_b32 v9, 5, v9")
    A("v_lshlrev_b32 v8, 11, v10"); A("v_add_u32 v8, v8, v9")
    A("v_lshlrev_b32 v10, 9, v10"); A("v_add_u32 v9, v10, v9")
    A("s_lshl_b32 s72, s88, 13"); A(f"s_add_u32 s72, s72, {WS_XG}")
    A("s_lshl_b32 s73, s89, 9"); A("s_add_u32 s80, s72, s73")
    A("s_lshl_b32 s73, s89, 11"); A("s_add_u32 s81, s72, s73")
    for w in range(1, 4):
        A(f"s_waitcnt lgkmcnt({3-w})")
        b = 12 + 4*w
        A(f"v_pk_add_f32 v[12:13], v[12:13], v[{b}:{b+1}]"); A(f"v_pk_add_f32 v[14:15], v[14:15], v[{b+2}:{b+3}]")
    A("v_mov_b32 v20, v12"); A("v_mov_b32 v21, s94"); A("v_mov_b32 v22, v13"); A("v_mov_b32 v23, s94")
    A("v_mov_b32 v24, v14"); A("v_mov_b32 v25, s94"); A("v_mov_b32 v26, v15"); A("v_mov_b32 v27, s94")
    A("s_mov_b64 exec, s[76:77]")
    A("buffer_store_dwordx4 v[20:23], v8, s[96:99], s80 offen")
    A("buffer_store_dwordx4 v[24:27], v8, s[96:99], s80 offen offset:16")
    A(f"s_add_u32 s80, s80, {WS_B}")
    A("buffer_store_dwordx4 v[20:23], v8, s[96:99], s80 offen sc1")
    A("buffer_store_dwordx4 v[24:27], v8, s[96:99], s80 offen offset:16 sc1")
    g.stamp(6)
    A("s_mov_b64 exec, -1")
    g.xt_finish(40, 42, "s72")
    A("s_add_u32 s81, s81, s72")
    A("s_mov_b32 s78, 0x80008000"); A("s_mov_b32 s79, 0x80008000"); A("s_and_b64 s[78:79], s[78:79], s[76:77]")
    g.sentinel("s[78:79]", 9, "s81", 16, 28, SLP_X, "XS")
    A("s_mov_b64 exec, s[76:77]")
    A(f"s_mov_b32 s73, {SPIN_G}")
    lp = g.lab("XP"); le = g.lab("XPE")
    A(f"{lp}:")
    A("buffer_load_dwordx4 v[28:31], v9, s[96:99], s81 offen sc1")
    A("buffer_load_dwordx4 v[32:35], v9, s[96:99], s81 offen offset:16 sc1")
    A("s_waitcnt vmcnt(0)")
    A("v_cmp_ne_u32 vcc, s94, v29"); A("v_cmp_ne_u32 s[82:83], s94, v31"); A("s_or_b64 vcc, vcc, s[82:83]")
    A("v_cmp_ne_u32 s[82:83], s94, v33"); A("s_or_b64 vcc, vcc, s[82:83]")
    A("v_cmp_ne_u32 s[82:83], s94, v35"); A("s_or_b64 s[82:83], vcc, s[82:83]")
    A("s_cmp_eq_u64 s[82:83], 0"); A(f"s_cbranch_scc1 {le}")
    A("s_sub_u32 s73, s73, 1"); A("s_cmp_eq_u32 s73, 0"); A(f"s_cbranch_scc1 {le}")
    A("s_sleep 4")
    A(f"s_branch {lp}")
    A(f"{le}:")
    g.stamp(7)
    A("v_mov_b32 v12, v28"); A("v_mov_b32 v13, v30"); A("v_mov_b32 v14, v32"); A("v_mov_b32 v15, v34")
    A("s_mov_b64 exec, -1")
    g.xrow_multi("v_add_f32", [12, 13, 14, 15], [16, 17, 18, 19])
    g.nop(1)
    for r in range(4): A(f"v_mov_b32_dpp v{16+r}, v{12+r} row_ror:8 row_mask:0xf bank_mask:0xf")
    for r in range(4):
        g.rne(12+r); g.rne(16+r)
    for r in range(4):
        A(f"v_mul_f32 v{20+r}, 0x{f32bits(-1.4426950408889634):08x}, v{12+r}")
    for r in range(4): A(f"v_exp_f32 v{20+r}, v{20+r}")
    g.nop(1)
    for r in range(4): A(f"v_add_f32 v{20+r}, 1.0, v{20+r}")
    for r in range(4): A(f"v_rcp_f32 v{20+r}, v{20+r}")
    g.nop(1)
    for r in range(4): A(f"v_mul_f32 v{20+r}, v{20+r}, v{12+r}")
    for r in range(4): g.rne(20+r)
    for r in range(4): A(f"v_mul_f32 v{20+r}, v{20+r}, v{16+r}")
    for r in range(4): A(f"v_cvt_pk_bf16_f32 v{20+r}, v{20+r}, v{20+r}")
    A("v_lshlrev_b32 v8, 4, v1")
    A("s_mov_b64 exec, 0xff")
    A(f"ds_write_b128 v8, v[20:23] offset:{L_X2U}")
    A("s_mov_b64 exec, -1")
    g.lds_signal(L_FLAGX0)
    g.stamp(8)
    A("s_branch L_fin")

    A("L_a6_h2:")
    A("s_mov_b32 s86, 0")
    A("L_h2:")
    A("s_setprio 3")
    A("s_cmp_ge_u32 s91, 26"); A("s_cbranch_scc1 L_h2_O")
    A("s_sub_u32 s85, s91, 10"); A("s_branch L_h2_go")
    A("L_h2_O:")
    A("s_sub_u32 s85, s91, 26"); A("s_lshl_b32 s85, s85, 1"); A("s_add_u32 s85, s85, s86")
    A("L_h2_go:")
    A("s_lshl_b32 s72, s90, 4"); A("s_add_u32 s85, s85, s72")
    A("s_lshr_b32 s84, s85, 2"); A("s_and_b32 s83, s85, 3")
    A("s_lshl_b32 s72, s84, 13"); A("s_lshl_b32 s73, s83, 7"); A("s_add_u32 s80, s72, s73"); A(f"s_add_u32 s80, s80, {WS_AG}")
    A("s_add_u32 s81, s80, 4096")
    A("v_lshrrev_b32 v8, 3, v1"); A("v_lshlrev_b32 v9, 9, v8"); A("v_and_b32 v10, 7, v1"); A("v_lshlrev_b32 v10, 4, v10"); A("v_add_u32 v9, v9, v10")
    A("v_lshlrev_b32 v8, 4, v8")
    A("s_lshl_b32 s82, s84, 7"); A(f"s_add_u32 s82, s82, {WS_LG}")
    A("s_lshr_b32 s72, s84, 1"); A("s_and_b32 s73, s72, 1"); A("s_lshl_b32 s73, s73, 7"); A("s_lshr_b32 s72, s72, 1"); A("s_add_u32 s72, s72, s73")
    A("v_and_b32 v40, 15, v1"); A("v_lshlrev_b32 v40, 3, v40"); A("v_add_u32 v40, s72, v40")
    g.xt_issue(40, 42)
    g.xt_finish(40, 42, "s72")
    A("s_add_u32 s80, s80, s72"); A("s_add_u32 s81, s81, s72"); A("s_add_u32 s82, s82, s72")
    g.lds_wait(L_CNTKV, 8)
    g.stamp(9)
    if H2SENT:
        A("s_mov_b32 s78, 0x01010101"); A("s_mov_b32 s79, 0x01010101")
        g.sentinel("s[78:79]", 8, "s82", 0, 20, SLP_H, "HS")
    A(f"s_mov_b32 s73, {SPIN_G}")
    lp = g.lab("HP"); le = g.lab("HPE")
    A(f"{lp}:")
    A("buffer_load_dwordx4 v[12:15], v9, s[96:99], s80 offen sc1")
    A("buffer_load_dwordx4 v[16:19], v9, s[96:99], s81 offen sc1")
    A("buffer_load_dwordx4 v[20:23], v8, s[96:99], s82 offen sc1")
    A("s_waitcnt vmcnt(0)")
    A("v_cmp_ne_u32 vcc, s94, v13")
    for r in (15, 17, 19, 21, 23):
        A(f"v_cmp_ne_u32 s[76:77], s94, v{r}"); A("s_or_b64 vcc, vcc, s[76:77]")
    A("s_cmp_eq_u64 vcc, 0"); A(f"s_cbranch_scc1 {le}")
    A("s_sub_u32 s73, s73, 1"); A("s_cmp_eq_u32 s73, 0"); A(f"s_cbranch_scc1 {le}")
    A("s_sleep 2")
    A(f"s_branch {lp}")
    A(f"{le}:")
    g.stamp(10)
    A("v_max_f32 v24, v20, v22"); g.nop(2)
    g.dpp("v_max_f32", 24, 24, 24, "row_ror:8"); g.nop(1)
    g.xrow("v_max_f32", 24, 25)
    A("v_sub_f32 v20, v20, v24"); A("v_sub_f32 v22, v22, v24")
    A("v_exp_f32 v20, v20"); A("v_exp_f32 v22, v22"); g.nop(1)
    A("v_add_f32 v24, v20, v22")
    A("v_lshlrev_b32 v26, 16, v12"); A("v_and_b32 v27, 0xffff0000, v12"); A("v_lshlrev_b32 v28, 16, v14"); A("v_and_b32 v29, 0xffff0000, v14")
    A("v_lshlrev_b32 v30, 16, v16"); A("v_and_b32 v31, 0xffff0000, v16"); A("v_lshlrev_b32 v32, 16, v18"); A("v_and_b32 v33, 0xffff0000, v18")
    for r in range(4): A(f"v_mul_f32 v{26+r}, v{26+r}, v20")
    for r in range(4): A(f"v_fma_f32 v{26+r}, v{30+r}, v22, v{26+r}")
    g.nop(1)
    for r in (24, 26, 27, 28, 29): g.dpp("v_add_f32", r, r, r, "row_ror:8")
    g.nop(1)
    g.xrow_multi("v_add_f32", [24, 26, 27, 28, 29], [34, 35, 36, 37, 38])
    A("v_rcp_f32 v24, v24"); g.nop(1)
    for r in range(4): A(f"v_mul_f32 v{26+r}, v{26+r}, v24")
    for r in range(4): A(f"v_cvt_pk_bf16_f32 v{26+r}, v{26+r}, v{26+r}")
    A("s_lshl_b32 s72, s86, 7")
    A("v_lshlrev_b32 v8, 4, v1"); A("v_add_u32 v8, s72, v8")
    A("s_mov_b64 exec, 0xff")
    A(f"ds_write_b128 v8, v[26:29] offset:{L_X2U}")
    A("s_mov_b64 exec, -1")
    A("s_cmp_eq_u32 s86, 0"); A("s_cbranch_scc1 L_h2_f0")
    g.lds_signal(L_FLAGX1)
    g.stamp(11)
    A("s_branch L_fin")
    A("L_h2_f0:")
    g.lds_signal(L_FLAGX0)
    g.stamp(11)
    A("s_cmp_ge_u32 s91, 26"); A("s_cbranch_scc1 L_h3_slot16")
    A("s_branch L_fin")

    A("L_a7:")
    A("s_setprio 3")
    A("s_and_b32 s72, s92, 1"); A("s_lshl_b32 s72, s72, 2"); A("s_add_u32 s72, s72, 18"); A("s_lshl_b32 s72, s72, 3"); A("s_lshr_b32 s73, s92, 1"); A("s_add_u32 s72, s72, s73")
    A("v_and_b32 v40, 3, v1"); A("v_lshlrev_b32 v40, 3, v40"); A("v_add_u32 v40, s72, v40")
    g.xt_issue(40, 42)
    g.xt_finish(40, 42, "s81")
    A("s_lshl_b32 s72, s92, 12"); A(f"s_add_u32 s80, s72, {WS_QG}"); A("s_add_u32 s80, s80, s81")
    A("v_lshlrev_b32 v8, 4, v1")
    A("v_lshlrev_b32 v9, 10, v1")
    g.sentinel("0xf", 9, "s80", 1008, 12, SLP_Q, "QS")
    A(f"s_mov_b32 s73, {SPIN_G}")
    lp = g.lab("QP"); le = g.lab("QPE")
    A(f"{lp}:")
    for i in range(4):
        A(f"buffer_load_dwordx4 v[{12+4*i}:{15+4*i}], v8, s[96:99], s80 offen offset:{1024*i} sc1")
    A("s_waitcnt vmcnt(0)")
    A("v_cmp_ne_u32 vcc, s94, v13")
    for r in (15, 17, 19, 21, 23, 25, 27):
        A(f"v_cmp_ne_u32 s[76:77], s94, v{r}"); A("s_or_b64 vcc, vcc, s[76:77]")
    A("s_cmp_eq_u64 vcc, 0"); A(f"s_cbranch_scc1 {le}")
    A("s_sub_u32 s73, s73, 1"); A("s_cmp_eq_u32 s73, 0"); A(f"s_cbranch_scc1 {le}")
    A("s_sleep 4")
    A(f"s_branch {lp}")
    A(f"{le}:")
    g.stamp(9)
    A("v_add_f32 v12, v12, v16"); A("v_add_f32 v14, v14, v18"); A("v_add_f32 v20, v20, v24"); A("v_add_f32 v22, v22, v26")
    A("v_cvt_pk_bf16_f32 v12, v12, v14"); A("v_cvt_pk_bf16_f32 v20, v20, v22")
    A("v_lshlrev_b32 v8, 2, v1")
    A(f"ds_write_b32 v8, v12 offset:{L_QL}")
    A(f"ds_write_b32 v8, v20 offset:{L_QL+256}")
    g.lds_signal(L_FLAGQ)
    g.stamp(10)
    A("s_cmp_ge_u32 s91, 26"); A("s_cbranch_scc0 L_fin")
    A("s_mov_b32 s86, 1"); A("s_branch L_h2")

    A("L_auxD:")
    A("s_mov_b32 s86, 0"); A("s_mov_b32 s84, s95")
    A("s_cmp_ge_u32 s91, 26"); A("s_cbranch_scc1 L_D_O")
    A("s_cmp_ge_u32 s95, 3"); A("s_cbranch_scc1 L_fin")
    A("s_cmp_ge_u32 s91, 22"); A("s_cbranch_scc1 L_D_Q")
    A("s_cmp_ge_u32 s91, 18"); A("s_cbranch_scc1 L_fin")
    g.srd(28, 20, 21, 4608*576*2)
    A("s_mul_i32 s85, s90, 18"); A("s_add_u32 s85, s85, s91")
    A("s_mov_b32 s83, s85")
    A("s_branch L_D_go")
    A("L_D_Q:")
    A("s_sub_u32 s85, s91, 10"); A("s_branch L_D_wo")
    A("L_D_O:")
    A("s_cmp_ge_u32 s95, 6"); A("s_cbranch_scc1 L_fin")
    A("s_cmp_ge_u32 s95, 3"); A("s_cselect_b32 s86, 1, 0"); A("s_mul_i32 s72, s86, 3"); A("s_sub_u32 s84, s95, s72")
    A("s_sub_u32 s85, s91, 26"); A("s_lshl_b32 s85, s85, 1"); A("s_add_u32 s85, s85, s86")
    A("L_D_wo:")
    g.srd(28, 12, 13, 4096*576*2)
    A("s_lshl_b32 s72, s90, 4"); A("s_add_u32 s85, s85, s72")
    A("s_add_u32 s83, s85, 144")
    A("L_D_go:")
    A("s_setprio 0")
    A(f"s_mul_i32 s72, s85, {32*1152}"); A("s_mul_i32 s73, s84, 384"); A("s_add_u32 s82, s72, s73")
    A("v_mul_u32_u24 v5, 1152, v3"); A("v_add_u32 v5, v5, v4"); A("v_add_u32 v5, s82, v5")
    g.lds_wait(L_CNTKVI, 8)
    g.stamp(9)
    A("s_cmp_ge_u32 s91, 26"); A("s_cbranch_scc1 L_D_ldO")
    for dep, lab in ((DD_F, None), (DD_O, "L_D_ldO")):
        if lab: A(f"{lab}:")
        A("s_mov_b32 s77, 0")
        for rg in range(4):
            for sg in range(3):
                b = 76 + 4*(rg*3+sg)
                if rg*3+sg >= dep: A(f"s_waitcnt vmcnt({dep-1})")
                A(f"buffer_load_dwordx4 v[{b}:{b+3}], v5, s[28:31], s77 offen offset:{sg*128} nt")
            if rg < 3: A(f"s_add_u32 s77, s77, {8*1152}")
        if not lab: A("s_branch L_D_ldE")
    A("L_D_ldE:")
    g.stamp(10)
    A("s_setprio 2")
    A("s_cmp_eq_u32 s86, 0"); A("s_cbranch_scc1 L_D_w0")
    g.lds_wait(L_FLAGX1, 1)
    A("s_branch L_D_w1")
    A("L_D_w0:")
    g.lds_wait(L_FLAGX0, 1)
    A("L_D_w1:")
    g.stamp(11)
    A("s_lshl_b32 s72, s86, 7")
    A("v_lshlrev_b32 v5, 2, v3"); A("v_add_u32 v5, s72, v5")
    for rg in range(4):
        A(f"ds_read_b32 v{56+rg}, v5 offset:{L_X2U + 32*rg}")
    for r in range(8, 20): A(f"v_mov_b32 v{r}, 0")
    for rg in range(4):
        at = 68 if rg % 2 == 0 else 44
        A(f"s_waitcnt lgkmcnt({3-rg})")
        for r in range(4):
            A(f"v_and_b32 v{at+r}, v{56+rg}, v{124+r}")
        for sg in range(3):
            b = 76 + 4*(rg*3+sg)
            A(f"s_waitcnt vmcnt({11-(rg*3+sg)})")
            if sg == 0: g.nop(1)
            A(f"v_mfma_f32_16x16x32_bf16 v[{8+4*sg}:{11+4*sg}], v[{at}:{at+3}], v[{b}:{b+3}], v[{8+4*sg}:{11+4*sg}]")
    g.stamp(12)
    A("v_bfe_u32 v20, v1, 3, 1"); A("v_lshrrev_b32 v21, 5, v1")
    A("v_cmp_eq_u32 s[76:77], v20, v21")
    A("v_mul_u32_u24 v20, 768, v21"); A("v_and_b32 v21, 7, v1"); A("v_lshlrev_b32 v21, 5, v21"); A("v_add_u32 v20, v20, v21")
    A("v_bfe_u32 v21, v1, 4, 1"); A("v_lshlrev_b32 v21, 4, v21"); A("v_add_u32 v20, v20, v21")
    A("s_mul_i32 s72, s95, 1536")
    A("v_add_u32 v20, s72, v20")
    A("v_lshlrev_b32 v21, 3, v1"); A("v_add_u32 v21, s72, v21")
    A("s_mov_b64 exec, s[76:77]")
    g.nop(2)
    for sg in range(3):
        A(f"ds_write_b128 v20, v[{8+4*sg}:{11+4*sg}] offset:{L_TB + sg*256}")
    A("s_mov_b64 exec, -1")
    A("s_waitcnt lgkmcnt(0)")
    A(f"ds_read_b64 v[24:25], v21 offset:{L_TB}")
    A(f"ds_read_b64 v[26:27], v21 offset:{L_TB+768}")
    A(f"ds_read_b64 v[28:29], v21 offset:{L_TB+512}")
    A(f"ds_read_b64 v[30:31], v21 offset:{L_TB+768+512}")
    A("s_mul_i32 s72, s83, 4608"); A("s_mul_i32 s73, s84, 1536"); A("s_add_u32 s72, s72, s73"); A(f"s_add_u32 s72, s72, {WS_PG}")
    A("v_lshlrev_b32 v22, 4, v1")
    A("v_mov_b32 v33, s94"); A("v_mov_b32 v35, s94"); A("v_mov_b32 v37, s94"); A("v_mov_b32 v39, s94")
    A("s_waitcnt lgkmcnt(2)")
    A("v_add_f32 v32, v24, v26"); A("v_add_f32 v34, v25, v27")
    A("buffer_store_dwordx4 v[32:35], v22, s[96:99], s72 offen sc1")
    A("s_waitcnt lgkmcnt(0)")
    A("v_add_f32 v36, v28, v30"); A("v_add_f32 v38, v29, v31")
    A("s_mov_b32 exec_hi, 0")
    A("buffer_store_dwordx4 v[36:39], v22, s[96:99], s72 offen offset:1024 sc1")
    A("s_mov_b64 exec, -1")
    g.stamp(13)
    if stamps:
        A("s_waitcnt vmcnt(0)")
        g.stamp(14)
    A("s_branch L_fin")

    A("L_KV:")
    A("s_sub_u32 s95, s3, 4")
    A("s_setprio 1")
    A("s_cmp_lg_u32 s95, 0"); A("s_cbranch_scc1 L_KV_ni")
    A("v_mov_b32 v5, 0"); A("v_lshlrev_b32 v6, 2, v1")
    A("s_mov_b64 exec, 0xffff")
    A("ds_write_b32 v6, v5")
    A("s_mov_b64 exec, -1")
    A("L_KV_ni:")
    g.srd(28, 6, 7, 0x10000000); g.srd(32, 8, 9, 0x10000000)
    A("s_lshl_b32 s76, s92, 24"); A("s_lshl_b32 s77, s93, 16"); A("s_add_u32 s76, s76, s77"); A(f"s_add_u32 s76, s76, {61440*256}")
    A("s_lshl_b32 s77, s95, 13"); A("s_add_u32 s76, s76, s77")
    A("v_bfe_u32 v3, v1, 2, 2"); A("v_lshlrev_b32 v3, 8, v3"); A("v_lshrrev_b32 v4, 4, v1"); A("v_lshlrev_b32 v4, 6, v4"); A("v_add_u32 v3, v3, v4")
    A("v_and_b32 v4, 3, v1"); A("v_lshlrev_b32 v4, 4, v4"); A("v_add_u32 v3, v3, v4"); A("v_add_u32 v3, s76, v3")
    A("v_lshlrev_b32 v4, 4, v1"); A("v_add_u32 v4, s76, v4")
    A("s_movk_i32 s77, 0x1000")
    A("s_waitcnt lgkmcnt(0)")
    A("s_mul_i32 s94, s94, 1664525"); A("s_add_u32 s94, s94, 1013904223")
    A("s_cmp_lg_u32 s95, 1"); A("s_cbranch_scc1 L_KV_nx")
    A("v_mov_b32 v6, s101"); A("v_mov_b32 v7, s94"); A("s_lshl_b32 s72, s2, 3"); A("v_mov_b32 v5, s72")
    A("s_mov_b64 exec, 1")
    A("buffer_store_dwordx2 v[6:7], v5, s[96:99], s100 offen sc1")
    A("s_mov_b64 exec, -1")
    A("L_KV_nx:")
    A("s_barrier")
    g.stamp(2)
    A("s_add_u32 s78, s95, s93")
    for t in range(16):
        tt = t % 8
        A(f"s_add_u32 s77, s78, {tt}"); A("s_and_b32 s77, s77, 7"); A("s_lshl_b32 s77, s77, 10")
        if t >= KVD: A(f"s_waitcnt vmcnt({KVD-1})")
        if t < 8: A(f"buffer_load_dwordx4 v[{8+4*tt}:{11+4*tt}], v3, s[28:31], s77 offen nt")
        else: A(f"buffer_load_dwordx4 v[{40+4*tt}:{43+4*tt}], v4, s[32:35], s77 offen nt")
    g.lds_signal(L_CNTKVI)
    g.stamp(3)
    g.lds_wait(L_FLAGQ, 1)
    g.stamp(4)
    A("s_setprio 2")
    A("v_bfe_u32 v3, v1, 3, 1"); A("v_lshlrev_b32 v3, 8, v3"); A("v_lshrrev_b32 v4, 4, v1"); A("v_lshlrev_b32 v4, 6, v4"); A("v_add_u32 v3, v3, v4")
    A("v_and_b32 v4, 3, v1"); A("v_lshlrev_b32 v4, 4, v4"); A("v_add_u32 v3, v3, v4")
    A(f"ds_read_b128 v[76:79], v3 offset:{L_QL}")
    A("v_bfe_u32 v4, v1, 2, 1"); A("v_cmp_eq_u32 vcc, 0, v4")
    A("s_waitcnt lgkmcnt(0)")
    g.nop(1)
    for r in range(4): A(f"v_cndmask_b32 v{72+r}, 0, v{76+r}, vcc")
    for r in range(4): A(f"v_cndmask_b32 v{76+r}, v{76+r}, 0, vcc")
    g.nop(1)
    for p in range(4):
        A(f"s_waitcnt vmcnt({15-2*p-1})")
        d = 80 + 4*p
        A(f"v_mfma_f32_16x16x32_bf16 v[{d}:{d+3}], v[{8+8*p}:{11+8*p}], v[72:75], 0")
        A(f"v_mfma_f32_16x16x32_bf16 v[{d}:{d+3}], v[{12+8*p}:{15+8*p}], v[76:79], v[{d}:{d+3}]")
    g.stamp(5)
    g.nop(8)
    for p in range(4):
        d = 80 + 4*p
        A(f"v_mov_b32_dpp v{96+p}, v{d} quad_perm:[0,0,0,0] row_mask:0xf bank_mask:0xf")
    for q in range(1, 4):
        for p in range(4):
            d = 80 + 4*p
            g.dpp("v_add_f32", 96+p, d+q, 96+p, f"quad_perm:[{q},{q},{q},{q}]")
    A("v_max3_f32 v116, v96, v97, v98"); A("v_max_f32 v116, v116, v99"); g.nop(2)
    g.dpp("v_max_f32", 116, 116, 116, "row_half_mirror"); g.nop(1)
    g.xrow("v_max_f32", 116, 117)
    c = 128**-0.5 * 1.4426950408889634
    A(f"s_mov_b32 s72, 0x{f32bits(c):08x}")
    A("v_mul_f32 v116, s72, v116")
    for p in range(4): A(f"v_fma_f32 v{96+p}, v{96+p}, s72, -v116")
    for p in range(4): A(f"v_exp_f32 v{96+p}, v{96+p}")
    g.nop(1)
    for p in range(4): A(f"v_cvt_pk_bf16_f32 v{100+p}, v{96+p}, v{96+p}")
    for p in range(4): A(f"v_and_b32 v{96+p}, 0xffff0000, v{100+p}")
    A("v_add_f32 v118, v96, v97"); A("v_add_f32 v119, v98, v99"); A("v_add_f32 v118, v118, v119"); g.nop(2)
    g.dpp("v_add_f32", 118, 118, 118, "row_half_mirror"); g.nop(1)
    g.xrow("v_add_f32", 118, 117)
    for t in range(8):
        p, u = t // 2, t % 2
        at = 104 if t % 2 == 0 else 108
        for r in range(4):
            direct = (r < 2) if u == 0 else (r >= 2)
            if direct: A(f"v_and_b32 v{at+r}, v{100+p}, v{124+r}")
            else: g.dpp("v_and_b32", at+r, 100+p, 124+r, "row_half_mirror")
        A(f"s_waitcnt vmcnt({7-t})")
        g.nop(1)
        cin = "0" if t == 0 else "v[112:115]"
        A(f"v_mfma_f32_16x16x32_bf16 v[112:115], v[{at}:{at+3}], v[{40+4*t}:{43+4*t}], {cin}")
    g.stamp(6)
    A("v_lshrrev_b32 v3, 5, v1"); A("v_lshlrev_b32 v3, 9, v3"); A("v_and_b32 v4, 15, v1"); A("v_lshlrev_b32 v4, 5, v4"); A("v_add_u32 v3, v3, v4")
    A("v_bfe_u32 v4, v1, 4, 1"); A("v_lshlrev_b32 v4, 4, v4"); A("v_add_u32 v3, v3, v4")
    A("s_lshl_b32 s72, s95, 10"); A("v_add_u32 v3, s72, v3")
    A("v_mov_b32 v117, v118")
    A("v_and_b32 v4, 8, v1"); A("s_lshl_b32 s72, s95, 4"); A("v_add_u32 v4, s72, v4")
    A("s_mov_b64 exec, 0x101")
    A(f"ds_write_b64 v4, v[116:117] offset:{L_ML}")
    A("s_mov_b64 exec, -1")
    g.nop(2)
    A(f"ds_write_b128 v3, v[112:115] offset:{L_OK}")
    g.lds_arrive(L_CNTKV)
    A("s_cmp_eq_u32 s72, 7"); A("s_cbranch_scc0 L_KV_done")
    A("s_setprio 3")
    A("v_lshlrev_b32 v3, 4, v1")
    A("v_lshrrev_b32 v4, 5, v1"); A("v_lshlrev_b32 v4, 3, v4")
    for k in range(8):
        A(f"ds_read_b64 v[{8+2*k}:{9+2*k}], v4 offset:{L_ML + 16*k}")
    for k in range(8):
        A(f"ds_read_b128 v[{24+4*k}:{27+4*k}], v3 offset:{L_OK + 1024*k}")
    A("s_waitcnt lgkmcnt(8)")
    A("v_max3_f32 v56, v8, v10, v12"); A("v_max3_f32 v56, v56, v14, v16"); A("v_max3_f32 v56, v56, v18, v20"); A("v_max_f32 v56, v56, v22")
    for k in range(8): A(f"v_sub_f32 v{8+2*k}, v{8+2*k}, v56")
    for k in range(8): A(f"v_exp_f32 v{8+2*k}, v{8+2*k}")
    g.nop(1)
    A("v_mul_f32 v57, v8, v9")
    for k in range(1, 8): A(f"v_fma_f32 v57, v{8+2*k}, v{9+2*k}, v57")
    A("s_waitcnt lgkmcnt(0)")
    for r in range(4): A(f"v_mul_f32 v{60+r}, v{24+r}, v8")
    for k in range(1, 8):
        for r in range(4): A(f"v_fma_f32 v{60+r}, v{24+4*k+r}, v{8+2*k}, v{60+r}")
    A("v_rcp_f32 v58, v57"); A("v_log_f32 v59, v57"); g.nop(1)
    for r in range(4): A(f"v_mul_f32 v{60+r}, v{60+r}, v58")
    A("v_cvt_pk_bf16_f32 v64, v60, v61"); A("v_mov_b32 v65, s94"); A("v_cvt_pk_bf16_f32 v66, v62, v63"); A("v_mov_b32 v67, s94")
    A("v_add_f32 v68, v56, v59"); A("v_mov_b32 v69, s94")
    A("s_lshl_b32 s72, s92, 14"); A("s_lshl_b32 s73, s93, 9"); A("s_add_u32 s72, s72, s73"); A(f"s_add_u32 s72, s72, {WS_AG}")
    A("v_lshrrev_b32 v4, 5, v1"); A("v_lshlrev_b32 v5, 13, v4"); A("v_and_b32 v6, 31, v1"); A("v_lshlrev_b32 v6, 4, v6"); A("v_add_u32 v5, v5, v6")
    A("buffer_store_dwordx4 v[64:67], v5, s[96:99], s72 offen")
    A(f"s_add_u32 s76, s72, {WS_B}")
    A("s_lshl_b32 s72, s92, 8"); A("s_and_b32 s73, s93, 7"); A("s_lshl_b32 s73, s73, 4"); A("s_add_u32 s72, s72, s73")
    A("s_lshr_b32 s73, s93, 3"); A("s_lshl_b32 s73, s73, 3"); A("s_add_u32 s72, s72, s73"); A(f"s_add_u32 s72, s72, {WS_LG}")
    A("v_lshlrev_b32 v6, 7, v4")
    A("s_mov_b32 exec_lo, 1"); A("s_mov_b32 exec_hi, 1")
    A("buffer_store_dwordx2 v[68:69], v6, s[96:99], s72 offen")
    A(f"s_add_u32 s72, s72, {WS_B}")
    A("buffer_store_dwordx2 v[68:69], v6, s[96:99], s72 offen sc1")
    A("s_mov_b64 exec, -1")
    A("buffer_store_dwordx4 v[64:67], v5, s[96:99], s76 offen sc1")
    g.stamp(7)
    if stamps:
        A("s_waitcnt vmcnt(0)")
        g.stamp(8)
    A("L_KV_done:")
    A("s_cmp_ge_u32 s91, 26"); A("s_cbranch_scc1 L_h3_kv")
    A("s_cmp_lt_u32 s91, 18"); A("s_cbranch_scc1 L_fin")
    A("s_cmp_ge_u32 s91, 21"); A("s_cbranch_scc1 L_fin")
    A("L_h3_kv:")
    A("s_mov_b32 s86, s95"); A("s_add_u32 s87, s95, 9")
    A("s_branch L_h3")
    A("L_h3_slot16:")
    A("s_mov_b32 s86, 8"); A("s_mov_b32 s87, 17")
    A("L_h3:")
    A("s_setprio 3")
    A("s_mul_i32 s85, s90, 9")
    A("s_cmp_ge_u32 s91, 26"); A("s_cselect_b32 s72, 26, 12"); A("s_sub_u32 s72, s91, s72"); A("s_add_u32 s85, s85, s72")
    A("s_lshl_b32 s80, s86, 4")
    A("s_cmp_eq_u32 s87, 17"); A("s_cselect_b32 s81, 8, s87"); A("s_lshl_b32 s81, s81, 4")
    A("s_mul_i32 s80, s80, 4608"); A("s_mul_i32 s81, s81, 4608")
    A("s_lshl_b32 s72, s85, 6"); A(f"s_add_u32 s72, s72, {WS_PG}")
    A("s_add_u32 s80, s80, s72"); A("s_add_u32 s81, s81, s72")
    A("v_lshrrev_b32 v8, 2, v1"); A("v_mul_u32_u24 v8, 4608, v8"); A("v_and_b32 v9, 3, v1"); A("v_lshlrev_b32 v9, 4, v9"); A("v_add_u32 v8, v8, v9")
    g.stamp(13)
    if H3SENT:
        A("s_mov_b32 s78, 0"); A("s_mov_b32 s79, 0x80000000")
        g.sentinel("s[78:79]", 8, "s80", 0, 12, SLP_F, "FS")
    A(f"s_mov_b32 s73, {SPIN_G}")
    lp = g.lab("FP"); le = g.lab("FPE")
    A(f"{lp}:")
    A("buffer_load_dwordx4 v[12:15], v8, s[96:99], s80 offen sc1")
    A("buffer_load_dwordx4 v[16:19], v8, s[96:99], s81 offen sc1")
    A("s_waitcnt vmcnt(0)")
    A("v_cmp_ne_u32 vcc, s94, v13")
    for r in (15, 17, 19):
        A(f"v_cmp_ne_u32 s[76:77], s94, v{r}"); A("s_or_b64 vcc, vcc, s[76:77]")
    A("s_cmp_eq_u64 vcc, 0"); A(f"s_cbranch_scc1 {le}")
    A("s_sub_u32 s73, s73, 1"); A("s_cmp_eq_u32 s73, 0"); A(f"s_cbranch_scc1 {le}")
    A("s_mov_b64 exec, vcc")
    A("s_sleep 1")
    A(f"s_branch {lp}")
    A(f"{le}:")
    A("s_mov_b64 exec, -1")
    g.stamp(14)
    for ctrl in ("row_ror:4", "row_ror:8"):
        g.nop(1)
        for r in (12, 14, 16, 18): g.dpp("v_add_f32", r, r, r, ctrl)
    g.nop(1)
    g.xrow_multi("v_add_f32", [12, 14, 16, 18], [20, 21, 22, 23])
    A("v_mov_b32 v13, v14"); A("v_mov_b32 v17, v18")
    A("v_lshlrev_b32 v9, 3, v1")
    A("s_lshl_b32 s72, s86, 5"); A("v_add_u32 v10, s72, v9")
    A("s_lshl_b32 s72, s87, 5"); A("v_add_u32 v11, s72, v9")
    A("s_mov_b64 exec, 0xf")
    A(f"ds_write_b64 v10, v[12:13] offset:{L_H3S}")
    A(f"ds_write_b64 v11, v[16:17] offset:{L_H3S}")
    A("s_mov_b64 exec, -1")
    g.lds_arrive(L_CNTH3)
    A("s_cmp_eq_u32 s72, 8"); A("s_cbranch_scc0 L_fin")
    g.srd(32, 4, 5, 1152)
    A("s_lshl_b32 s72, s85, 4")
    A("v_lshlrev_b32 v9, 1, v1"); A("v_add_u32 v9, s72, v9")
    A("s_mov_b64 exec, 0xff")
    A("buffer_load_ushort v10, v9, s[32:35], 0 offen")
    A("v_lshlrev_b32 v8, 2, v1")
    for sl in range(17):
        A(f"ds_read_b32 v{12+sl}, v8 offset:{L_H3S + 32*sl}")
    A("s_waitcnt lgkmcnt(8)")
    for sl in range(1, 9): A(f"v_add_f32 v12, v12, v{12+sl}")
    A("s_waitcnt lgkmcnt(0)")
    for sl in range(10, 17): A(f"v_add_f32 v21, v21, v{12+sl}")
    g.rne(12); g.rne(21)
    A(f"v_mul_f32 v13, 0x{f32bits(-1.4426950408889634):08x}, v12")
    A("v_exp_f32 v13, v13"); g.nop(1)
    A("v_add_f32 v13, 1.0, v13"); A("v_rcp_f32 v13, v13"); g.nop(1)
    A("v_mul_f32 v13, v13, v12")
    g.rne(13)
    A("v_mul_f32 v13, v13, v21")
    g.rne(13)
    A("s_waitcnt vmcnt(0)")
    A("v_lshlrev_b32 v10, 16, v10")
    A("v_add_f32 v13, v13, v10")
    A("v_cvt_pk_bf16_f32 v13, v13, v13")
    g.srd(28, 22, 23, 1152)
    A("buffer_store_short v13, v9, s[28:31], 0 offen")
    A("s_cmp_lg_u32 s85, 0"); A("s_cbranch_scc1 L_fin_x")
    A("s_mov_b64 exec, 1")
    A("v_mov_b32 v14, s94"); A("v_mov_b32 v15, 0")
    A(f"buffer_store_dword v14, v15, s[96:99], 0 offen offset:{WS_EPOCH} sc1")
    A("L_fin_x:")
    A("s_mov_b64 exec, -1")
    g.stamp(15)
    A("L_fin:")
    if stamps:
        g.stamp(15) if False else None
        A("s_mov_b64 exec, -1")
        A("s_waitcnt lgkmcnt(0)")
        for i in range(16):
            A(f"v_writelane_b32 v8, s{40+2*i}, {i}"); A(f"v_writelane_b32 v9, s{41+2*i}, {i}")
        A("s_lshl_b32 s72, s2, 4"); A("s_add_u32 s72, s72, s3"); A("s_lshl_b32 s72, s72, 7"); A(f"s_add_u32 s72, s72, {WS_STAMP}")
        A("v_lshlrev_b32 v3, 3, v1")
        A("s_mov_b64 exec, 0xffff")
        A("buffer_store_dwordx2 v[8:9], v3, s[96:99], s72 offen")
    A("L_end:"); A("s_endpgm")
    A('.section .rodata,"a"'); A(".p2align 6"); A(f".amdhsa_kernel {NAME}_kernel")
    A("  .amdhsa_next_free_vgpr 128"); A("  .amdhsa_next_free_sgpr 102"); A("  .amdhsa_accum_offset 128")
    A("  .amdhsa_group_segment_fixed_size 0"); A("  .amdhsa_kernarg_size 96"); A("  .amdhsa_user_sgpr_count 2")
    A("  .amdhsa_user_sgpr_kernarg_segment_ptr 1"); A("  .amdhsa_system_sgpr_workgroup_id_x 1")
    A("  .amdhsa_float_denorm_mode_32 3")
    A(".end_amdhsa_kernel")
    return "\n".join(g.L) + "\n"

import struct
def f32bits(x): return struct.unpack("<I", struct.pack("<f", x))[0]

if __name__ == "__main__":
    ap = argparse.ArgumentParser(); ap.add_argument("-o", default="k1.s"); ap.add_argument("--stamps", action="store_true"); ap.add_argument("--kvd", type=int, default=3); ap.add_argument("--ddf", type=int, default=8); ap.add_argument("--ddo", type=int, default=4); ap.add_argument("--h2sent", type=int, default=1); ap.add_argument("--h3sent", type=int, default=1); ap.add_argument("--forceb", type=int, default=0)
    a = ap.parse_args()
    KVD = a.kvd; DD_F = a.ddf; DD_O = a.ddo; H2SENT = a.h2sent; H3SENT = a.h3sent; FORCE_B = a.forceb
    open(a.o, "w").write(gen(a.stamps))
```

```python
import sys, argparse, struct
NAME = "recurrent_scan__sliding_block_cached__swiglu_ffn__decode"
def f32bits(x): return struct.unpack("<I", struct.pack("<f", x))[0]

WS_EPOCH = 0x0
WS_XT = 0x8000
WS_QG = 0x10000
WS_XG = 0x20000
WS_LG = 0x68000
WS_AG = 0x70000
WS_PG = 0xC0000
WS_B = 0x400000
WS_STAMP = 0x800000
L_CNTP1, L_CNTKVI, L_FLAGQ, L_CNTKV, L_FLAGX0, L_FLAGX1, L_CNTH3 = 0, 4, 8, 12, 16, 20, 24
L_XRAW = 0x40
L_QL = 0x500
L_ML = 0x700
L_X2U = 0x780
L_H3S = 0x880
L_P1 = 0x1000
L_OK = 0x3000
L_TB = 0x5000
LDS_BYTES = 0x7600

class P:
    KVD = 3; DD_F = 8; DD_O = 6
    SLP_Q = 2; SLP_X = 4; SLP_H = 1; SLP_F = 1; SLP_L = 1
    XSENT = 1; H3SENT = 0; QSENT = 0
    FORCE_B = 0
    SPIN_G = 40000; SPIN_L = 400000

class G:
    def __init__(self, stamps=False):
        self.L = []; self.stamps = stamps; self.nlab = 0
    def A(self, s): self.L.append(s)
    def lab(self, base="L"):
        self.nlab += 1; return f"{base}_{self.nlab}"
    def srd(self, d, lo, hi, size):
        A = self.A
        A(f"s_mov_b32 s{d}, s{lo}"); A(f"s_mov_b32 s{d+1}, s{hi}"); A(f"s_mov_b32 s{d+2}, {size}"); A(f"s_mov_b32 s{d+3}, 0x20000")
    def stamp(self, i):
        if self.stamps: self.A(f"s_memrealtime s[{40+2*i}:{41+2*i}]")
    def nop(self, n):
        while n > 0:
            k = min(n, 16); self.A(f"s_nop {k-1}"); n -= k
    def lds_wait(self, addr, val, vt=6, vz=7, slp=None):
        A = self.A
        if slp is None: slp = P.SLP_L
        l = self.lab("LW"); e = self.lab("LWE")
        A(f"v_mov_b32 v{vz}, 0")
        A(f"s_mov_b32 s73, {P.SPIN_L}")
        A(f"{l}:")
        A(f"ds_read_b32 v{vt}, v{vz} offset:{addr}")
        A("s_waitcnt lgkmcnt(0)")
        A(f"v_readfirstlane_b32 s72, v{vt}")
        A(f"s_cmp_ge_u32 s72, {val}")
        A(f"s_cbranch_scc1 {e}")
        A("s_sub_u32 s73, s73, 1")
        A("s_cmp_eq_u32 s73, 0")
        A(f"s_cbranch_scc1 {e}")
        if slp: A(f"s_sleep {slp}")
        A(f"s_branch {l}")
        A(f"{e}:")
    def lds_signal(self, addr, vt=6, vz=7):
        A = self.A
        A(f"v_mov_b32 v{vz}, 0"); A(f"v_mov_b32 v{vt}, 1")
        A("s_waitcnt lgkmcnt(0)")
        A("s_mov_b64 s[74:75], exec"); A("s_mov_b64 exec, 1")
        A(f"ds_add_u32 v{vz}, v{vt} offset:{addr}")
        A("s_mov_b64 exec, s[74:75]")
    def lds_arrive(self, addr, vt=6, vz=7):
        A = self.A
        A(f"v_mov_b32 v{vz}, 0"); A(f"v_mov_b32 v{vt}, 1")
        A("s_waitcnt lgkmcnt(0)")
        A("s_mov_b64 s[74:75], exec"); A("s_mov_b64 exec, 1")
        A(f"ds_add_rtn_u32 v{vt}, v{vz}, v{vt} offset:{addr}")
        A("s_waitcnt lgkmcnt(0)")
        A(f"v_readfirstlane_b32 s72, v{vt}")
        A("s_mov_b64 exec, s[74:75]")
    def xrow(self, op, v, t):
        A = self.A
        A(f"v_mov_b32 v{t}, v{v}"); self.nop(2)
        A(f"v_permlane16_swap_b32 v{v}, v{t}"); self.nop(1)
        A(f"{op} v{v}, v{v}, v{t}")
        A(f"v_mov_b32 v{t}, v{v}"); self.nop(2)
        A(f"v_permlane32_swap_b32 v{v}, v{t}"); self.nop(1)
        A(f"{op} v{v}, v{v}, v{t}")
    def xrow_multi(self, op, vs, ts):
        A = self.A
        n = len(vs); assert n >= 3
        for v, t in zip(vs, ts): A(f"v_mov_b32 v{t}, v{v}")
        for v, t in zip(vs, ts): A(f"v_permlane16_swap_b32 v{v}, v{t}")
        self.nop(1)
        for v, t in zip(vs, ts): A(f"{op} v{v}, v{v}, v{t}")
        for v, t in zip(vs, ts): A(f"v_mov_b32 v{t}, v{v}")
        for v, t in zip(vs, ts): A(f"v_permlane32_swap_b32 v{v}, v{t}")
        self.nop(1)
        for v, t in zip(vs, ts): A(f"{op} v{v}, v{v}, v{t}")
    def dpp(self, op, d, s0, s1, ctrl):
        self.A(f"{op}_dpp v{d}, v{s0}, v{s1} {ctrl} row_mask:0xf bank_mask:0xf")
    def wave_sum2(self, v, w, t, u):
        for ctrl in ["quad_perm:[1,0,3,2]", "quad_perm:[2,3,0,1]", "row_half_mirror", "row_mirror"]:
            self.nop(1)
            self.dpp("v_add_f32", v, v, v, ctrl)
            self.dpp("v_add_f32", w, w, w, ctrl)
        A = self.A
        A(f"v_mov_b32 v{t}, v{v}"); A(f"v_mov_b32 v{u}, v{w}"); self.nop(1)
        A(f"v_permlane16_swap_b32 v{v}, v{t}"); A(f"v_permlane16_swap_b32 v{w}, v{u}"); self.nop(1)
        A(f"v_add_f32 v{v}, v{v}, v{t}"); A(f"v_add_f32 v{w}, v{w}, v{u}")
        A(f"v_mov_b32 v{t}, v{v}"); A(f"v_mov_b32 v{u}, v{w}"); self.nop(1)
        A(f"v_permlane32_swap_b32 v{v}, v{t}"); A(f"v_permlane32_swap_b32 v{w}, v{u}"); self.nop(1)
        A(f"v_add_f32 v{v}, v{v}, v{t}"); A(f"v_add_f32 v{w}, v{w}, v{u}")
    def rne(self, v):
        A = self.A
        A(f"v_cvt_pk_bf16_f32 v{v}, v{v}, v{v}")
        A(f"v_and_b32 v{v}, 0xffff0000, v{v}")
    def tagmul(self):
        A = self.A
        A("s_mul_i32 s94, s94, 1664525"); A("s_add_u32 s94, s94, 1013904223")
    def poll(self, loads, tagregs, slp, name, masked=False):
        A = self.A
        lp = self.lab(name); le = self.lab(name + "E")
        A(f"s_mov_b32 s73, {P.SPIN_G}")
        A(f"{lp}:")
        for l in loads: A(l)
        A("s_waitcnt vmcnt(0)")
        A(f"v_cmp_ne_u32 vcc, s94, v{tagregs[0]}")
        for r in tagregs[1:]:
            A(f"v_cmp_ne_u32 s[74:75], s94, v{r}"); A("s_or_b64 vcc, vcc, s[74:75]")
        A("s_cmp_eq_u64 vcc, 0"); A(f"s_cbranch_scc1 {le}")
        A("s_sub_u32 s73, s73, 1"); A("s_cmp_eq_u32 s73, 0"); A(f"s_cbranch_scc1 {le}")
        if masked: A("s_mov_b64 exec, vcc")
        if slp: A(f"s_sleep {slp}")
        A(f"s_branch {lp}")
        A(f"{le}:")
    def xt_check(self, vwg, dst, sdst):
        A = self.A
        A(f"v_lshlrev_b32 v{vwg}, 3, v{vwg}")
        self.poll([f"buffer_load_dwordx2 v[{dst}:{dst+1}], v{vwg}, s[96:99], s100 offen sc1"], [dst+1], 8, "XT")
        A(f"v_cmp_ne_u32 vcc, s101, v{dst}")
        A("s_cmp_eq_u64 vcc, 0")
        A(f"s_cselect_b32 {sdst}, 0, {WS_B}")
        if P.FORCE_B: A(f"s_mov_b32 {sdst}, {WS_B}")
    def silu4(self, src, dst, n=4):
        A = self.A
        for r in range(n): A(f"v_mul_f32 v{dst+r}, 0x{f32bits(-1.4426950408889634):08x}, v{src+r}")
        for r in range(n): A(f"v_exp_f32 v{dst+r}, v{dst+r}")
        if n < 2: self.nop(1)
        for r in range(n): A(f"v_add_f32 v{dst+r}, 1.0, v{dst+r}")
        for r in range(n): A(f"v_rcp_f32 v{dst+r}, v{dst+r}")
        if n < 2: self.nop(1)
        for r in range(n): A(f"v_mul_f32 v{dst+r}, v{dst+r}, v{src+r}")
        for r in range(n): self.rne(dst+r)

def gen(stamps=False):
    g = G(stamps); A = g.A
    A(f"; @launch grid=(256,1,1) block=(1024,1,1) lds={LDS_BYTES}")
    A('.amdgcn_target "amdgcn-amd-amdhsa--gfx950"')
    A(".text"); A(f".globl {NAME}_kernel"); A(".p2align 8"); A(f".type {NAME}_kernel,@function")
    A(f"{NAME}_kernel:")
    g.stamp(0)
    A("s_cmp_ge_u32 s2, 256"); A("s_cbranch_scc1 L_end")
    A("s_load_dwordx16 s[4:19], s[0:1], 0")
    A("s_load_dwordx8 s[20:27], s[0:1], 64")
    A("v_and_b32 v1, 63, v0")
    A("v_lshrrev_b32 v2, 6, v0")
    A("s_and_b32 s90, s2, 7")
    A("v_readfirstlane_b32 s3, v2")
    A("s_lshr_b32 s91, s2, 3")
    A("s_lshl_b32 s92, s90, 1"); A("s_lshr_b32 s72, s91, 4"); A("s_add_u32 s92, s92, s72")
    A("s_and_b32 s93, s91, 15")
    A(f"s_mov_b32 s100, {WS_XT}")
    A("s_getreg_b32 s101, hwreg(HW_REG_XCC_ID)"); A("s_and_b32 s101, s101, 15")
    A("v_and_b32 v2, 1, v1")
    A("v_mov_b32 v3, 0xffff")
    A("v_lshlrev_b32 v2, 4, v2")
    A("v_lshlrev_b32 v3, v2, v3")
    A("v_bfe_u32 v2, v1, 1, 2")
    for t in range(4):
        A(f"v_cmp_eq_u32 vcc, {t}, v2"); g.nop(2)
        A(f"v_cndmask_b32 v{124+t}, 0, v3, vcc")
    if stamps:
        for i in range(1, 16): A(f"s_mov_b64 s[{40+2*i}:{41+2*i}], 0")
    A("s_waitcnt lgkmcnt(0)")
    A(f"s_load_dword s94, s[26:27], {WS_EPOCH}")
    g.srd(96, 26, 27, 0x40000000)
    A("s_cmp_lt_u32 s3, 4"); A("s_cbranch_scc1 L_aux0")
    A("s_cmp_lt_u32 s3, 12"); A("s_cbranch_scc1 L_KV")
    A("s_sub_u32 s95, s3, 8"); A("s_branch L_aux")
    A("L_aux0:"); A("s_mov_b32 s95, s3")
    A("L_aux:")
    A("s_setprio 2")
    A("s_cmp_ge_u32 s95, 6"); A("s_cbranch_scc1 L_aux67")
    A("s_cmp_ge_u32 s91, 26"); A("s_cbranch_scc1 L_auxO")
    g.srd(32, 4, 5, 1152)
    A("v_lshlrev_b32 v5, 4, v1")
    A("buffer_load_dwordx4 v[56:59], v5, s[32:35], 0 offen")
    A("buffer_load_dwordx4 v[60:63], v5, s[32:35], 0 offen offset:1024")
    A("v_lshrrev_b32 v64, 4, v1"); A("v_and_b32 v65, 15, v1"); A("v_lshlrev_b32 v65, 4, v65")
    A("s_cmp_ge_u32 s91, 18"); A("s_cbranch_scc1 L_auxQ")
    A("s_mul_i32 s72, s90, 18"); A("s_add_u32 s72, s72, s91")
    A("s_lshr_b32 s88, s72, 2"); A("s_and_b32 s89, s72, 3")
    A("s_cmp_ge_u32 s95, 3"); A("s_cselect_b32 s73, 3, 0"); A("s_sub_u32 s73, s95, s73")
    A("s_mul_i32 s87, s89, 144"); A("s_mul_i32 s73, s73, 48"); A("s_add_u32 s87, s87, s73")
    A("s_cmp_lt_u32 s95, 3"); A("s_cselect_b32 s28, s16, s18"); A("s_cselect_b32 s29, s17, s19")
    A(f"s_mov_b32 s30, {576*4608*2}"); A("s_mov_b32 s31, 0x20000")
    A("s_mul_i32 s72, s87, 9216"); A("s_lshl_b32 s73, s88, 8"); A("s_add_u32 s72, s72, s73")
    A("v_mul_u32_u24 v5, 9216, v64"); A("v_add_u32 v5, v5, v65"); A("v_add_u32 v5, s72, v5")
    A(f"s_mov_b32 s76, {4*9216}")
    A("s_branch L_p1load")
    A("L_auxQ:")
    A("s_lshl_b32 s72, s90, 3"); A("s_add_u32 s72, s72, s91"); A("s_sub_u32 s72, s72, 18")
    A("s_lshr_b32 s88, s72, 1"); A("s_and_b32 s89, s72, 1")
    A("s_mul_i32 s87, s89, 288"); A("s_mul_i32 s72, s95, 48"); A("s_add_u32 s87, s87, s72")
    g.srd(28, 10, 11, 576*4096*2)
    A("s_lshl_b32 s72, s87, 13"); A("s_lshl_b32 s73, s88, 8"); A("s_add_u32 s72, s72, s73")
    A("v_lshlrev_b32 v5, 13, v64"); A("v_add_u32 v5, v5, v65"); A("v_add_u32 v5, s72, v5")
    A(f"s_mov_b32 s76, {4*8192}")
    A("L_p1load:")
    A("s_mov_b32 s77, 0")
    for t in range(12):
        A(f"buffer_load_dwordx4 v[{8+4*t}:{11+4*t}], v5, s[28:31], s77 offen nt")
        if t < 11: A("s_add_u32 s77, s77, s76")
    g.stamp(1)
    A("s_waitcnt lgkmcnt(0)")
    g.tagmul()
    A("s_barrier")
    g.stamp(2)
    A("s_waitcnt vmcnt(12)")
    A("v_lshlrev_b32 v5, 4, v1")
    A(f"ds_write_b128 v5, v[56:59] offset:{L_XRAW}")
    A("s_mov_b64 exec, 0xff")
    A(f"ds_write_b128 v5, v[60:63] offset:{L_XRAW+1024}")
    A("s_mov_b64 exec, -1")
    A("v_mov_b32 v64, 0"); A("v_mov_b32 v65, 0")
    A("v_mov_b32 v66, 0x3f803f80")
    for r in range(56, 64):
        A(f"v_dot2c_f32_bf16 v64, v{r}, v66")
        A(f"v_dot2c_f32_bf16 v65, v{r}, v{r}")
    A("s_lshl_b32 s72, s87, 1")
    A("v_lshrrev_b32 v5, 4, v1"); A("v_lshlrev_b32 v5, 1, v5"); A("v_add_u32 v5, s72, v5")
    A("s_waitcnt lgkmcnt(0)")
    for t in range(12):
        A(f"ds_read_u16 v{68+t}, v5 offset:{L_XRAW + 8*t}")
    g.wave_sum2(64, 65, 66, 67)
    A(f"s_mov_b32 s72, 0x{f32bits(1.0/576):08x}")
    A("v_mul_f32 v64, s72, v64")
    A("v_mul_f32 v65, s72, v65")
    A("v_fma_f32 v65, -v64, v64, v65")
    A("v_max_f32 v65, 0, v65")
    g.rne(64); g.rne(65)
    A(f"v_add_f32 v65, 0x{f32bits(1e-5):08x}, v65")
    g.rne(65)
    A("v_sqrt_f32 v65, v65"); g.nop(1)
    g.rne(65)
    A("v_rcp_f32 v65, v65")
    A("s_waitcnt lgkmcnt(0)")
    for t in range(12): A(f"v_lshlrev_b32 v{68+t}, 16, v{68+t}")
    for t in range(12): A(f"v_sub_f32 v{68+t}, v{68+t}, v64")
    for t in range(12): A(f"v_cvt_pk_bf16_f32 v{68+t}, v{68+t}, v{68+t}")
    for t in range(12): A(f"v_and_b32 v{68+t}, 0xffff0000, v{68+t}")
    for t in range(12): A(f"v_mul_f32 v{68+t}, v{68+t}, v65")
    for t in range(12): A(f"v_cvt_pk_bf16_f32 v{68+t}, v{68+t}, v{68+t}")
    g.stamp(3)
    for r in range(88, 92): A(f"v_mov_b32 v{r}, 0")
    A("s_lshl_b32 s72, s95, 10")
    A("v_lshlrev_b32 v5, 4, v1"); A("v_add_u32 v5, s72, v5")
    for t in range(12):
        at = 80 if t % 2 == 0 else 84
        for r in range(4):
            A(f"v_and_b32 v{at+r}, v{68+t}, v{124+r}")
        A(f"s_waitcnt vmcnt({11-t})")
        g.nop(1)
        A(f"v_mfma_f32_16x16x32_bf16 v[88:91], v[{at}:{at+3}], v[{8+4*t}:{11+4*t}], v[88:91]")
    g.stamp(4)
    g.nop(8)
    A(f"ds_write_b128 v5, v[88:91] offset:{L_P1}")
    g.lds_signal(L_CNTP1)
    A("s_branch L_auxD")
    A("L_auxO:")
    A("s_waitcnt lgkmcnt(0)")
    g.tagmul()
    A("s_barrier")
    g.stamp(2)
    A("s_branch L_auxD")
    A("L_aux67:")
    A("s_waitcnt lgkmcnt(0)")
    g.tagmul()
    A("s_barrier")
    g.stamp(2)
    A("s_setprio 3")
    A("s_cmp_eq_u32 s95, 7"); A("s_cbranch_scc1 L_a7")
    A("s_cmp_ge_u32 s91, 26"); A("s_cbranch_scc1 L_a6_h2")
    A("s_cmp_lt_u32 s91, 18"); A("s_cbranch_scc1 L_a6_F")

    A("s_lshl_b32 s72, s90, 3"); A("s_add_u32 s72, s72, s91"); A("s_sub_u32 s72, s72, 18")
    A("s_lshr_b32 s88, s72, 1"); A("s_and_b32 s89, s72, 1")
    A("v_bfe_u32 v8, v1, 1, 4"); A("v_and_b32 v9, 1, v1"); A("v_lshlrev_b32 v9, 4, v9"); A("v_add_u32 v8, v8, v9"); A("v_lshlrev_b32 v8, 4, v8")
    A("v_lshrrev_b32 v9, 5, v1"); A("v_mul_u32_u24 v9, 3072, v9"); A("v_add_u32 v8, v8, v9")
    A("s_lshl_b32 s72, s88, 11"); A("s_lshl_b32 s73, s89, 10"); A("s_add_u32 s80, s72, s73"); A(f"s_add_u32 s80, s80, {WS_QG}"); A(f"s_add_u32 s81, s80, {WS_B}")
    A("v_lshlrev_b32 v10, 5, v1")
    A("v_mov_b32 v21, s94"); A("v_mov_b32 v23, s94"); A("v_mov_b32 v25, s94"); A("v_mov_b32 v27, s94")
    g.lds_wait(L_CNTP1, 6)
    g.stamp(5)
    for w in range(3):
        A(f"ds_read_b128 v[{12+4*w if w == 0 else 28+4*w}:{15+4*w if w == 0 else 31+4*w}], v8 offset:{L_P1 + w*1024}")
    A("s_waitcnt lgkmcnt(1)")
    A("v_pk_add_f32 v[12:13], v[12:13], v[32:33]"); A("v_pk_add_f32 v[14:15], v[14:15], v[34:35]")
    A("s_waitcnt lgkmcnt(0)")
    A("v_pk_add_f32 v[12:13], v[12:13], v[36:37]"); A("v_pk_add_f32 v[14:15], v[14:15], v[38:39]")
    g.nop(1)
    for r in range(4): A(f"v_mov_b32 v{16+r}, v{12+r}")
    for r in range(4): A(f"v_permlane32_swap_b32 v{12+r}, v{16+r}")
    g.nop(1)
    A("v_add_f32 v20, v12, v16"); A("v_add_f32 v22, v13, v17"); A("v_add_f32 v24, v14, v18"); A("v_add_f32 v26, v15, v19")
    A("s_mov_b32 exec_hi, 0")
    A("buffer_store_dwordx4 v[20:23], v10, s[96:99], s80 offen")
    A("buffer_store_dwordx4 v[24:27], v10, s[96:99], s80 offen offset:16")
    A("buffer_store_dwordx4 v[20:23], v10, s[96:99], s81 offen sc1")
    A("buffer_store_dwordx4 v[24:27], v10, s[96:99], s81 offen offset:16 sc1")
    A("s_mov_b64 exec, -1")
    g.stamp(6)
    A("s_cmp_ge_u32 s91, 22"); A("s_cbranch_scc1 L_a6_h2")
    A("s_cmp_lt_u32 s91, 21"); A("s_cbranch_scc1 L_h3_slot16")
    A("s_branch L_fin")

    A("L_a6_F:")
    A("s_mul_i32 s72, s90, 18"); A("s_add_u32 s72, s72, s91")
    A("s_lshr_b32 s88, s72, 2"); A("s_and_b32 s89, s72, 3")
    A("v_lshrrev_b32 v10, 4, v1")
    A("s_lshl_b32 s72, s88, 2"); A("v_add_u32 v40, s72, v10")
    A("v_mul_u32_u24 v41, 3641, v40"); A("v_lshrrev_b32 v41, 16, v41")
    A("v_mul_u32_u24 v42, 18, v41"); A("v_sub_u32 v40, v40, v42"); A("v_lshlrev_b32 v40, 3, v40"); A("v_add_u32 v40, v40, v41")
    g.xt_check(40, 42, "s86")
    A("v_lshlrev_b32 v8, 2, v10"); A("v_bfe_u32 v9, v1, 1, 2"); A("v_add_u32 v8, v8, v9"); A("v_and_b32 v9, 1, v1"); A("v_lshlrev_b32 v9, 4, v9"); A("v_add_u32 v8, v8, v9")
    A("v_lshlrev_b32 v8, 4, v8")
    A("v_bfe_u32 v9, v1, 3, 1"); A("v_mul_u32_u24 v9, 3072, v9"); A("v_add_u32 v8, v8, v9")
    A("v_cmp_ne_u32 s[76:77], s89, v10")
    A("v_and_b32 v9, 15, v1"); A("v_lshlrev_b32 v9, 5, v9")
    A("v_lshlrev_b32 v11, 11, v10"); A("v_add_u32 v11, v11, v9")
    A("v_lshlrev_b32 v10, 9, v10"); A("v_add_u32 v9, v10, v9")
    A("s_lshl_b32 s72, s88, 13"); A(f"s_add_u32 s72, s72, {WS_XG}")
    A("s_lshl_b32 s73, s89, 9"); A("s_add_u32 s80, s72, s73"); A(f"s_add_u32 s82, s80, {WS_B}")
    A("s_lshl_b32 s73, s89, 11"); A("s_add_u32 s81, s72, s73"); A("s_add_u32 s81, s81, s86")
    A("v_mov_b32 v21, s94"); A("v_mov_b32 v23, s94"); A("v_mov_b32 v25, s94"); A("v_mov_b32 v27, s94")
    A("s_mov_b32 s78, 0x80008000"); A("s_mov_b32 s79, 0x80008000"); A("s_and_b64 s[78:79], s[78:79], s[76:77]")
    g.lds_wait(L_CNTP1, 6)
    g.stamp(5)
    A(f"ds_read_b128 v[12:15], v8 offset:{L_P1}")
    A(f"ds_read_b128 v[32:35], v8 offset:{L_P1+1024}")
    A(f"ds_read_b128 v[36:39], v8 offset:{L_P1+2048}")
    A("s_waitcnt lgkmcnt(1)")
    A("v_pk_add_f32 v[12:13], v[12:13], v[32:33]"); A("v_pk_add_f32 v[14:15], v[14:15], v[34:35]")
    A("s_waitcnt lgkmcnt(0)")
    A("v_pk_add_f32 v[12:13], v[12:13], v[36:37]"); A("v_pk_add_f32 v[14:15], v[14:15], v[38:39]")
    g.nop(1)
    A("v_mov_b32 v20, v12"); A("v_mov_b32 v22, v13"); A("v_mov_b32 v24, v14"); A("v_mov_b32 v26, v15")
    A("s_mov_b64 exec, s[76:77]")
    A("buffer_store_dwordx4 v[20:23], v11, s[96:99], s80 offen")
    A("buffer_store_dwordx4 v[24:27], v11, s[96:99], s80 offen offset:16")
    A("buffer_store_dwordx4 v[20:23], v11, s[96:99], s82 offen sc1")
    A("buffer_store_dwordx4 v[24:27], v11, s[96:99], s82 offen offset:16 sc1")
    g.stamp(6)
    if P.XSENT:
        A("s_mov_b64 exec, s[78:79]")
        g.poll(["buffer_load_dwordx4 v[28:31], v9, s[96:99], s81 offen offset:16 sc1"], [29, 31], P.SLP_X, "XS")
        A("s_mov_b64 exec, s[76:77]")
    g.poll(["buffer_load_dwordx4 v[28:31], v9, s[96:99], s81 offen sc1", "buffer_load_dwordx4 v[32:35], v9, s[96:99], s81 offen offset:16 sc1"], [29, 31, 33, 35], P.SLP_X, "XP")
    g.stamp(7)
    A("v_mov_b32 v12, v28"); A("v_mov_b32 v13, v30"); A("v_mov_b32 v14, v32"); A("v_mov_b32 v15, v34")
    A("s_mov_b64 exec, -1")
    g.xrow_multi("v_add_f32", [12, 13, 14, 15], [16, 17, 18, 19])
    g.nop(1)
    for r in range(4): A(f"v_mov_b32_dpp v{16+r}, v{12+r} row_ror:8 row_mask:0xf bank_mask:0xf")
    for r in range(4):
        g.rne(12+r); g.rne(16+r)
    g.silu4(12, 20)
    for r in range(4): A(f"v_mul_f32 v{20+r}, v{20+r}, v{16+r}")
    for r in range(4): A(f"v_cvt_pk_bf16_f32 v{20+r}, v{20+r}, v{20+r}")
    A("v_lshlrev_b32 v8, 4, v1")
    A("s_mov_b64 exec, 0xff")
    A(f"ds_write_b128 v8, v[20:23] offset:{L_X2U}")
    A("s_mov_b64 exec, -1")
    g.lds_signal(L_FLAGX0)
    g.stamp(8)
    A("s_branch L_fin")

    A("L_a6_h2:")
    A("s_mov_b32 s86, 0")
    A("L_h2:")
    A("s_cmp_ge_u32 s91, 26"); A("s_cbranch_scc1 L_h2_O")
    A("s_sub_u32 s85, s91, 10"); A("s_branch L_h2_go")
    A("L_h2_O:")
    A("s_sub_u32 s85, s91, 26"); A("s_lshl_b32 s85, s85, 1"); A("s_add_u32 s85, s85, s86")
    A("L_h2_go:")
    A("s_lshl_b32 s72, s90, 4"); A("s_add_u32 s85, s85, s72")
    A("s_lshr_b32 s84, s85, 2"); A("s_and_b32 s83, s85, 3")
    A("s_lshr_b32 s72, s84, 1"); A("s_and_b32 s73, s72, 1"); A("s_lshl_b32 s73, s73, 7"); A("s_lshr_b32 s72, s72, 1"); A("s_add_u32 s72, s72, s73")
    A("v_and_b32 v40, 15, v1"); A("v_lshlrev_b32 v40, 3, v40"); A("v_add_u32 v40, s72, v40")
    g.xt_check(40, 42, "s87")
    A("s_lshl_b32 s72, s84, 13"); A("s_lshl_b32 s73, s83, 7"); A("s_add_u32 s80, s72, s73"); A(f"s_add_u32 s80, s80, {WS_AG}"); A("s_add_u32 s80, s80, s87")
    A("s_add_u32 s81, s80, 4096")
    A("v_lshrrev_b32 v8, 3, v1"); A("v_lshlrev_b32 v9, 9, v8"); A("v_and_b32 v10, 7, v1"); A("v_lshlrev_b32 v10, 4, v10"); A("v_add_u32 v9, v9, v10")
    A("v_lshlrev_b32 v8, 4, v8")
    A("s_lshl_b32 s82, s84, 7"); A(f"s_add_u32 s82, s82, {WS_LG}"); A("s_add_u32 s82, s82, s87")
    A("s_lshl_b32 s72, s86, 7")
    A("v_lshlrev_b32 v11, 4, v1"); A("v_add_u32 v11, s72, v11")
    g.lds_wait(L_CNTKV, 8)
    g.stamp(9)
    g.poll(["buffer_load_dwordx4 v[20:23], v8, s[96:99], s82 offen sc1",
            "buffer_load_dwordx4 v[12:15], v9, s[96:99], s80 offen sc1",
            "buffer_load_dwordx4 v[16:19], v9, s[96:99], s81 offen sc1"], [21, 23, 13, 15, 17, 19], P.SLP_H, "HP")
    g.stamp(10)
    A("v_max_f32 v24, v20, v22")
    A("v_lshlrev_b32 v26, 16, v12"); A("v_and_b32 v27, 0xffff0000, v12")
    g.dpp("v_max_f32", 24, 24, 24, "row_ror:8")
    A("v_lshlrev_b32 v28, 16, v14"); A("v_and_b32 v29, 0xffff0000, v14")
    A("v_mov_b32 v25, v24")
    A("v_lshlrev_b32 v30, 16, v16"); A("v_and_b32 v31, 0xffff0000, v16")
    A("v_permlane16_swap_b32 v24, v25")
    A("v_lshlrev_b32 v32, 16, v18")
    A("v_max_f32 v24, v24, v25")
    A("v_and_b32 v33, 0xffff0000, v18")
    A("v_mov_b32 v25, v24"); g.nop(2)
    A("v_permlane32_swap_b32 v24, v25"); g.nop(1)
    A("v_max_f32 v24, v24, v25")
    A("v_sub_f32 v20, v20, v24"); A("v_sub_f32 v22, v22, v24")
    A("v_exp_f32 v20, v20"); A("v_exp_f32 v22, v22"); g.nop(1)
    A("v_add_f32 v24, v20, v22")
    for r in range(4): A(f"v_mul_f32 v{26+r}, v{26+r}, v20")
    for r in range(4): A(f"v_fma_f32 v{26+r}, v{30+r}, v22, v{26+r}")
    for r in (24, 26, 27, 28, 29): g.dpp("v_add_f32", r, r, r, "row_ror:8")
    g.xrow_multi("v_add_f32", [24, 26, 27, 28, 29], [34, 35, 36, 37, 38])
    A("v_rcp_f32 v24, v24"); g.nop(1)
    for r in range(4): A(f"v_mul_f32 v{26+r}, v{26+r}, v24")
    for r in range(4): A(f"v_cvt_pk_bf16_f32 v{26+r}, v{26+r}, v{26+r}")
    A("s_mov_b64 exec, 0xff")
    A(f"ds_write_b128 v11, v[26:29] offset:{L_X2U}")
    A("s_mov_b64 exec, -1")
    A("s_cmp_eq_u32 s86, 0"); A("s_cbranch_scc1 L_h2_f0")
    g.lds_signal(L_FLAGX1)
    g.stamp(11)
    A("s_branch L_fin")
    A("L_h2_f0:")
    g.lds_signal(L_FLAGX0)
    g.stamp(11)
    A("s_cmp_ge_u32 s91, 26"); A("s_cbranch_scc1 L_h3_slot16")
    A("s_branch L_fin")

    A("L_a7:")
    A("s_and_b32 s72, s92, 1"); A("s_lshl_b32 s72, s72, 2"); A("s_add_u32 s72, s72, 18"); A("s_lshl_b32 s72, s72, 3"); A("s_lshr_b32 s73, s92, 1"); A("s_add_u32 s72, s72, s73")
    A("v_and_b32 v40, 3, v1"); A("v_lshlrev_b32 v40, 3, v40"); A("v_add_u32 v40, s72, v40")
    g.xt_check(40, 42, "s81")
    A("s_lshl_b32 s72, s92, 12"); A(f"s_add_u32 s80, s72, {WS_QG}"); A("s_add_u32 s80, s80, s81")
    A("v_lshlrev_b32 v8, 4, v1"); A("v_lshlrev_b32 v9, 10, v1"); A("v_lshlrev_b32 v10, 2, v1")
    g.stamp(8)
    if P.QSENT:
        A("s_mov_b64 exec, 0xf")
        g.poll(["buffer_load_dwordx4 v[12:15], v9, s[96:99], s80 offen offset:1008 sc1"], [13, 15], P.SLP_Q, "QS")
        A("s_mov_b64 exec, -1")
    g.poll([f"buffer_load_dwordx4 v[{12+4*i}:{15+4*i}], v8, s[96:99], s80 offen offset:{1024*i} sc1" for i in range(4)],
           [13, 15, 17, 19, 21, 23, 25, 27], P.SLP_Q, "QP")
    g.stamp(9)
    A("v_add_f32 v12, v12, v16"); A("v_add_f32 v14, v14, v18"); A("v_add_f32 v20, v20, v24"); A("v_add_f32 v22, v22, v26")
    A("v_cvt_pk_bf16_f32 v12, v12, v14"); A("v_cvt_pk_bf16_f32 v20, v20, v22")
    A(f"ds_write_b32 v10, v12 offset:{L_QL}")
    A(f"ds_write_b32 v10, v20 offset:{L_QL+256}")
    g.lds_signal(L_FLAGQ)
    g.stamp(10)
    A("s_cmp_ge_u32 s91, 26"); A("s_cbranch_scc0 L_fin")
    A("s_mov_b32 s86, 1"); A("s_branch L_h2")

    A("L_auxD:")
    A("s_mov_b32 s86, 0"); A("s_mov_b32 s84, s95")
    A("s_cmp_ge_u32 s91, 26"); A("s_cbranch_scc1 L_D_O")
    A("s_cmp_ge_u32 s95, 3"); A("s_cbranch_scc1 L_fin")
    A("s_cmp_ge_u32 s91, 22"); A("s_cbranch_scc1 L_D_Q")
    A("s_cmp_ge_u32 s91, 18"); A("s_cbranch_scc1 L_fin")
    g.srd(28, 20, 21, 4608*576*2)
    A("s_mul_i32 s85, s90, 18"); A("s_add_u32 s85, s85, s91")
    A("s_mov_b32 s83, s85")
    A("s_branch L_D_go")
    A("L_D_Q:")
    A("s_sub_u32 s85, s91, 10"); A("s_branch L_D_wo")
    A("L_D_O:")
    A("s_cmp_ge_u32 s95, 3"); A("s_cselect_b32 s86, 1, 0"); A("s_mul_i32 s72, s86, 3"); A("s_sub_u32 s84, s95, s72")
    A("s_sub_u32 s85, s91, 26"); A("s_lshl_b32 s85, s85, 1"); A("s_add_u32 s85, s85, s86")
    A("L_D_wo:")
    g.srd(28, 12, 13, 4096*576*2)
    A("s_lshl_b32 s72, s90, 4"); A("s_add_u32 s85, s85, s72")
    A("s_add_u32 s83, s85, 144")
    A("L_D_go:")
    A("s_setprio 0")
    A("v_lshrrev_b32 v3, 4, v1"); A("v_lshlrev_b32 v3, 1, v3"); A("v_bfe_u32 v4, v1, 3, 1"); A("v_add_u32 v3, v3, v4")
    A("v_and_b32 v4, 7, v1"); A("v_lshlrev_b32 v4, 4, v4")
    A(f"s_mul_i32 s72, s85, {32*1152}"); A("s_mul_i32 s73, s84, 384"); A("s_add_u32 s82, s72, s73")
    A("v_mul_u32_u24 v5, 1152, v3"); A("v_add_u32 v5, v5, v4"); A("v_add_u32 v5, s82, v5")
    A("s_lshl_b32 s72, s86, 7"); A("v_lshlrev_b32 v100, 2, v3"); A("v_add_u32 v100, s72, v100")
    A("v_bfe_u32 v101, v1, 3, 1"); A("v_lshrrev_b32 v102, 5, v1")
    A("v_cmp_eq_u32 s[78:79], v101, v102")
    A("v_mul_u32_u24 v101, 768, v102"); A("v_and_b32 v102, 7, v1"); A("v_lshlrev_b32 v102, 5, v102"); A("v_add_u32 v101, v101, v102")
    A("v_bfe_u32 v102, v1, 4, 1"); A("v_lshlrev_b32 v102, 4, v102"); A("v_add_u32 v101, v101, v102")
    A("s_mul_i32 s72, s95, 1536")
    A("v_add_u32 v101, s72, v101")
    A("v_lshlrev_b32 v102, 3, v1"); A("v_add_u32 v102, s72, v102")
    A("s_mul_i32 s72, s83, 4608"); A("s_mul_i32 s73, s84, 1536"); A("s_add_u32 s80, s72, s73"); A(f"s_add_u32 s80, s80, {WS_PG}")
    A("v_lshlrev_b32 v103, 4, v1")
    A("v_mov_b32 v105, s94"); A("v_mov_b32 v107, s94"); A("v_mov_b32 v109, s94"); A("v_mov_b32 v111, s94")
    for r in range(88, 100): A(f"v_mov_b32 v{r}, 0")
    g.lds_wait(L_CNTKVI, 8, slp=2)
    g.stamp(9)
    A("s_cmp_ge_u32 s91, 26"); A("s_cbranch_scc1 L_D_ldO")
    for dep, lab in ((P.DD_F, None), (P.DD_O, "L_D_ldO")):
        if lab: A(f"{lab}:")
        A("s_mov_b32 s77, 0")
        for rg in range(4):
            for sg in range(3):
                b = 8 + 4*(rg*3+sg)
                if rg*3+sg >= dep: A(f"s_waitcnt vmcnt({dep-1})")
                A(f"buffer_load_dwordx4 v[{b}:{b+3}], v5, s[28:31], s77 offen offset:{sg*128} nt")
            if rg < 3: A(f"s_add_u32 s77, s77, {8*1152}")
        if not lab: A("s_branch L_D_ldE")
    A("L_D_ldE:")
    g.stamp(10)
    A("s_setprio 2")
    A("s_cmp_eq_u32 s86, 0"); A("s_cbranch_scc1 L_D_w0")
    g.lds_wait(L_FLAGX1, 1, slp=0)
    A("s_branch L_D_w1")
    A("L_D_w0:")
    g.lds_wait(L_FLAGX0, 1, slp=0)
    A("L_D_w1:")
    g.stamp(11)
    for rg in range(4):
        A(f"ds_read_b32 v{68+rg}, v100 offset:{L_X2U + 32*rg}")
    for rg in range(4):
        at = 80 if rg % 2 == 0 else 84
        A(f"s_waitcnt lgkmcnt({3-rg})")
        for r in range(4):
            A(f"v_and_b32 v{at+r}, v{68+rg}, v{124+r}")
        for sg in range(3):
            b = 8 + 4*(rg*3+sg)
            A(f"s_waitcnt vmcnt({11-(rg*3+sg)})")
            if sg == 0: g.nop(1)
            A(f"v_mfma_f32_16x16x32_bf16 v[{88+4*sg}:{91+4*sg}], v[{at}:{at+3}], v[{b}:{b+3}], v[{88+4*sg}:{91+4*sg}]")
    g.stamp(12)
    A("s_mov_b64 exec, s[78:79]")
    g.nop(5)
    for sg in range(3):
        A(f"ds_write_b128 v101, v[{88+4*sg}:{91+4*sg}] offset:{L_TB + sg*256}")
    A("s_mov_b64 exec, -1")
    A("s_waitcnt lgkmcnt(0)")
    A(f"ds_read_b64 v[24:25], v102 offset:{L_TB}")
    A(f"ds_read_b64 v[26:27], v102 offset:{L_TB+768}")
    A(f"ds_read_b64 v[28:29], v102 offset:{L_TB+512}")
    A(f"ds_read_b64 v[30:31], v102 offset:{L_TB+768+512}")
    A("s_waitcnt lgkmcnt(2)")
    A("v_add_f32 v104, v24, v26"); A("v_add_f32 v106, v25, v27")
    A("buffer_store_dwordx4 v[104:107], v103, s[96:99], s80 offen sc1")
    A("s_waitcnt lgkmcnt(0)")
    A("v_add_f32 v108, v28, v30"); A("v_add_f32 v110, v29, v31")
    A("s_mov_b32 exec_hi, 0")
    A("buffer_store_dwordx4 v[108:111], v103, s[96:99], s80 offen offset:1024 sc1")
    A("s_mov_b64 exec, -1")
    g.stamp(13)
    A("s_branch L_fin")

    A("L_KV:")
    A("s_sub_u32 s95, s3, 4")
    A("s_setprio 1")
    A("s_cmp_lg_u32 s95, 0"); A("s_cbranch_scc1 L_KV_ni")
    A("v_mov_b32 v5, 0"); A("v_lshlrev_b32 v6, 2, v1")
    A("s_mov_b64 exec, 0xffff")
    A("ds_write_b32 v6, v5")
    A("s_mov_b64 exec, -1")
    A("L_KV_ni:")
    g.srd(28, 6, 7, 0x10000000); g.srd(32, 8, 9, 0x10000000)
    A("s_lshl_b32 s76, s92, 24"); A("s_lshl_b32 s77, s93, 16"); A("s_add_u32 s76, s76, s77"); A(f"s_add_u32 s76, s76, {61440*256}")
    A("s_lshl_b32 s77, s95, 13"); A("s_add_u32 s76, s76, s77")
    A("v_bfe_u32 v3, v1, 2, 2"); A("v_lshlrev_b32 v3, 8, v3"); A("v_lshrrev_b32 v4, 4, v1"); A("v_lshlrev_b32 v4, 6, v4"); A("v_add_u32 v3, v3, v4")
    A("v_and_b32 v4, 3, v1"); A("v_lshlrev_b32 v4, 4, v4"); A("v_add_u32 v3, v3, v4"); A("v_add_u32 v3, s76, v3")
    A("v_lshlrev_b32 v4, 4, v1"); A("v_add_u32 v4, s76, v4")
    A("s_waitcnt lgkmcnt(0)")
    g.tagmul()
    A("s_cmp_lg_u32 s95, 1"); A("s_cbranch_scc1 L_KV_nx")
    A("v_mov_b32 v6, s101"); A("v_mov_b32 v7, s94"); A("s_lshl_b32 s72, s2, 3"); A("v_mov_b32 v5, s72")
    A("s_mov_b64 exec, 1")
    A("buffer_store_dwordx2 v[6:7], v5, s[96:99], s100 offen sc1")
    A("s_mov_b64 exec, -1")
    A("L_KV_nx:")
    A("s_barrier")
    g.stamp(2)
    A("s_add_u32 s78, s95, s93")
    for t in range(16):
        tt = t % 8
        A(f"s_add_u32 s77, s78, {tt}"); A("s_and_b32 s77, s77, 7"); A("s_lshl_b32 s77, s77, 10")
        if t >= P.KVD: A(f"s_waitcnt vmcnt({P.KVD-1})")
        if t < 8: A(f"buffer_load_dwordx4 v[{8+4*tt}:{11+4*tt}], v3, s[28:31], s77 offen nt")
        else: A(f"buffer_load_dwordx4 v[{40+4*tt}:{43+4*tt}], v4, s[32:35], s77 offen nt")
    g.lds_signal(L_CNTKVI)
    g.stamp(3)
    A("v_bfe_u32 v3, v1, 3, 1"); A("v_lshlrev_b32 v3, 8, v3"); A("v_lshrrev_b32 v4, 4, v1"); A("v_lshlrev_b32 v4, 6, v4"); A("v_add_u32 v3, v3, v4")
    A("v_and_b32 v4, 3, v1"); A("v_lshlrev_b32 v4, 4, v4"); A("v_add_u32 v3, v3, v4")
    A("v_lshrrev_b32 v120, 5, v1"); A("v_lshlrev_b32 v120, 9, v120"); A("v_and_b32 v4, 15, v1"); A("v_lshlrev_b32 v4, 5, v4"); A("v_add_u32 v120, v120, v4")
    A("v_bfe_u32 v4, v1, 4, 1"); A("v_lshlrev_b32 v4, 4, v4"); A("v_add_u32 v120, v120, v4")
    A("s_lshl_b32 s72, s95, 10"); A("v_add_u32 v120, s72, v120")
    A("v_and_b32 v121, 8, v1"); A("s_lshl_b32 s72, s95, 4"); A("v_add_u32 v121, s72, v121")
    A("v_bfe_u32 v4, v1, 2, 1"); A("v_cmp_eq_u32 s[76:77], 0, v4")
    A("s_lshl_b32 s72, s92, 14"); A("s_lshl_b32 s73, s93, 9"); A("s_add_u32 s80, s72, s73"); A(f"s_add_u32 s80, s80, {WS_AG}"); A(f"s_add_u32 s81, s80, {WS_B}")
    A("s_lshl_b32 s72, s92, 8"); A("s_and_b32 s73, s93, 7"); A("s_lshl_b32 s73, s73, 4"); A("s_add_u32 s72, s72, s73")
    A("s_lshr_b32 s73, s93, 3"); A("s_lshl_b32 s73, s73, 3"); A("s_add_u32 s82, s72, s73"); A(f"s_add_u32 s82, s82, {WS_LG}"); A(f"s_add_u32 s83, s82, {WS_B}")
    g.lds_wait(L_FLAGQ, 1, slp=1)
    g.stamp(4)
    A("s_setprio 2")
    A(f"ds_read_b128 v[76:79], v3 offset:{L_QL}")
    A("s_waitcnt lgkmcnt(0)")
    for r in range(4): A(f"v_cndmask_b32 v{72+r}, 0, v{76+r}, s[76:77]")
    for r in range(4): A(f"v_cndmask_b32 v{76+r}, v{76+r}, 0, s[76:77]")
    g.nop(1)
    for p in range(4):
        A(f"s_waitcnt vmcnt({15-2*p-1})")
        d = 80 + 4*p
        A(f"v_mfma_f32_16x16x32_bf16 v[{d}:{d+3}], v[{8+8*p}:{11+8*p}], v[72:75], 0")
        A(f"v_mfma_f32_16x16x32_bf16 v[{d}:{d+3}], v[{12+8*p}:{15+8*p}], v[76:79], v[{d}:{d+3}]")
    g.stamp(5)
    g.nop(5)
    for p in range(4):
        d = 80 + 4*p
        A(f"v_mov_b32_dpp v{96+p}, v{d} quad_perm:[0,0,0,0] row_mask:0xf bank_mask:0xf")
        if p == 2: g.nop(3)
    for q in range(1, 4):
        for p in range(4):
            d = 80 + 4*p
            g.dpp("v_add_f32", 96+p, d+q, 96+p, f"quad_perm:[{q},{q},{q},{q}]")
    A("v_max3_f32 v116, v96, v97, v98"); A("v_max_f32 v116, v116, v99"); g.nop(2)
    g.dpp("v_max_f32", 116, 116, 116, "row_half_mirror"); g.nop(1)
    g.xrow("v_max_f32", 116, 117)
    c = 128**-0.5 * 1.4426950408889634
    A(f"s_mov_b32 s72, 0x{f32bits(c):08x}")
    A("v_mul_f32 v116, s72, v116")
    for p in range(4): A(f"v_fma_f32 v{96+p}, v{96+p}, s72, -v116")
    for p in range(4): A(f"v_exp_f32 v{96+p}, v{96+p}")
    for p in range(4): A(f"v_cvt_pk_bf16_f32 v{100+p}, v{96+p}, v{96+p}")
    for p in range(4): A(f"v_and_b32 v{96+p}, 0xffff0000, v{100+p}")
    for t in range(8):
        p, u = t // 2, t % 2
        at = 104 if t % 2 == 0 else 108
        for r in range(4):
            direct = (r < 2) if u == 0 else (r >= 2)
            if direct: A(f"v_and_b32 v{at+r}, v{100+p}, v{124+r}")
            else: g.dpp("v_and_b32", at+r, 100+p, 124+r, "row_half_mirror")
        if t == 0:
            A("v_add_f32 v118, v96, v97"); A("v_add_f32 v119, v98, v99"); A("v_add_f32 v118, v118, v119")
        if t == 1:
            g.dpp("v_add_f32", 118, 118, 118, "row_half_mirror")
        if t == 2:
            A("v_mov_b32 v117, v118")
        if t == 3:
            A("v_permlane16_swap_b32 v118, v117")
        if t == 4:
            A("v_add_f32 v118, v118, v117"); A("v_mov_b32 v117, v118")
        if t == 5:
            A("v_permlane32_swap_b32 v118, v117")
        if t == 6:
            A("v_add_f32 v117, v118, v117")
        A(f"s_waitcnt vmcnt({7-t})")
        g.nop(1)
        cin = "0" if t == 0 else "v[112:115]"
        A(f"v_mfma_f32_16x16x32_bf16 v[112:115], v[{at}:{at+3}], v[{40+4*t}:{43+4*t}], {cin}")
    g.stamp(6)
    A("s_mov_b64 exec, 0x101")
    A(f"ds_write_b64 v121, v[116:117] offset:{L_ML}")
    A("s_mov_b64 exec, -1")
    A("v_lshlrev_b32 v3, 4, v1")
    A("v_lshrrev_b32 v4, 5, v1"); A("v_lshlrev_b32 v122, 3, v4")
    A("v_lshlrev_b32 v5, 13, v4"); A("v_and_b32 v123, 31, v1"); A("v_lshlrev_b32 v123, 4, v123"); A("v_add_u32 v5, v5, v123")
    A("v_lshlrev_b32 v123, 7, v4")
    A(f"ds_write_b128 v120, v[112:115] offset:{L_OK}")
    g.lds_arrive(L_CNTKV)
    A("s_cmp_eq_u32 s72, 7"); A("s_cbranch_scc0 L_KV_done")
    A("s_setprio 3")
    for k in range(8):
        A(f"ds_read_b64 v[{8+2*k}:{9+2*k}], v122 offset:{L_ML + 16*k}")
    for k in range(7):
        A(f"ds_read_b128 v[{24+4*k}:{27+4*k}], v3 offset:{L_OK + 1024*k}")
    A("s_waitcnt lgkmcnt(7)")
    A(f"ds_read_b128 v[52:55], v3 offset:{L_OK + 1024*7}")
    A("v_max3_f32 v56, v8, v10, v12"); A("v_max3_f32 v57, v14, v16, v18"); A("v_max3_f32 v56, v56, v20, v22"); A("v_max_f32 v56, v56, v57")
    for k in range(8): A(f"v_sub_f32 v{8+2*k}, v{8+2*k}, v56")
    for k in range(8): A(f"v_exp_f32 v{8+2*k}, v{8+2*k}")
    A("v_mov_b32 v65, s94"); A("v_mov_b32 v67, s94"); A("v_mov_b32 v69, s94")
    A("v_mul_f32 v57, v8, v9")
    for k in range(1, 8): A(f"v_fma_f32 v57, v{8+2*k}, v{9+2*k}, v57")
    A("v_rcp_f32 v58, v57"); A("v_log_f32 v59, v57")
    A("s_waitcnt lgkmcnt(0)")
    for r in range(4): A(f"v_mul_f32 v{60+r}, v{24+r}, v8")
    for k in range(1, 8):
        for r in range(4): A(f"v_fma_f32 v{60+r}, v{24+4*k+r}, v{8+2*k}, v{60+r}")
    for r in range(4): A(f"v_mul_f32 v{60+r}, v{60+r}, v58")
    A("v_add_f32 v68, v56, v59")
    A("v_cvt_pk_bf16_f32 v64, v60, v61"); A("v_cvt_pk_bf16_f32 v66, v62, v63")
    A("buffer_store_dwordx4 v[64:67], v5, s[96:99], s80 offen")
    A("s_mov_b32 exec_lo, 1"); A("s_mov_b32 exec_hi, 1")
    A("buffer_store_dwordx2 v[68:69], v123, s[96:99], s82 offen")
    A("buffer_store_dwordx2 v[68:69], v123, s[96:99], s83 offen sc1")
    A("s_mov_b64 exec, -1")
    A("buffer_store_dwordx4 v[64:67], v5, s[96:99], s81 offen sc1")
    g.stamp(7)
    A("L_KV_done:")
    A("s_cmp_ge_u32 s91, 26"); A("s_cbranch_scc1 L_h3_kv")
    A("s_cmp_lt_u32 s91, 18"); A("s_cbranch_scc1 L_fin")
    A("s_cmp_ge_u32 s91, 21"); A("s_cbranch_scc1 L_fin")
    A("L_h3_kv:")
    A("s_mov_b32 s86, s95"); A("s_add_u32 s87, s95, 9")
    A("s_branch L_h3")
    A("L_h3_slot16:")
    A("s_mov_b32 s86, 8"); A("s_mov_b32 s87, 17")
    A("L_h3:")
    A("s_setprio 3")
    A("s_mul_i32 s85, s90, 9")
    A("s_cmp_ge_u32 s91, 26"); A("s_cselect_b32 s72, 26, 12"); A("s_sub_u32 s72, s91, s72"); A("s_add_u32 s85, s85, s72")
    A("s_lshl_b32 s80, s86, 4")
    A("s_cmp_eq_u32 s87, 17"); A("s_cselect_b32 s81, 8, s87"); A("s_lshl_b32 s81, s81, 4")
    A("s_mul_i32 s80, s80, 4608"); A("s_mul_i32 s81, s81, 4608")
    A("s_lshl_b32 s72, s85, 6"); A(f"s_add_u32 s72, s72, {WS_PG}")
    A("s_add_u32 s80, s80, s72"); A("s_add_u32 s81, s81, s72")
    A("v_lshrrev_b32 v8, 2, v1"); A("v_mul_u32_u24 v8, 4608, v8"); A("v_and_b32 v9, 3, v1"); A("v_lshlrev_b32 v9, 4, v9"); A("v_add_u32 v8, v8, v9")
    A("v_lshlrev_b32 v9, 3, v1")
    A("s_lshl_b32 s72, s86, 5"); A("v_add_u32 v10, s72, v9")
    A("s_lshl_b32 s72, s87, 5"); A("v_add_u32 v11, s72, v9")
    g.srd(32, 4, 5, 1152)
    g.srd(28, 22, 23, 1152)
    A("s_lshl_b32 s72, s85, 4")
    A("v_lshlrev_b32 v30, 1, v1"); A("v_add_u32 v30, s72, v30")
    A("v_lshlrev_b32 v31, 2, v1")
    A("s_mov_b64 exec, 0xff")
    A("buffer_load_ushort v32, v30, s[32:35], 0 offen")
    A("s_mov_b64 exec, -1")
    g.stamp(13)
    if P.H3SENT:
        A("s_mov_b32 exec_lo, 0"); A("s_mov_b32 exec_hi, 0x80000000")
        g.poll(["buffer_load_dwordx4 v[12:15], v8, s[96:99], s80 offen sc1"], [13, 15], 2, "FS")
        A("s_mov_b64 exec, -1")
    g.poll(["buffer_load_dwordx4 v[12:15], v8, s[96:99], s80 offen sc1", "buffer_load_dwordx4 v[16:19], v8, s[96:99], s81 offen sc1"],
           [13, 15, 17, 19], P.SLP_F, "FP", masked=True)
    A("s_mov_b64 exec, -1")
    g.stamp(14)
    for ctrl in ("row_ror:4", "row_ror:8"):
        g.nop(1)
        for r in (12, 14, 16, 18): g.dpp("v_add_f32", r, r, r, ctrl)
    g.xrow_multi("v_add_f32", [12, 14, 16, 18], [20, 21, 22, 23])
    A("v_mov_b32 v13, v14"); A("v_mov_b32 v17, v18")
    A("s_mov_b64 exec, 0xf")
    A(f"ds_write_b64 v10, v[12:13] offset:{L_H3S}")
    A(f"ds_write_b64 v11, v[16:17] offset:{L_H3S}")
    A("s_mov_b64 exec, -1")
    g.lds_arrive(L_CNTH3)
    A("s_cmp_eq_u32 s72, 8"); A("s_cbranch_scc0 L_fin")
    A("s_mov_b64 exec, 0xff")
    for sl in range(15):
        A(f"ds_read_b32 v{12+sl}, v31 offset:{L_H3S + 32*sl}")
    A("s_waitcnt lgkmcnt(6)")
    for sl in (15, 16): A(f"ds_read_b32 v{40+sl}, v31 offset:{L_H3S + 32*sl}")
    A("v_add_f32 v12, v12, v13"); A("v_add_f32 v14, v14, v15"); A("v_add_f32 v16, v16, v17"); A("v_add_f32 v18, v18, v19")
    A("v_add_f32 v12, v12, v14"); A("v_add_f32 v16, v16, v18"); A("v_add_f32 v12, v12, v20"); A("v_add_f32 v12, v12, v16")
    g.rne(12)
    g.silu4(12, 13, n=1)
    A("s_waitcnt lgkmcnt(0)")
    A("v_add_f32 v21, v21, v22"); A("v_add_f32 v23, v23, v24"); A("v_add_f32 v25, v25, v26"); A("v_add_f32 v55, v55, v56")
    A("v_add_f32 v21, v21, v23"); A("v_add_f32 v25, v25, v55"); A("v_add_f32 v21, v21, v25")
    g.rne(21)
    A("v_mul_f32 v13, v13, v21")
    g.rne(13)
    A("v_lshlrev_b32 v32, 16, v32")
    A("v_add_f32 v13, v13, v32")
    A("v_cvt_pk_bf16_f32 v13, v13, v13")
    A("buffer_store_short v13, v30, s[28:31], 0 offen")
    A("s_cmp_lg_u32 s85, 0"); A("s_cbranch_scc1 L_fin_x")
    A("s_mov_b64 exec, 1")
    A("v_mov_b32 v14, s94"); A("v_mov_b32 v15, 0")
    A(f"buffer_store_dword v14, v15, s[96:99], 0 offen offset:{WS_EPOCH} sc1")
    A("L_fin_x:")
    A("s_mov_b64 exec, -1")
    g.stamp(15)
    A("L_fin:")
    if stamps:
        A("s_mov_b64 exec, -1")
        A("s_waitcnt lgkmcnt(0)")
        for i in range(16):
            A(f"v_writelane_b32 v8, s{40+2*i}, {i}"); A(f"v_writelane_b32 v9, s{41+2*i}, {i}")
        A("s_lshl_b32 s72, s2, 4"); A("s_add_u32 s72, s72, s3"); A("s_lshl_b32 s72, s72, 7"); A(f"s_add_u32 s72, s72, {WS_STAMP}")
        A("v_lshlrev_b32 v3, 3, v1")
        A("s_mov_b64 exec, 0xffff")
        A("buffer_store_dwordx2 v[8:9], v3, s[96:99], s72 offen")
    A("L_end:"); A("s_endpgm")
    A('.section .rodata,"a"'); A(".p2align 6"); A(f".amdhsa_kernel {NAME}_kernel")
    A("  .amdhsa_next_free_vgpr 128"); A("  .amdhsa_next_free_sgpr 102"); A("  .amdhsa_accum_offset 128")
    A("  .amdhsa_group_segment_fixed_size 0"); A("  .amdhsa_kernarg_size 96"); A("  .amdhsa_user_sgpr_count 2")
    A("  .amdhsa_user_sgpr_kernarg_segment_ptr 1"); A("  .amdhsa_system_sgpr_workgroup_id_x 1")
    A("  .amdhsa_float_denorm_mode_32 3")
    A(".end_amdhsa_kernel")
    return "\n".join(g.L) + "\n"

if __name__ == "__main__":
    ap = argparse.ArgumentParser(); ap.add_argument("-o", default="k6.s"); ap.add_argument("--stamps", action="store_true")
    ap.add_argument("--set", action="append", default=[])
    a = ap.parse_args()
    for kv in a.set:
        k, v = kv.split("="); setattr(P, k, int(v, 0))
    open(a.o, "w").write(gen(a.stamps))
```

```python
import sys, argparse, struct
NAME = "recurrent_scan__sliding_block_cached__swiglu_ffn__decode"
def f32bits(x): return struct.unpack("<I", struct.pack("<f", x))[0]

WS_EPOCH = 0x0
WS_XT = 0x8000
WS_QG = 0x10000
WS_XG = 0x20000
WS_LG = 0x68000
WS_AG = 0x70000
WS_PG = 0xC0000
WS_B = 0x400000
WS_STAMP = 0x800000
L_CNTP1, L_CNTKVI, L_FLAGQ, L_CNTKV, L_FLAGX0, L_FLAGX1, L_CNTH3, L_FLAGPUB, L_FLAGQP, L_CNTP1I = 0, 4, 8, 12, 16, 20, 24, 28, 32, 36
L_XRAW = 0x40
L_QL = 0x500
L_ML = 0x700
L_X2U = 0x780
L_H3S = 0x880
L_P1 = 0x1000
L_OK = 0x3000
L_TB = 0x5000
LDS_BYTES = 0x7600

class P:
    KVD = 5; DD_F = 12; DD_O = 6
    SLP_Q = 2; SLP_X = 4; SLP_H = 1; SLP_F = 1; SLP_L = 1
    XSENT = 1; H3SENT = 0; QSENT = 0
    FORCE_B = 0; P1D_F = 3; QGATE = 0; EARLYB = 0; NG_F = 6; NG_Q = 6; NF_LO = 20; NF_HI = 16; FGATE = 1; FGIDX = 18; KVIN = 8
    SPIN_G = 40000; SPIN_L = 400000

class G:
    def __init__(self, stamps=False):
        self.L = []; self.stamps = stamps; self.nlab = 0
    def A(self, s): self.L.append(s)
    def lab(self, base="L"):
        self.nlab += 1; return f"{base}_{self.nlab}"
    def srd(self, d, lo, hi, size):
        A = self.A
        A(f"s_mov_b32 s{d}, s{lo}"); A(f"s_mov_b32 s{d+1}, s{hi}"); A(f"s_mov_b32 s{d+2}, {size}"); A(f"s_mov_b32 s{d+3}, 0x20000")
    def stamp(self, i):
        if self.stamps: self.A(f"s_memrealtime s[{40+2*i}:{41+2*i}]")
    def nop(self, n):
        while n > 0:
            k = min(n, 16); self.A(f"s_nop {k-1}"); n -= k
    def lds_wait(self, addr, val, vt=6, vz=7, slp=None):
        A = self.A
        if slp is None: slp = P.SLP_L
        l = self.lab("LW"); e = self.lab("LWE")
        A(f"v_mov_b32 v{vz}, 0")
        A(f"s_mov_b32 s73, {P.SPIN_L}")
        A(f"{l}:")
        A(f"ds_read_b32 v{vt}, v{vz} offset:{addr}")
        A("s_waitcnt lgkmcnt(0)")
        A(f"v_readfirstlane_b32 s72, v{vt}")
        A(f"s_cmp_ge_u32 s72, {val}")
        A(f"s_cbranch_scc1 {e}")
        A("s_sub_u32 s73, s73, 1")
        A("s_cmp_eq_u32 s73, 0")
        A(f"s_cbranch_scc1 {e}")
        if slp: A(f"s_sleep {slp}")
        A(f"s_branch {l}")
        A(f"{e}:")
    def lds_signal(self, addr, vt=6, vz=7):
        A = self.A
        A(f"v_mov_b32 v{vz}, 0"); A(f"v_mov_b32 v{vt}, 1")
        A("s_waitcnt lgkmcnt(0)")
        A("s_mov_b64 s[74:75], exec"); A("s_mov_b64 exec, 1")
        A(f"ds_add_u32 v{vz}, v{vt} offset:{addr}")
        A("s_mov_b64 exec, s[74:75]")
    def lds_arrive(self, addr, vt=6, vz=7):
        A = self.A
        A(f"v_mov_b32 v{vz}, 0"); A(f"v_mov_b32 v{vt}, 1")
        A("s_waitcnt lgkmcnt(0)")
        A("s_mov_b64 s[74:75], exec"); A("s_mov_b64 exec, 1")
        A(f"ds_add_rtn_u32 v{vt}, v{vz}, v{vt} offset:{addr}")
        A("s_waitcnt lgkmcnt(0)")
        A(f"v_readfirstlane_b32 s72, v{vt}")
        A("s_mov_b64 exec, s[74:75]")
    def xrow(self, op, v, t):
        A = self.A
        A(f"v_mov_b32 v{t}, v{v}"); self.nop(2)
        A(f"v_permlane16_swap_b32 v{v}, v{t}"); self.nop(1)
        A(f"{op} v{v}, v{v}, v{t}")
        A(f"v_mov_b32 v{t}, v{v}"); self.nop(2)
        A(f"v_permlane32_swap_b32 v{v}, v{t}"); self.nop(1)
        A(f"{op} v{v}, v{v}, v{t}")
    def xrow_multi(self, op, vs, ts):
        A = self.A
        n = len(vs); assert n >= 3
        for v, t in zip(vs, ts): A(f"v_mov_b32 v{t}, v{v}")
        for v, t in zip(vs, ts): A(f"v_permlane16_swap_b32 v{v}, v{t}")
        self.nop(1)
        for v, t in zip(vs, ts): A(f"{op} v{v}, v{v}, v{t}")
        for v, t in zip(vs, ts): A(f"v_mov_b32 v{t}, v{v}")
        for v, t in zip(vs, ts): A(f"v_permlane32_swap_b32 v{v}, v{t}")
        self.nop(1)
        for v, t in zip(vs, ts): A(f"{op} v{v}, v{v}, v{t}")
    def dpp(self, op, d, s0, s1, ctrl):
        self.A(f"{op}_dpp v{d}, v{s0}, v{s1} {ctrl} row_mask:0xf bank_mask:0xf")
    def wave_sum2(self, v, w, t, u):
        for ctrl in ["quad_perm:[1,0,3,2]", "quad_perm:[2,3,0,1]", "row_half_mirror", "row_mirror"]:
            self.nop(1)
            self.dpp("v_add_f32", v, v, v, ctrl)
            self.dpp("v_add_f32", w, w, w, ctrl)
        A = self.A
        A(f"v_mov_b32 v{t}, v{v}"); A(f"v_mov_b32 v{u}, v{w}"); self.nop(1)
        A(f"v_permlane16_swap_b32 v{v}, v{t}"); A(f"v_permlane16_swap_b32 v{w}, v{u}"); self.nop(1)
        A(f"v_add_f32 v{v}, v{v}, v{t}"); A(f"v_add_f32 v{w}, v{w}, v{u}")
        A(f"v_mov_b32 v{t}, v{v}"); A(f"v_mov_b32 v{u}, v{w}"); self.nop(1)
        A(f"v_permlane32_swap_b32 v{v}, v{t}"); A(f"v_permlane32_swap_b32 v{w}, v{u}"); self.nop(1)
        A(f"v_add_f32 v{v}, v{v}, v{t}"); A(f"v_add_f32 v{w}, v{w}, v{u}")
    def rne(self, v):
        A = self.A
        A(f"v_cvt_pk_bf16_f32 v{v}, v{v}, v{v}")
        A(f"v_and_b32 v{v}, 0xffff0000, v{v}")
    def tagmul(self):
        A = self.A
        A("s_mul_i32 s94, s94, 1664525"); A("s_add_u32 s94, s94, 1013904223")
    def poll(self, loads, tagregs, slp, name, masked=False):
        A = self.A
        lp = self.lab(name); le = self.lab(name + "E")
        A(f"s_mov_b32 s73, {P.SPIN_G}")
        A(f"{lp}:")
        for l in loads: A(l)
        A("s_waitcnt vmcnt(0)")
        A(f"v_cmp_ne_u32 vcc, s94, v{tagregs[0]}")
        for r in tagregs[1:]:
            A(f"v_cmp_ne_u32 s[74:75], s94, v{r}"); A("s_or_b64 vcc, vcc, s[74:75]")
        A("s_cmp_eq_u64 vcc, 0"); A(f"s_cbranch_scc1 {le}")
        A("s_sub_u32 s73, s73, 1"); A("s_cmp_eq_u32 s73, 0"); A(f"s_cbranch_scc1 {le}")
        if masked: A("s_mov_b64 exec, vcc")
        if slp: A(f"s_sleep {slp}")
        A(f"s_branch {lp}")
        A(f"{le}:")
    def xt_check(self, vwg, dst, sdst):
        A = self.A
        A(f"v_lshlrev_b32 v{vwg}, 3, v{vwg}")
        self.poll([f"buffer_load_dwordx2 v[{dst}:{dst+1}], v{vwg}, s[96:99], s100 offen sc1"], [dst+1], 8, "XT")
        A(f"v_cmp_ne_u32 vcc, s101, v{dst}")
        A("s_cmp_eq_u64 vcc, 0")
        A(f"s_cselect_b32 {sdst}, 0, {WS_B}")
        if P.FORCE_B: A(f"s_mov_b32 {sdst}, {WS_B}")
    def silu4(self, src, dst, n=4):
        A = self.A
        for r in range(n): A(f"v_mul_f32 v{dst+r}, 0x{f32bits(-1.4426950408889634):08x}, v{src+r}")
        for r in range(n): A(f"v_exp_f32 v{dst+r}, v{dst+r}")
        if n < 2: self.nop(1)
        for r in range(n): A(f"v_add_f32 v{dst+r}, 1.0, v{dst+r}")
        for r in range(n): A(f"v_rcp_f32 v{dst+r}, v{dst+r}")
        if n < 2: self.nop(1)
        for r in range(n): A(f"v_mul_f32 v{dst+r}, v{dst+r}, v{src+r}")
        for r in range(n): self.rne(dst+r)

def gen(stamps=False):
    g = G(stamps); A = g.A
    A(f"; @launch grid=(256,1,1) block=(1024,1,1) lds={LDS_BYTES}")
    A('.amdgcn_target "amdgcn-amd-amdhsa--gfx950"')
    A(".text"); A(f".globl {NAME}_kernel"); A(".p2align 8"); A(f".type {NAME}_kernel,@function")
    A(f"{NAME}_kernel:")
    g.stamp(0)
    A("s_cmp_ge_u32 s2, 256"); A("s_cbranch_scc1 L_end")
    A("s_load_dwordx16 s[4:19], s[0:1], 0")
    A("s_load_dwordx8 s[20:27], s[0:1], 64")
    A("v_and_b32 v1, 63, v0")
    A("v_lshrrev_b32 v2, 6, v0")
    A("s_and_b32 s90, s2, 7")
    A("v_readfirstlane_b32 s3, v2")
    A("s_lshr_b32 s91, s2, 3")
    A("s_lshl_b32 s92, s90, 1"); A("s_lshr_b32 s72, s91, 4"); A("s_add_u32 s92, s92, s72")
    A("s_and_b32 s93, s91, 15")
    A("s_cmp_lt_u32 s90, 4")
    A(f"s_cselect_b32 s38, {P.NF_LO}, {P.NF_HI}")
    A(f"s_mul_i32 s72, s90, {P.NF_LO}"); A(f"s_mul_i32 s73, s90, {P.NF_HI}"); A(f"s_add_u32 s73, s73, {4*(P.NF_LO-P.NF_HI)}")
    A("s_cmp_lt_u32 s90, 4")
    A("s_cselect_b32 s39, s72, s73")
    A("s_mov_b32 s36, 0"); A("s_mov_b32 s37, s91")
    A("s_cmp_lt_u32 s91, s38"); A("s_cbranch_scc1 L_typed")
    A("s_mov_b32 s36, 1"); A("s_sub_u32 s37, s91, s38")
    A("s_cmp_lt_u32 s37, 8"); A("s_cbranch_scc1 L_typed")
    A("s_mov_b32 s36, 2"); A("s_sub_u32 s37, s37, 8")
    A("L_typed:")
    A(f"s_mov_b32 s100, {WS_XT}")
    A("s_getreg_b32 s101, hwreg(HW_REG_XCC_ID)"); A("s_and_b32 s101, s101, 15")
    A("v_and_b32 v2, 1, v1")
    A("v_mov_b32 v3, 0xffff")
    A("v_lshlrev_b32 v2, 4, v2")
    A("v_lshlrev_b32 v3, v2, v3")
    A("v_bfe_u32 v2, v1, 1, 2")
    for t in range(4):
        A(f"v_cmp_eq_u32 vcc, {t}, v2"); g.nop(2)
        A(f"v_cndmask_b32 v{124+t}, 0, v3, vcc")
    if stamps:
        for i in range(1, 16): A(f"s_mov_b64 s[{40+2*i}:{41+2*i}], 0")
    A("s_waitcnt lgkmcnt(0)")
    A(f"s_load_dword s94, s[26:27], {WS_EPOCH}")
    g.srd(96, 26, 27, 0x40000000)
    A("s_cmp_lt_u32 s3, 4"); A("s_cbranch_scc1 L_aux0")
    A("s_cmp_lt_u32 s3, 12"); A("s_cbranch_scc1 L_KV")
    A("s_sub_u32 s95, s3, 8"); A("s_branch L_aux")
    A("L_aux0:"); A("s_mov_b32 s95, s3")
    A("L_aux:")
    A("s_setprio 2")
    A("s_cmp_ge_u32 s95, 6"); A("s_cbranch_scc1 L_aux67")
    A("s_cmp_eq_u32 s36, 2"); A("s_cbranch_scc1 L_auxO")
    g.srd(32, 4, 5, 1152)
    A("v_lshlrev_b32 v5, 4, v1")
    A("buffer_load_dwordx4 v[56:59], v5, s[32:35], 0 offen")
    A("buffer_load_dwordx4 v[60:63], v5, s[32:35], 0 offen offset:1024")
    A("v_lshrrev_b32 v64, 4, v1"); A("v_and_b32 v65, 15, v1"); A("v_lshlrev_b32 v65, 4, v65")
    A("s_cmp_eq_u32 s36, 1"); A("s_cbranch_scc1 L_auxQ")
    A("s_add_u32 s72, s39, s91")
    A("s_lshr_b32 s88, s72, 2"); A("s_and_b32 s89, s72, 3")
    A("s_cmp_ge_u32 s95, 3"); A("s_cselect_b32 s73, 3, 0"); A("s_sub_u32 s73, s95, s73")
    A("s_mul_i32 s87, s89, 144"); A("s_mul_i32 s73, s73, 48"); A("s_add_u32 s87, s87, s73")
    A("s_cmp_lt_u32 s95, 3"); A("s_cselect_b32 s28, s16, s18"); A("s_cselect_b32 s29, s17, s19")
    A(f"s_mov_b32 s30, {576*4608*2}"); A("s_mov_b32 s31, 0x20000")
    A("s_mul_i32 s72, s87, 9216"); A("s_lshl_b32 s73, s88, 8"); A("s_add_u32 s72, s72, s73")
    A("v_mul_u32_u24 v5, 9216, v64"); A("v_add_u32 v5, v5, v65"); A("v_add_u32 v5, s72, v5")
    A(f"s_mov_b32 s76, {4*9216}")
    A("s_branch L_p1loadF" if P.P1D_F < 12 else "s_branch L_p1load")
    A("L_auxQ:")
    A("s_lshl_b32 s72, s90, 3"); A("s_add_u32 s72, s72, s37")
    A("s_lshr_b32 s88, s72, 1"); A("s_and_b32 s89, s72, 1")
    A("s_mul_i32 s87, s89, 288"); A("s_mul_i32 s72, s95, 48"); A("s_add_u32 s87, s87, s72")
    g.srd(28, 10, 11, 576*4096*2)
    A("s_lshl_b32 s72, s87, 13"); A("s_lshl_b32 s73, s88, 8"); A("s_add_u32 s72, s72, s73")
    A("v_lshlrev_b32 v5, 13, v64"); A("v_add_u32 v5, v5, v65"); A("v_add_u32 v5, s72, v5")
    A(f"s_mov_b32 s76, {4*8192}")
    A("L_p1load:")
    if P.EARLYB:
        A("s_waitcnt lgkmcnt(0)"); g.tagmul(); A("s_barrier")
    A("s_mov_b32 s77, 0")
    for t in range(12):
        A(f"buffer_load_dwordx4 v[{8+4*t}:{11+4*t}], v5, s[28:31], s77 offen nt")
        if t < 11: A("s_add_u32 s77, s77, s76")
    if P.P1D_F < 12:
        A("s_branch L_p1ld_e")
        A("L_p1loadF:")
        if P.EARLYB:
            A("s_waitcnt lgkmcnt(0)"); g.tagmul(); A("s_barrier")
        A("s_mov_b32 s77, 0")
        for t in range(12):
            if t >= P.P1D_F: A(f"s_waitcnt vmcnt({P.P1D_F-1})")
            A(f"buffer_load_dwordx4 v[{8+4*t}:{11+4*t}], v5, s[28:31], s77 offen nt")
            if t < 11: A("s_add_u32 s77, s77, s76")
        A("L_p1ld_e:")
    g.stamp(1)
    if P.EARLYB:
        g.lds_signal(L_CNTP1I)
    else:
        A("s_waitcnt lgkmcnt(0)")
        g.tagmul()
        A("s_barrier")
    g.stamp(2)
    A("s_waitcnt vmcnt(12)")
    A("v_lshlrev_b32 v5, 4, v1")
    A(f"ds_write_b128 v5, v[56:59] offset:{L_XRAW}")
    A("s_mov_b64 exec, 0xff")
    A(f"ds_write_b128 v5, v[60:63] offset:{L_XRAW+1024}")
    A("s_mov_b64 exec, -1")
    A("v_mov_b32 v64, 0"); A("v_mov_b32 v65, 0")
    A("v_mov_b32 v66, 0x3f803f80")
    for r in range(56, 64):
        A(f"v_dot2c_f32_bf16 v64, v{r}, v66")
        A(f"v_dot2c_f32_bf16 v65, v{r}, v{r}")
    A("s_lshl_b32 s72, s87, 1")
    A("v_lshrrev_b32 v5, 4, v1"); A("v_lshlrev_b32 v5, 1, v5"); A("v_add_u32 v5, s72, v5")
    A("s_waitcnt lgkmcnt(0)")
    for t in range(12):
        A(f"ds_read_u16 v{68+t}, v5 offset:{L_XRAW + 8*t}")
    g.wave_sum2(64, 65, 66, 67)
    A(f"s_mov_b32 s72, 0x{f32bits(1.0/576):08x}")
    A("v_mul_f32 v64, s72, v64")
    A("v_mul_f32 v65, s72, v65")
    A("v_fma_f32 v65, -v64, v64, v65")
    A("v_max_f32 v65, 0, v65")
    g.rne(64); g.rne(65)
    A(f"v_add_f32 v65, 0x{f32bits(1e-5):08x}, v65")
    g.rne(65)
    A("v_sqrt_f32 v65, v65"); g.nop(1)
    g.rne(65)
    A("v_rcp_f32 v65, v65")
    A("s_waitcnt lgkmcnt(0)")
    for t in range(12): A(f"v_lshlrev_b32 v{68+t}, 16, v{68+t}")
    for t in range(12): A(f"v_sub_f32 v{68+t}, v{68+t}, v64")
    for t in range(12): A(f"v_cvt_pk_bf16_f32 v{68+t}, v{68+t}, v{68+t}")
    for t in range(12): A(f"v_and_b32 v{68+t}, 0xffff0000, v{68+t}")
    for t in range(12): A(f"v_mul_f32 v{68+t}, v{68+t}, v65")
    for t in range(12): A(f"v_cvt_pk_bf16_f32 v{68+t}, v{68+t}, v{68+t}")
    g.stamp(3)
    for r in range(88, 92): A(f"v_mov_b32 v{r}, 0")
    A("s_lshl_b32 s72, s95, 10")
    A("v_lshlrev_b32 v5, 4, v1"); A("v_add_u32 v5, s72, v5")
    for t in range(12):
        at = 80 if t % 2 == 0 else 84
        for r in range(4):
            A(f"v_and_b32 v{at+r}, v{68+t}, v{124+r}")
        A(f"s_waitcnt vmcnt({11-t})")
        g.nop(1)
        A(f"v_mfma_f32_16x16x32_bf16 v[88:91], v[{at}:{at+3}], v[{8+4*t}:{11+4*t}], v[88:91]")
    g.stamp(4)
    g.nop(8)
    A(f"ds_write_b128 v5, v[88:91] offset:{L_P1}")
    g.lds_signal(L_CNTP1)
    A("s_branch L_auxD")
    A("L_auxO:")
    A("s_waitcnt lgkmcnt(0)")
    g.tagmul()
    A("s_barrier")
    g.stamp(2)
    A("s_branch L_auxD")
    A("L_aux67:")
    A("s_waitcnt lgkmcnt(0)")
    g.tagmul()
    A("s_barrier")
    g.stamp(2)
    A("s_setprio 3")
    A("s_cmp_eq_u32 s95, 7"); A("s_cbranch_scc1 L_a7")
    A("s_cmp_eq_u32 s36, 2"); A("s_cbranch_scc1 L_a6_h2")
    A("s_cmp_eq_u32 s36, 0"); A("s_cbranch_scc1 L_a6_F")

    A("s_lshl_b32 s72, s90, 3"); A("s_add_u32 s72, s72, s37")
    A("s_lshr_b32 s88, s72, 1"); A("s_and_b32 s89, s72, 1")
    A("v_bfe_u32 v8, v1, 1, 4"); A("v_and_b32 v9, 1, v1"); A("v_lshlrev_b32 v9, 4, v9"); A("v_add_u32 v8, v8, v9"); A("v_lshlrev_b32 v8, 4, v8")
    A("v_lshrrev_b32 v9, 5, v1"); A("v_mul_u32_u24 v9, 3072, v9"); A("v_add_u32 v8, v8, v9")
    A("s_lshl_b32 s72, s88, 11"); A("s_lshl_b32 s73, s89, 10"); A("s_add_u32 s80, s72, s73"); A(f"s_add_u32 s80, s80, {WS_QG}"); A(f"s_add_u32 s81, s80, {WS_B}")
    A("v_lshlrev_b32 v10, 5, v1")
    A("v_mov_b32 v21, s94"); A("v_mov_b32 v23, s94"); A("v_mov_b32 v25, s94"); A("v_mov_b32 v27, s94")
    g.lds_wait(L_CNTP1, 6)
    g.stamp(5)
    for w in range(3):
        A(f"ds_read_b128 v[{12+4*w if w == 0 else 28+4*w}:{15+4*w if w == 0 else 31+4*w}], v8 offset:{L_P1 + w*1024}")
    A("s_waitcnt lgkmcnt(1)")
    A("v_pk_add_f32 v[12:13], v[12:13], v[32:33]"); A("v_pk_add_f32 v[14:15], v[14:15], v[34:35]")
    A("s_waitcnt lgkmcnt(0)")
    A("v_pk_add_f32 v[12:13], v[12:13], v[36:37]"); A("v_pk_add_f32 v[14:15], v[14:15], v[38:39]")
    g.nop(1)
    for r in range(4): A(f"v_mov_b32 v{16+r}, v{12+r}")
    for r in range(4): A(f"v_permlane32_swap_b32 v{12+r}, v{16+r}")
    g.nop(1)
    A("v_add_f32 v20, v12, v16"); A("v_add_f32 v22, v13, v17"); A("v_add_f32 v24, v14, v18"); A("v_add_f32 v26, v15, v19")
    A("s_mov_b32 exec_hi, 0")
    A("buffer_store_dwordx4 v[20:23], v10, s[96:99], s80 offen")
    A("buffer_store_dwordx4 v[24:27], v10, s[96:99], s80 offen offset:16")
    if P.QGATE:
        A("s_mov_b64 exec, -1")
        g.lds_signal(L_FLAGQP)
        A("s_mov_b32 exec_hi, 0")
    A("buffer_store_dwordx4 v[20:23], v10, s[96:99], s81 offen sc1")
    A("buffer_store_dwordx4 v[24:27], v10, s[96:99], s81 offen offset:16 sc1")
    A("s_mov_b64 exec, -1")
    g.stamp(6)
    A("s_cmp_lt_u32 s90, 4"); A("s_cbranch_scc1 L_a6_h2")
    A("s_cmp_eq_u32 s37, 0"); A("s_cbranch_scc1 L_h3_slot16")
    A("s_branch L_fin")

    A("L_a6_F:")
    A("s_add_u32 s72, s39, s91")
    A("s_lshr_b32 s88, s72, 2"); A("s_and_b32 s89, s72, 3")
    A("v_lshrrev_b32 v10, 4, v1")
    A("s_and_b32 s72, s91, 0xfc"); A("v_add_u32 v40, s72, v10")
    A("v_lshlrev_b32 v40, 3, v40"); A("v_add_u32 v40, s90, v40")
    g.xt_check(40, 42, "s86")
    A("v_lshlrev_b32 v8, 2, v10"); A("v_bfe_u32 v9, v1, 1, 2"); A("v_add_u32 v8, v8, v9"); A("v_and_b32 v9, 1, v1"); A("v_lshlrev_b32 v9, 4, v9"); A("v_add_u32 v8, v8, v9")
    A("v_lshlrev_b32 v8, 4, v8")
    A("v_bfe_u32 v9, v1, 3, 1"); A("v_mul_u32_u24 v9, 3072, v9"); A("v_add_u32 v8, v8, v9")
    A("v_cmp_ne_u32 s[76:77], s89, v10")
    A("v_and_b32 v9, 15, v1"); A("v_lshlrev_b32 v9, 5, v9")
    A("v_lshlrev_b32 v11, 11, v10"); A("v_add_u32 v11, v11, v9")
    A("v_lshlrev_b32 v10, 9, v10"); A("v_add_u32 v9, v10, v9")
    A("s_lshl_b32 s72, s88, 13"); A(f"s_add_u32 s72, s72, {WS_XG}")
    A("s_lshl_b32 s73, s89, 9"); A("s_add_u32 s80, s72, s73"); A(f"s_add_u32 s82, s80, {WS_B}")
    A("s_lshl_b32 s73, s89, 11"); A("s_add_u32 s81, s72, s73"); A("s_add_u32 s81, s81, s86")
    A("v_mov_b32 v21, s94"); A("v_mov_b32 v23, s94"); A("v_mov_b32 v25, s94"); A("v_mov_b32 v27, s94")
    A("s_mov_b32 s78, 0x80008000"); A("s_mov_b32 s79, 0x80008000"); A("s_and_b64 s[78:79], s[78:79], s[76:77]")
    g.lds_wait(L_CNTP1, 6)
    g.stamp(5)
    A(f"ds_read_b128 v[12:15], v8 offset:{L_P1}")
    A(f"ds_read_b128 v[32:35], v8 offset:{L_P1+1024}")
    A(f"ds_read_b128 v[36:39], v8 offset:{L_P1+2048}")
    A("s_waitcnt lgkmcnt(1)")
    A("v_pk_add_f32 v[12:13], v[12:13], v[32:33]"); A("v_pk_add_f32 v[14:15], v[14:15], v[34:35]")
    A("s_waitcnt lgkmcnt(0)")
    A("v_pk_add_f32 v[12:13], v[12:13], v[36:37]"); A("v_pk_add_f32 v[14:15], v[14:15], v[38:39]")
    g.nop(1)
    A("v_mov_b32 v20, v12"); A("v_mov_b32 v22, v13"); A("v_mov_b32 v24, v14"); A("v_mov_b32 v26, v15")
    A("s_mov_b64 exec, s[76:77]")
    A("buffer_store_dwordx4 v[20:23], v11, s[96:99], s80 offen")
    A("buffer_store_dwordx4 v[24:27], v11, s[96:99], s80 offen offset:16")
    A("buffer_store_dwordx4 v[20:23], v11, s[96:99], s82 offen sc1")
    A("buffer_store_dwordx4 v[24:27], v11, s[96:99], s82 offen offset:16 sc1")
    g.stamp(6)
    if P.XSENT:
        A("s_mov_b64 exec, s[78:79]")
        g.poll(["buffer_load_dwordx4 v[28:31], v9, s[96:99], s81 offen offset:16 sc1"], [29, 31], P.SLP_X, "XS")
        A("s_mov_b64 exec, s[76:77]")
    g.poll(["buffer_load_dwordx4 v[28:31], v9, s[96:99], s81 offen sc1", "buffer_load_dwordx4 v[32:35], v9, s[96:99], s81 offen offset:16 sc1"], [29, 31, 33, 35], P.SLP_X, "XP")
    g.stamp(7)
    A("v_mov_b32 v12, v28"); A("v_mov_b32 v13, v30"); A("v_mov_b32 v14, v32"); A("v_mov_b32 v15, v34")
    A("s_mov_b64 exec, -1")
    g.xrow_multi("v_add_f32", [12, 13, 14, 15], [16, 17, 18, 19])
    g.nop(1)
    for r in range(4): A(f"v_mov_b32_dpp v{16+r}, v{12+r} row_ror:8 row_mask:0xf bank_mask:0xf")
    for r in range(4):
        g.rne(12+r); g.rne(16+r)
    g.silu4(12, 20)
    for r in range(4): A(f"v_mul_f32 v{20+r}, v{20+r}, v{16+r}")
    for r in range(4): A(f"v_cvt_pk_bf16_f32 v{20+r}, v{20+r}, v{20+r}")
    A("v_lshlrev_b32 v8, 4, v1")
    A("s_mov_b64 exec, 0xff")
    A(f"ds_write_b128 v8, v[20:23] offset:{L_X2U}")
    A("s_mov_b64 exec, -1")
    g.lds_signal(L_FLAGX0)
    g.stamp(8)
    A("s_branch L_fin")

    A("L_a6_h2:")
    A("s_mov_b32 s86, 0")
    A("L_h2:")
    A("s_cmp_eq_u32 s36, 2"); A("s_cbranch_scc1 L_h2_O")
    A("s_add_u32 s85, s37, 8"); A("s_branch L_h2_go")
    A("L_h2_O:")
    A("s_lshl_b32 s85, s37, 1"); A("s_add_u32 s85, s85, s86")
    A("L_h2_go:")
    A("s_lshl_b32 s72, s90, 4"); A("s_add_u32 s85, s85, s72")
    A("s_lshr_b32 s84, s85, 2"); A("s_and_b32 s83, s85, 3")
    A("s_lshr_b32 s72, s84, 1"); A("s_and_b32 s73, s72, 1"); A("s_lshl_b32 s73, s73, 7"); A("s_lshr_b32 s72, s72, 1"); A("s_add_u32 s72, s72, s73")
    A("v_and_b32 v40, 15, v1"); A("v_lshlrev_b32 v40, 3, v40"); A("v_add_u32 v40, s72, v40")
    g.xt_check(40, 42, "s87")
    A("s_lshl_b32 s72, s84, 13"); A("s_lshl_b32 s73, s83, 7"); A("s_add_u32 s80, s72, s73"); A(f"s_add_u32 s80, s80, {WS_AG}"); A("s_add_u32 s80, s80, s87")
    A("s_add_u32 s81, s80, 4096")
    A("v_lshrrev_b32 v8, 3, v1"); A("v_lshlrev_b32 v9, 9, v8"); A("v_and_b32 v10, 7, v1"); A("v_lshlrev_b32 v10, 4, v10"); A("v_add_u32 v9, v9, v10")
    A("v_lshlrev_b32 v8, 4, v8")
    A("s_lshl_b32 s82, s84, 7"); A(f"s_add_u32 s82, s82, {WS_LG}"); A("s_add_u32 s82, s82, s87")
    A("s_lshl_b32 s72, s86, 7")
    A("v_lshlrev_b32 v11, 4, v1"); A("v_add_u32 v11, s72, v11")
    g.lds_wait(L_CNTKV, 8)
    g.stamp(9)
    g.poll(["buffer_load_dwordx4 v[20:23], v8, s[96:99], s82 offen sc1",
            "buffer_load_dwordx4 v[12:15], v9, s[96:99], s80 offen sc1",
            "buffer_load_dwordx4 v[16:19], v9, s[96:99], s81 offen sc1"], [21, 23, 13, 15, 17, 19], P.SLP_H, "HP")
    g.stamp(10)
    A("v_max_f32 v24, v20, v22")
    A("v_lshlrev_b32 v26, 16, v12"); A("v_and_b32 v27, 0xffff0000, v12")
    g.dpp("v_max_f32", 24, 24, 24, "row_ror:8")
    A("v_lshlrev_b32 v28, 16, v14"); A("v_and_b32 v29, 0xffff0000, v14")
    A("v_mov_b32 v25, v24")
    A("v_lshlrev_b32 v30, 16, v16"); A("v_and_b32 v31, 0xffff0000, v16")
    A("v_permlane16_swap_b32 v24, v25")
    A("v_lshlrev_b32 v32, 16, v18")
    A("v_max_f32 v24, v24, v25")
    A("v_and_b32 v33, 0xffff0000, v18")
    A("v_mov_b32 v25, v24"); g.nop(2)
    A("v_permlane32_swap_b32 v24, v25"); g.nop(1)
    A("v_max_f32 v24, v24, v25")
    A("v_sub_f32 v20, v20, v24"); A("v_sub_f32 v22, v22, v24")
    A("v_exp_f32 v20, v20"); A("v_exp_f32 v22, v22"); g.nop(1)
    A("v_add_f32 v24, v20, v22")
    for r in range(4): A(f"v_mul_f32 v{26+r}, v{26+r}, v20")
    for r in range(4): A(f"v_fma_f32 v{26+r}, v{30+r}, v22, v{26+r}")
    for r in (24, 26, 27, 28, 29): g.dpp("v_add_f32", r, r, r, "row_ror:8")
    g.xrow_multi("v_add_f32", [24, 26, 27, 28, 29], [34, 35, 36, 37, 38])
    A("v_rcp_f32 v24, v24"); g.nop(1)
    for r in range(4): A(f"v_mul_f32 v{26+r}, v{26+r}, v24")
    for r in range(4): A(f"v_cvt_pk_bf16_f32 v{26+r}, v{26+r}, v{26+r}")
    A("s_mov_b64 exec, 0xff")
    A(f"ds_write_b128 v11, v[26:29] offset:{L_X2U}")
    A("s_mov_b64 exec, -1")
    A("s_cmp_eq_u32 s86, 0"); A("s_cbranch_scc1 L_h2_f0")
    g.lds_signal(L_FLAGX1)
    g.stamp(11)
    A("s_branch L_fin")
    A("L_h2_f0:")
    g.lds_signal(L_FLAGX0)
    g.stamp(11)
    A("s_cmp_eq_u32 s36, 2"); A("s_cbranch_scc1 L_h3_slot16")
    A("s_cmp_lt_u32 s37, 5"); A("s_cbranch_scc1 L_h3_slot16")
    A("s_branch L_fin")

    A("L_a7:")
    A("s_and_b32 s72, s92, 1"); A("s_lshl_b32 s72, s72, 2"); A("s_add_u32 s72, s72, s38"); A("s_lshl_b32 s72, s72, 3"); A("s_lshr_b32 s73, s92, 1"); A("s_add_u32 s72, s72, s73")
    A("v_and_b32 v40, 3, v1"); A("v_lshlrev_b32 v40, 3, v40"); A("v_add_u32 v40, s72, v40")
    g.xt_check(40, 42, "s81")
    A("s_lshl_b32 s72, s92, 12"); A(f"s_add_u32 s80, s72, {WS_QG}"); A("s_add_u32 s80, s80, s81")
    A("v_lshlrev_b32 v8, 4, v1"); A("v_lshlrev_b32 v9, 10, v1"); A("v_lshlrev_b32 v10, 2, v1")
    g.stamp(8)
    if P.QSENT:
        A("s_mov_b64 exec, 0xf")
        g.poll(["buffer_load_dwordx4 v[12:15], v9, s[96:99], s80 offen offset:1008 sc1"], [13, 15], P.SLP_Q, "QS")
        A("s_mov_b64 exec, -1")
    g.poll([f"buffer_load_dwordx4 v[{12+4*i}:{15+4*i}], v8, s[96:99], s80 offen offset:{1024*i} sc1" for i in range(4)],
           [13, 15, 17, 19, 21, 23, 25, 27], P.SLP_Q, "QP")
    g.stamp(9)
    A("v_add_f32 v12, v12, v16"); A("v_add_f32 v14, v14, v18"); A("v_add_f32 v20, v20, v24"); A("v_add_f32 v22, v22, v26")
    A("v_cvt_pk_bf16_f32 v12, v12, v14"); A("v_cvt_pk_bf16_f32 v20, v20, v22")
    A(f"ds_write_b32 v10, v12 offset:{L_QL}")
    A(f"ds_write_b32 v10, v20 offset:{L_QL+256}")
    g.lds_signal(L_FLAGQ)
    g.stamp(10)
    A("s_cmp_eq_u32 s36, 2"); A("s_cbranch_scc0 L_fin")
    A("s_mov_b32 s86, 1"); A("s_branch L_h2")

    A("L_auxD:")
    A("s_mov_b32 s86, 0"); A("s_mov_b32 s84, s95")
    A("s_cmp_eq_u32 s36, 2"); A("s_cbranch_scc1 L_D_O")
    A("s_cmp_ge_u32 s95, 3"); A("s_cbranch_scc1 L_fin")
    A("s_cmp_eq_u32 s36, 1"); A("s_cbranch_scc1 L_D_Q")
    g.srd(28, 20, 21, 4608*576*2)
    A("s_add_u32 s85, s39, s91")
    A("s_mov_b32 s83, s85")
    A("s_branch L_D_go")
    A("L_D_Q:")
    A("s_cmp_ge_u32 s90, 4"); A("s_cbranch_scc1 L_fin")
    A("s_add_u32 s85, s37, 8"); A("s_branch L_D_wo")
    A("L_D_O:")
    A("s_cmp_ge_u32 s95, 3"); A("s_cselect_b32 s86, 1, 0"); A("s_mul_i32 s72, s86, 3"); A("s_sub_u32 s84, s95, s72")
    A("s_lshl_b32 s85, s37, 1"); A("s_add_u32 s85, s85, s86")
    A("L_D_wo:")
    g.srd(28, 12, 13, 4096*576*2)
    A("s_lshl_b32 s72, s90, 4"); A("s_add_u32 s85, s85, s72")
    A("s_add_u32 s83, s85, 144")
    A("L_D_go:")
    A("s_setprio 0")
    A("v_lshrrev_b32 v3, 4, v1"); A("v_lshlrev_b32 v3, 1, v3"); A("v_bfe_u32 v4, v1, 3, 1"); A("v_add_u32 v3, v3, v4")
    A("v_and_b32 v4, 7, v1"); A("v_lshlrev_b32 v4, 4, v4")
    A(f"s_mul_i32 s72, s85, {32*1152}"); A("s_mul_i32 s73, s84, 384"); A("s_add_u32 s82, s72, s73")
    A("v_mul_u32_u24 v5, 1152, v3"); A("v_add_u32 v5, v5, v4"); A("v_add_u32 v5, s82, v5")
    A("s_lshl_b32 s72, s86, 7"); A("v_lshlrev_b32 v100, 2, v3"); A("v_add_u32 v100, s72, v100")
    A("v_bfe_u32 v101, v1, 3, 1"); A("v_lshrrev_b32 v102, 5, v1")
    A("v_cmp_eq_u32 s[78:79], v101, v102")
    A("v_mul_u32_u24 v101, 768, v102"); A("v_and_b32 v102, 7, v1"); A("v_lshlrev_b32 v102, 5, v102"); A("v_add_u32 v101, v101, v102")
    A("v_bfe_u32 v102, v1, 4, 1"); A("v_lshlrev_b32 v102, 4, v102"); A("v_add_u32 v101, v101, v102")
    A("s_mul_i32 s72, s95, 1536")
    A("v_add_u32 v101, s72, v101")
    A("v_lshlrev_b32 v102, 3, v1"); A("v_add_u32 v102, s72, v102")
    A("s_mul_i32 s72, s83, 4608"); A("s_mul_i32 s73, s84, 1536"); A("s_add_u32 s80, s72, s73"); A(f"s_add_u32 s80, s80, {WS_PG}")
    A("v_lshlrev_b32 v103, 4, v1")
    A("v_mov_b32 v105, s94"); A("v_mov_b32 v107, s94"); A("v_mov_b32 v109, s94"); A("v_mov_b32 v111, s94")
    for r in range(88, 100): A(f"v_mov_b32 v{r}, 0")
    if P.FGATE:
        A("s_cmp_lg_u32 s36, 0"); A("s_cbranch_scc1 L_D_g1")
        g.lds_wait(L_FLAGPUB, 1, slp=1)
        A("s_branch L_D_g2")
        A("L_D_g1:")
        g.lds_wait(L_CNTKVI, 8, slp=2)
        A("L_D_g2:")
    else:
        g.lds_wait(L_CNTKVI, P.KVIN, slp=2)
    g.stamp(9)
    A("s_cmp_eq_u32 s36, 2"); A("s_cbranch_scc1 L_D_ldO")
    for dep, lab in ((P.DD_F, None), (P.DD_O, "L_D_ldO")):
        if lab: A(f"{lab}:")
        A("s_mov_b32 s77, 0")
        for rg in range(4):
            for sg in range(3):
                b = 8 + 4*(rg*3+sg)
                if rg*3+sg >= dep: A(f"s_waitcnt vmcnt({dep-1})")
                A(f"buffer_load_dwordx4 v[{b}:{b+3}], v5, s[28:31], s77 offen offset:{sg*128} nt")
            if rg < 3: A(f"s_add_u32 s77, s77, {8*1152}")
        if not lab: A("s_branch L_D_ldE")
    A("L_D_ldE:")
    g.stamp(10)
    A("s_setprio 2")
    A("s_cmp_eq_u32 s86, 0"); A("s_cbranch_scc1 L_D_w0")
    g.lds_wait(L_FLAGX1, 1, slp=0)
    A("s_branch L_D_w1")
    A("L_D_w0:")
    g.lds_wait(L_FLAGX0, 1, slp=0)
    A("L_D_w1:")
    g.stamp(11)
    for rg in range(4):
        A(f"ds_read_b32 v{68+rg}, v100 offset:{L_X2U + 32*rg}")
    for rg in range(4):
        at = 80 if rg % 2 == 0 else 84
        A(f"s_waitcnt lgkmcnt({3-rg})")
        for r in range(4):
            A(f"v_and_b32 v{at+r}, v{68+rg}, v{124+r}")
        for sg in range(3):
            b = 8 + 4*(rg*3+sg)
            A(f"s_waitcnt vmcnt({11-(rg*3+sg)})")
            if sg == 0: g.nop(1)
            A(f"v_mfma_f32_16x16x32_bf16 v[{88+4*sg}:{91+4*sg}], v[{at}:{at+3}], v[{b}:{b+3}], v[{88+4*sg}:{91+4*sg}]")
    g.stamp(12)
    A("s_mov_b64 exec, s[78:79]")
    g.nop(5)
    for sg in range(3):
        A(f"ds_write_b128 v101, v[{88+4*sg}:{91+4*sg}] offset:{L_TB + sg*256}")
    A("s_mov_b64 exec, -1")
    A("s_waitcnt lgkmcnt(0)")
    A(f"ds_read_b64 v[24:25], v102 offset:{L_TB}")
    A(f"ds_read_b64 v[26:27], v102 offset:{L_TB+768}")
    A(f"ds_read_b64 v[28:29], v102 offset:{L_TB+512}")
    A(f"ds_read_b64 v[30:31], v102 offset:{L_TB+768+512}")
    A("s_waitcnt lgkmcnt(2)")
    A("v_add_f32 v104, v24, v26"); A("v_add_f32 v106, v25, v27")
    A("buffer_store_dwordx4 v[104:107], v103, s[96:99], s80 offen sc1")
    A("s_waitcnt lgkmcnt(0)")
    A("v_add_f32 v108, v28, v30"); A("v_add_f32 v110, v29, v31")
    A("s_mov_b32 exec_hi, 0")
    A("buffer_store_dwordx4 v[108:111], v103, s[96:99], s80 offen offset:1024 sc1")
    A("s_mov_b64 exec, -1")
    g.stamp(13)
    A("s_branch L_fin")

    A("L_KV:")
    A("s_sub_u32 s95, s3, 4")
    A("s_setprio 1")
    A("s_cmp_lg_u32 s95, 0"); A("s_cbranch_scc1 L_KV_ni")
    A("v_mov_b32 v5, 0"); A("v_lshlrev_b32 v6, 2, v1")
    A("s_mov_b64 exec, 0xffff")
    A("ds_write_b32 v6, v5")
    A("s_mov_b64 exec, -1")
    A("L_KV_ni:")
    g.srd(28, 6, 7, 0x10000000); g.srd(32, 8, 9, 0x10000000)
    A("s_lshl_b32 s76, s92, 24"); A("s_lshl_b32 s77, s93, 16"); A("s_add_u32 s76, s76, s77"); A(f"s_add_u32 s76, s76, {61440*256}")
    A("s_lshl_b32 s77, s95, 13"); A("s_add_u32 s76, s76, s77")
    A("v_bfe_u32 v3, v1, 2, 2"); A("v_lshlrev_b32 v3, 8, v3"); A("v_lshrrev_b32 v4, 4, v1"); A("v_lshlrev_b32 v4, 6, v4"); A("v_add_u32 v3, v3, v4")
    A("v_and_b32 v4, 3, v1"); A("v_lshlrev_b32 v4, 4, v4"); A("v_add_u32 v3, v3, v4"); A("v_add_u32 v3, s76, v3")
    A("v_lshlrev_b32 v4, 4, v1"); A("v_add_u32 v4, s76, v4")
    A("s_waitcnt lgkmcnt(0)")
    g.tagmul()
    A("s_cmp_lg_u32 s95, 1"); A("s_cbranch_scc1 L_KV_nx")
    A("v_mov_b32 v6, s101"); A("v_mov_b32 v7, s94"); A("s_lshl_b32 s72, s2, 3"); A("v_mov_b32 v5, s72")
    A("s_mov_b64 exec, 1")
    A("buffer_store_dwordx2 v[6:7], v5, s[96:99], s100 offen sc1")
    A("s_mov_b64 exec, -1")
    A("L_KV_nx:")
    A("s_barrier")
    g.stamp(2)
    if P.EARLYB:
        A("s_cmp_eq_u32 s36, 2"); A("s_cbranch_scc1 L_KV_ng2")
        A("s_cmp_eq_u32 s36, 0"); A(f"s_cselect_b32 s79, {P.NG_F}, {P.NG_Q}")
        l = g.lab("LW"); e = g.lab("LWE")
        A("v_mov_b32 v7, 0"); A(f"s_mov_b32 s73, {P.SPIN_L}")
        A(f"{l}:"); A(f"ds_read_b32 v6, v7 offset:{L_CNTP1I}"); A("s_waitcnt lgkmcnt(0)"); A("v_readfirstlane_b32 s72, v6")
        A("s_cmp_ge_u32 s72, s79"); A(f"s_cbranch_scc1 {e}"); A("s_sub_u32 s73, s73, 1"); A("s_cmp_eq_u32 s73, 0"); A(f"s_cbranch_scc1 {e}"); A("s_sleep 1"); A(f"s_branch {l}"); A(f"{e}:")
        A("L_KV_ng2:")
        g.stamp(1)
    if P.QGATE:
        A("s_cmp_lg_u32 s36, 1"); A("s_cbranch_scc1 L_KV_ng")
        if P.QGATE == 1:
            g.lds_wait(L_FLAGQP, 1, slp=1)
        else:
            g.lds_wait(L_CNTP1, P.QGATE, slp=1)
        A("L_KV_ng:")
    A("s_add_u32 s78, s95, s93")
    for t in range(16):
        tt = t % 8
        A(f"s_add_u32 s77, s78, {tt}"); A("s_and_b32 s77, s77, 7"); A("s_lshl_b32 s77, s77, 10")
        if t >= P.KVD: A(f"s_waitcnt vmcnt({P.KVD-1})")
        if t < 8: A(f"buffer_load_dwordx4 v[{8+4*tt}:{11+4*tt}], v3, s[28:31], s77 offen nt")
        else: A(f"buffer_load_dwordx4 v[{40+4*tt}:{43+4*tt}], v4, s[32:35], s77 offen nt")
    g.lds_signal(L_CNTKVI)
    g.stamp(3)
    A("v_bfe_u32 v3, v1, 3, 1"); A("v_lshlrev_b32 v3, 8, v3"); A("v_lshrrev_b32 v4, 4, v1"); A("v_lshlrev_b32 v4, 6, v4"); A("v_add_u32 v3, v3, v4")
    A("v_and_b32 v4, 3, v1"); A("v_lshlrev_b32 v4, 4, v4"); A("v_add_u32 v3, v3, v4")
    A("v_lshrrev_b32 v120, 5, v1"); A("v_lshlrev_b32 v120, 9, v120"); A("v_and_b32 v4, 15, v1"); A("v_lshlrev_b32 v4, 5, v4"); A("v_add_u32 v120, v120, v4")
    A("v_bfe_u32 v4, v1, 4, 1"); A("v_lshlrev_b32 v4, 4, v4"); A("v_add_u32 v120, v120, v4")
    A("s_lshl_b32 s72, s95, 10"); A("v_add_u32 v120, s72, v120")
    A("v_and_b32 v121, 8, v1"); A("s_lshl_b32 s72, s95, 4"); A("v_add_u32 v121, s72, v121")
    A("v_bfe_u32 v4, v1, 2, 1"); A("v_cmp_eq_u32 s[76:77], 0, v4")
    A("s_lshl_b32 s72, s92, 14"); A("s_lshl_b32 s73, s93, 9"); A("s_add_u32 s80, s72, s73"); A(f"s_add_u32 s80, s80, {WS_AG}"); A(f"s_add_u32 s81, s80, {WS_B}")
    A("s_lshl_b32 s72, s92, 8"); A("s_and_b32 s73, s93, 7"); A("s_lshl_b32 s73, s73, 4"); A("s_add_u32 s72, s72, s73")
    A("s_lshr_b32 s73, s93, 3"); A("s_lshl_b32 s73, s73, 3"); A("s_add_u32 s82, s72, s73"); A(f"s_add_u32 s82, s82, {WS_LG}"); A(f"s_add_u32 s83, s82, {WS_B}")
    g.lds_wait(L_FLAGQ, 1, slp=1)
    g.stamp(4)
    A("s_setprio 2")
    A(f"ds_read_b128 v[76:79], v3 offset:{L_QL}")
    A("s_waitcnt lgkmcnt(0)")
    for r in range(4): A(f"v_cndmask_b32 v{72+r}, 0, v{76+r}, s[76:77]")
    for r in range(4): A(f"v_cndmask_b32 v{76+r}, v{76+r}, 0, s[76:77]")
    g.nop(1)
    for p in range(4):
        A(f"s_waitcnt vmcnt({15-2*p-1})")
        d = 80 + 4*p
        A(f"v_mfma_f32_16x16x32_bf16 v[{d}:{d+3}], v[{8+8*p}:{11+8*p}], v[72:75], 0")
        A(f"v_mfma_f32_16x16x32_bf16 v[{d}:{d+3}], v[{12+8*p}:{15+8*p}], v[76:79], v[{d}:{d+3}]")
    g.stamp(5)
    g.nop(5)
    for p in range(4):
        d = 80 + 4*p
        A(f"v_mov_b32_dpp v{96+p}, v{d} quad_perm:[0,0,0,0] row_mask:0xf bank_mask:0xf")
        if p == 2: g.nop(3)
    for q in range(1, 4):
        for p in range(4):
            d = 80 + 4*p
            g.dpp("v_add_f32", 96+p, d+q, 96+p, f"quad_perm:[{q},{q},{q},{q}]")
    A("v_max3_f32 v116, v96, v97, v98"); A("v_max_f32 v116, v116, v99"); g.nop(2)
    g.dpp("v_max_f32", 116, 116, 116, "row_half_mirror"); g.nop(1)
    g.xrow("v_max_f32", 116, 117)
    c = 128**-0.5 * 1.4426950408889634
    A(f"s_mov_b32 s72, 0x{f32bits(c):08x}")
    A("v_mul_f32 v116, s72, v116")
    for p in range(4): A(f"v_fma_f32 v{96+p}, v{96+p}, s72, -v116")
    for p in range(4): A(f"v_exp_f32 v{96+p}, v{96+p}")
    for p in range(4): A(f"v_cvt_pk_bf16_f32 v{100+p}, v{96+p}, v{96+p}")
    for p in range(4): A(f"v_and_b32 v{96+p}, 0xffff0000, v{100+p}")
    for t in range(8):
        p, u = t // 2, t % 2
        at = 104 if t % 2 == 0 else 108
        for r in range(4):
            direct = (r < 2) if u == 0 else (r >= 2)
            if direct: A(f"v_and_b32 v{at+r}, v{100+p}, v{124+r}")
            else: g.dpp("v_and_b32", at+r, 100+p, 124+r, "row_half_mirror")
        if t == 0:
            A("v_add_f32 v118, v96, v97"); A("v_add_f32 v119, v98, v99"); A("v_add_f32 v118, v118, v119")
        if t == 1:
            g.dpp("v_add_f32", 118, 118, 118, "row_half_mirror")
        if t == 2:
            A("v_mov_b32 v117, v118")
        if t == 3:
            A("v_permlane16_swap_b32 v118, v117")
        if t == 4:
            A("v_add_f32 v118, v118, v117"); A("v_mov_b32 v117, v118")
        if t == 5:
            A("v_permlane32_swap_b32 v118, v117")
        if t == 6:
            A("v_add_f32 v117, v118, v117")
        A(f"s_waitcnt vmcnt({7-t})")
        g.nop(1)
        cin = "0" if t == 0 else "v[112:115]"
        A(f"v_mfma_f32_16x16x32_bf16 v[112:115], v[{at}:{at+3}], v[{40+4*t}:{43+4*t}], {cin}")
    g.stamp(6)
    A("s_mov_b64 exec, 0x101")
    A(f"ds_write_b64 v121, v[116:117] offset:{L_ML}")
    A("s_mov_b64 exec, -1")
    A("v_lshlrev_b32 v3, 4, v1")
    A("v_lshrrev_b32 v4, 5, v1"); A("v_lshlrev_b32 v122, 3, v4")
    A("v_lshlrev_b32 v5, 13, v4"); A("v_and_b32 v123, 31, v1"); A("v_lshlrev_b32 v123, 4, v123"); A("v_add_u32 v5, v5, v123")
    A("v_lshlrev_b32 v123, 7, v4")
    A(f"ds_write_b128 v120, v[112:115] offset:{L_OK}")
    g.lds_arrive(L_CNTKV)
    A("s_cmp_eq_u32 s72, 7"); A("s_cbranch_scc0 L_KV_done")
    A("s_setprio 3")
    for k in range(8):
        A(f"ds_read_b64 v[{8+2*k}:{9+2*k}], v122 offset:{L_ML + 16*k}")
    for k in range(7):
        A(f"ds_read_b128 v[{24+4*k}:{27+4*k}], v3 offset:{L_OK + 1024*k}")
    A("s_waitcnt lgkmcnt(7)")
    A(f"ds_read_b128 v[52:55], v3 offset:{L_OK + 1024*7}")
    A("v_max3_f32 v56, v8, v10, v12"); A("v_max3_f32 v57, v14, v16, v18"); A("v_max3_f32 v56, v56, v20, v22"); A("v_max_f32 v56, v56, v57")
    for k in range(8): A(f"v_sub_f32 v{8+2*k}, v{8+2*k}, v56")
    for k in range(8): A(f"v_exp_f32 v{8+2*k}, v{8+2*k}")
    A("v_mov_b32 v65, s94"); A("v_mov_b32 v67, s94"); A("v_mov_b32 v69, s94")
    A("v_mul_f32 v57, v8, v9")
    for k in range(1, 8): A(f"v_fma_f32 v57, v{8+2*k}, v{9+2*k}, v57")
    A("v_rcp_f32 v58, v57"); A("v_log_f32 v59, v57")
    A("s_waitcnt lgkmcnt(0)")
    for r in range(4): A(f"v_mul_f32 v{60+r}, v{24+r}, v8")
    for k in range(1, 8):
        for r in range(4): A(f"v_fma_f32 v{60+r}, v{24+4*k+r}, v{8+2*k}, v{60+r}")
    for r in range(4): A(f"v_mul_f32 v{60+r}, v{60+r}, v58")
    A("v_add_f32 v68, v56, v59")
    A("v_cvt_pk_bf16_f32 v64, v60, v61"); A("v_cvt_pk_bf16_f32 v66, v62, v63")
    A("buffer_store_dwordx4 v[64:67], v5, s[96:99], s80 offen")
    A("s_mov_b32 exec_lo, 1"); A("s_mov_b32 exec_hi, 1")
    A("buffer_store_dwordx2 v[68:69], v123, s[96:99], s82 offen")
    A("buffer_store_dwordx2 v[68:69], v123, s[96:99], s83 offen sc1")
    A("s_mov_b64 exec, -1")
    if P.FGATE == 1: g.lds_signal(L_FLAGPUB)
    A("buffer_store_dwordx4 v[64:67], v5, s[96:99], s81 offen sc1")
    g.stamp(7)
    A("L_KV_done:")
    A("s_cmp_eq_u32 s36, 2"); A("s_cbranch_scc1 L_h3_kv")
    A("s_cmp_eq_u32 s36, 0"); A("s_cbranch_scc1 L_fin")
    A("s_cmp_lt_u32 s90, 4"); A("s_cselect_b32 s72, 5, 1"); A("s_cmp_ge_u32 s37, s72"); A("s_cbranch_scc1 L_fin")
    A("L_h3_kv:")
    A("s_mov_b32 s86, s95"); A("s_add_u32 s87, s95, 9")
    A("s_branch L_h3")
    A("L_h3_slot16:")
    A("s_mov_b32 s86, 8"); A("s_mov_b32 s87, 17")
    A("L_h3:")
    A("s_setprio 3")
    A("s_mul_i32 s85, s90, 9")
    A("s_cmp_lt_u32 s90, 4"); A("s_cselect_b32 s72, 4, 8"); A("s_add_u32 s72, s72, s37")
    A("s_cmp_eq_u32 s36, 2"); A("s_cselect_b32 s72, s37, s72"); A("s_add_u32 s85, s85, s72")
    A("s_lshl_b32 s80, s86, 4")
    A("s_cmp_eq_u32 s87, 17"); A("s_cselect_b32 s81, 8, s87"); A("s_lshl_b32 s81, s81, 4")
    A("s_mul_i32 s80, s80, 4608"); A("s_mul_i32 s81, s81, 4608")
    A("s_lshl_b32 s72, s85, 6"); A(f"s_add_u32 s72, s72, {WS_PG}")
    A("s_add_u32 s80, s80, s72"); A("s_add_u32 s81, s81, s72")
    A("v_lshrrev_b32 v8, 2, v1"); A("v_mul_u32_u24 v8, 4608, v8"); A("v_and_b32 v9, 3, v1"); A("v_lshlrev_b32 v9, 4, v9"); A("v_add_u32 v8, v8, v9")
    A("v_lshlrev_b32 v9, 3, v1")
    A("s_lshl_b32 s72, s86, 5"); A("v_add_u32 v10, s72, v9")
    A("s_lshl_b32 s72, s87, 5"); A("v_add_u32 v11, s72, v9")
    g.srd(32, 4, 5, 1152)
    g.srd(28, 22, 23, 1152)
    A("s_lshl_b32 s72, s85, 4")
    A("v_lshlrev_b32 v30, 1, v1"); A("v_add_u32 v30, s72, v30")
    A("v_lshlrev_b32 v31, 2, v1")
    A("s_mov_b64 exec, 0xff")
    A("buffer_load_ushort v32, v30, s[32:35], 0 offen")
    A("s_mov_b64 exec, -1")
    g.stamp(13)
    if P.H3SENT:
        A("s_mov_b32 exec_lo, 0"); A("s_mov_b32 exec_hi, 0x80000000")
        g.poll(["buffer_load_dwordx4 v[12:15], v8, s[96:99], s80 offen sc1"], [13, 15], 2, "FS")
        A("s_mov_b64 exec, -1")
    g.poll(["buffer_load_dwordx4 v[12:15], v8, s[96:99], s80 offen sc1", "buffer_load_dwordx4 v[16:19], v8, s[96:99], s81 offen sc1"],
           [13, 15, 17, 19], P.SLP_F, "FP", masked=True)
    A("s_mov_b64 exec, -1")
    g.stamp(14)
    for ctrl in ("row_ror:4", "row_ror:8"):
        g.nop(1)
        for r in (12, 14, 16, 18): g.dpp("v_add_f32", r, r, r, ctrl)
    g.xrow_multi("v_add_f32", [12, 14, 16, 18], [20, 21, 22, 23])
    A("v_mov_b32 v13, v14"); A("v_mov_b32 v17, v18")
    A("s_mov_b64 exec, 0xf")
    A(f"ds_write_b64 v10, v[12:13] offset:{L_H3S}")
    A(f"ds_write_b64 v11, v[16:17] offset:{L_H3S}")
    A("s_mov_b64 exec, -1")
    g.lds_arrive(L_CNTH3)
    A("s_cmp_eq_u32 s72, 8"); A("s_cbranch_scc0 L_fin")
    A("s_mov_b64 exec, 0xff")
    for sl in range(15):
        A(f"ds_read_b32 v{12+sl}, v31 offset:{L_H3S + 32*sl}")
    A("s_waitcnt lgkmcnt(6)")
    for sl in (15, 16): A(f"ds_read_b32 v{40+sl}, v31 offset:{L_H3S + 32*sl}")
    A("v_add_f32 v12, v12, v13"); A("v_add_f32 v14, v14, v15"); A("v_add_f32 v16, v16, v17"); A("v_add_f32 v18, v18, v19")
    A("v_add_f32 v12, v12, v14"); A("v_add_f32 v16, v16, v18"); A("v_add_f32 v12, v12, v20"); A("v_add_f32 v12, v12, v16")
    g.rne(12)
    g.silu4(12, 13, n=1)
    A("s_waitcnt lgkmcnt(0)")
    A("v_add_f32 v21, v21, v22"); A("v_add_f32 v23, v23, v24"); A("v_add_f32 v25, v25, v26"); A("v_add_f32 v55, v55, v56")
    A("v_add_f32 v21, v21, v23"); A("v_add_f32 v25, v25, v55"); A("v_add_f32 v21, v21, v25")
    g.rne(21)
    A("v_mul_f32 v13, v13, v21")
    g.rne(13)
    A("v_lshlrev_b32 v32, 16, v32")
    A("v_add_f32 v13, v13, v32")
    A("v_cvt_pk_bf16_f32 v13, v13, v13")
    A("buffer_store_short v13, v30, s[28:31], 0 offen")
    A("s_cmp_lg_u32 s85, 0"); A("s_cbranch_scc1 L_fin_x")
    A("s_mov_b64 exec, 1")
    A("v_mov_b32 v14, s94"); A("v_mov_b32 v15, 0")
    A(f"buffer_store_dword v14, v15, s[96:99], 0 offen offset:{WS_EPOCH} sc1")
    A("L_fin_x:")
    A("s_mov_b64 exec, -1")
    g.stamp(15)
    A("L_fin:")
    if stamps:
        A("s_mov_b64 exec, -1")
        A("s_waitcnt lgkmcnt(0)")
        for i in range(16):
            A(f"v_writelane_b32 v8, s{40+2*i}, {i}"); A(f"v_writelane_b32 v9, s{41+2*i}, {i}")
        A("s_lshl_b32 s72, s2, 4"); A("s_add_u32 s72, s72, s3"); A("s_lshl_b32 s72, s72, 7"); A(f"s_add_u32 s72, s72, {WS_STAMP}")
        A("v_lshlrev_b32 v3, 3, v1")
        A("s_mov_b64 exec, 0xffff")
        A("buffer_store_dwordx2 v[8:9], v3, s[96:99], s72 offen")
    A("L_end:"); A("s_endpgm")
    A('.section .rodata,"a"'); A(".p2align 6"); A(f".amdhsa_kernel {NAME}_kernel")
    A("  .amdhsa_next_free_vgpr 128"); A("  .amdhsa_next_free_sgpr 102"); A("  .amdhsa_accum_offset 128")
    A("  .amdhsa_group_segment_fixed_size 0"); A("  .amdhsa_kernarg_size 96"); A("  .amdhsa_user_sgpr_count 2")
    A("  .amdhsa_user_sgpr_kernarg_segment_ptr 1"); A("  .amdhsa_system_sgpr_workgroup_id_x 1")
    A("  .amdhsa_float_denorm_mode_32 3")
    A(".end_amdhsa_kernel")
    return "\n".join(g.L) + "\n"

if __name__ == "__main__":
    ap = argparse.ArgumentParser(); ap.add_argument("-o", default="k6.s"); ap.add_argument("--stamps", action="store_true")
    ap.add_argument("--set", action="append", default=[])
    a = ap.parse_args()
    for kv in a.set:
        k, v = kv.split("="); setattr(P, k, int(v, 0))
    open(a.o, "w").write(gen(a.stamps))
```

```python
import sys, argparse, struct
NAME = "recurrent_scan__sliding_block_cached__swiglu_ffn__decode"
def f32bits(x): return struct.unpack("<I", struct.pack("<f", x))[0]

WS_EPOCH = 0x0
WS_XT = 0x8000
WS_QG = 0x10000
WS_XG = 0x20000
WS_LG = 0x68000
WS_AG = 0x70000
WS_PG = 0xC0000
WS_B = 0x400000
WS_STAMP = 0x800000
L_CNTP1, L_CNTKVI, L_FLAGQ, L_CNTKV, L_FLAGX0, L_FLAGX1, L_CNTH3, L_FLAGPUB, L_FLAGQP, L_CNTP1I, L_CNTDP = 0, 4, 8, 12, 16, 20, 24, 28, 32, 36, 40
L_XRAW = 0x40
L_QL = 0x500
L_ML = 0x700
L_X2U = 0x780
L_H3S = 0x880
L_P1 = 0x1000
L_OK = 0x3000
L_TB = 0x5000
LDS_BYTES = 0x7600

class P:
    KVD = 6; DD_F = 12; DD_O = 6
    SLP_Q = 2; SLP_X = 4; SLP_H = 0; SLP_F = 0; SLP_L = 1
    XSENT = 0; H3SENT = 0; QSENT = 0
    FORCE_B = 0; KVD_Q = 0; KVD_O = 4; H3WAIT = 1; FGN = 1; P1D_F = 5; P1D_Q = 12; QGATE = 0; EARLYB = 2; NG_F = 6; NG_Q = 6; NF_LO = 20; NF_HI = 16; FGATE = 1; FGIDX = 18; KVIN = 8
    SPIN_G = 40000; SPIN_L = 400000

class G:
    def __init__(self, stamps=False):
        self.L = []; self.stamps = stamps; self.nlab = 0
    def A(self, s): self.L.append(s)
    def lab(self, base="L"):
        self.nlab += 1; return f"{base}_{self.nlab}"
    def srd(self, d, lo, hi, size):
        A = self.A
        A(f"s_mov_b32 s{d}, s{lo}"); A(f"s_mov_b32 s{d+1}, s{hi}"); A(f"s_mov_b32 s{d+2}, {size}"); A(f"s_mov_b32 s{d+3}, 0x20000")
    def stamp(self, i):
        if self.stamps: self.A(f"s_memrealtime s[{40+2*i}:{41+2*i}]")
    def nop(self, n):
        while n > 0:
            k = min(n, 16); self.A(f"s_nop {k-1}"); n -= k
    def lds_wait(self, addr, val, vt=6, vz=7, slp=None):
        A = self.A
        if slp is None: slp = P.SLP_L
        l = self.lab("LW"); e = self.lab("LWE")
        A(f"v_mov_b32 v{vz}, 0")
        A(f"s_mov_b32 s73, {P.SPIN_L}")
        A(f"{l}:")
        A(f"ds_read_b32 v{vt}, v{vz} offset:{addr}")
        A("s_waitcnt lgkmcnt(0)")
        A(f"v_readfirstlane_b32 s72, v{vt}")
        A(f"s_cmp_ge_u32 s72, {val}")
        A(f"s_cbranch_scc1 {e}")
        A("s_sub_u32 s73, s73, 1")
        A("s_cmp_eq_u32 s73, 0")
        A(f"s_cbranch_scc1 {e}")
        if slp: A(f"s_sleep {slp}")
        A(f"s_branch {l}")
        A(f"{e}:")
    def lds_signal(self, addr, vt=6, vz=7):
        A = self.A
        A(f"v_mov_b32 v{vz}, 0"); A(f"v_mov_b32 v{vt}, 1")
        A("s_waitcnt lgkmcnt(0)")
        A("s_mov_b64 s[74:75], exec"); A("s_mov_b64 exec, 1")
        A(f"ds_add_u32 v{vz}, v{vt} offset:{addr}")
        A("s_mov_b64 exec, s[74:75]")
    def lds_arrive(self, addr, vt=6, vz=7):
        A = self.A
        A(f"v_mov_b32 v{vz}, 0"); A(f"v_mov_b32 v{vt}, 1")
        A("s_waitcnt lgkmcnt(0)")
        A("s_mov_b64 s[74:75], exec"); A("s_mov_b64 exec, 1")
        A(f"ds_add_rtn_u32 v{vt}, v{vz}, v{vt} offset:{addr}")
        A("s_waitcnt lgkmcnt(0)")
        A(f"v_readfirstlane_b32 s72, v{vt}")
        A("s_mov_b64 exec, s[74:75]")
    def xrow(self, op, v, t):
        A = self.A
        A(f"v_mov_b32 v{t}, v{v}"); self.nop(2)
        A(f"v_permlane16_swap_b32 v{v}, v{t}"); self.nop(1)
        A(f"{op} v{v}, v{v}, v{t}")
        A(f"v_mov_b32 v{t}, v{v}"); self.nop(2)
        A(f"v_permlane32_swap_b32 v{v}, v{t}"); self.nop(1)
        A(f"{op} v{v}, v{v}, v{t}")
    def xrow_multi(self, op, vs, ts):
        A = self.A
        n = len(vs); assert n >= 3
        for v, t in zip(vs, ts): A(f"v_mov_b32 v{t}, v{v}")
        for v, t in zip(vs, ts): A(f"v_permlane16_swap_b32 v{v}, v{t}")
        self.nop(1)
        for v, t in zip(vs, ts): A(f"{op} v{v}, v{v}, v{t}")
        for v, t in zip(vs, ts): A(f"v_mov_b32 v{t}, v{v}")
        for v, t in zip(vs, ts): A(f"v_permlane32_swap_b32 v{v}, v{t}")
        self.nop(1)
        for v, t in zip(vs, ts): A(f"{op} v{v}, v{v}, v{t}")
    def dpp(self, op, d, s0, s1, ctrl):
        self.A(f"{op}_dpp v{d}, v{s0}, v{s1} {ctrl} row_mask:0xf bank_mask:0xf")
    def wave_sum2(self, v, w, t, u):
        for ctrl in ["quad_perm:[1,0,3,2]", "quad_perm:[2,3,0,1]", "row_half_mirror", "row_mirror"]:
            self.nop(1)
            self.dpp("v_add_f32", v, v, v, ctrl)
            self.dpp("v_add_f32", w, w, w, ctrl)
        A = self.A
        A(f"v_mov_b32 v{t}, v{v}"); A(f"v_mov_b32 v{u}, v{w}"); self.nop(1)
        A(f"v_permlane16_swap_b32 v{v}, v{t}"); A(f"v_permlane16_swap_b32 v{w}, v{u}"); self.nop(1)
        A(f"v_add_f32 v{v}, v{v}, v{t}"); A(f"v_add_f32 v{w}, v{w}, v{u}")
        A(f"v_mov_b32 v{t}, v{v}"); A(f"v_mov_b32 v{u}, v{w}"); self.nop(1)
        A(f"v_permlane32_swap_b32 v{v}, v{t}"); A(f"v_permlane32_swap_b32 v{w}, v{u}"); self.nop(1)
        A(f"v_add_f32 v{v}, v{v}, v{t}"); A(f"v_add_f32 v{w}, v{w}, v{u}")
    def rne(self, v):
        A = self.A
        A(f"v_cvt_pk_bf16_f32 v{v}, v{v}, v{v}")
        A(f"v_and_b32 v{v}, 0xffff0000, v{v}")
    def tagmul(self):
        A = self.A
        A("s_mul_i32 s94, s94, 1664525"); A("s_add_u32 s94, s94, 1013904223")
    def poll(self, loads, tagregs, slp, name, masked=False):
        A = self.A
        lp = self.lab(name); le = self.lab(name + "E")
        A(f"s_mov_b32 s73, {P.SPIN_G}")
        A(f"{lp}:")
        for l in loads: A(l)
        A("s_waitcnt vmcnt(0)")
        A(f"v_cmp_ne_u32 vcc, s94, v{tagregs[0]}")
        for r in tagregs[1:]:
            A(f"v_cmp_ne_u32 s[74:75], s94, v{r}"); A("s_or_b64 vcc, vcc, s[74:75]")
        A("s_cmp_eq_u64 vcc, 0"); A(f"s_cbranch_scc1 {le}")
        A("s_sub_u32 s73, s73, 1"); A("s_cmp_eq_u32 s73, 0"); A(f"s_cbranch_scc1 {le}")
        if masked: A("s_mov_b64 exec, vcc")
        if slp: A(f"s_sleep {slp}")
        A(f"s_branch {lp}")
        A(f"{le}:")
    def xt_check(self, vwg, dst, sdst):
        A = self.A
        A(f"v_lshlrev_b32 v{vwg}, 3, v{vwg}")
        self.poll([f"buffer_load_dwordx2 v[{dst}:{dst+1}], v{vwg}, s[96:99], s100 offen sc1"], [dst+1], 2, "XT")
        A(f"v_cmp_ne_u32 vcc, s101, v{dst}")
        A("s_cmp_eq_u64 vcc, 0")
        A(f"s_cselect_b32 {sdst}, 0, {WS_B}")
        if P.FORCE_B: A(f"s_mov_b32 {sdst}, {WS_B}")
    def silu4(self, src, dst, n=4):
        A = self.A
        for r in range(n): A(f"v_mul_f32 v{dst+r}, 0x{f32bits(-1.4426950408889634):08x}, v{src+r}")
        for r in range(n): A(f"v_exp_f32 v{dst+r}, v{dst+r}")
        if n < 2: self.nop(1)
        for r in range(n): A(f"v_add_f32 v{dst+r}, 1.0, v{dst+r}")
        for r in range(n): A(f"v_rcp_f32 v{dst+r}, v{dst+r}")
        if n < 2: self.nop(1)
        for r in range(n): A(f"v_mul_f32 v{dst+r}, v{dst+r}, v{src+r}")
        for r in range(n): self.rne(dst+r)

def gen(stamps=False):
    g = G(stamps); A = g.A
    A(f"; @launch grid=(256,1,1) block=(1024,1,1) lds={LDS_BYTES}")
    A('.amdgcn_target "amdgcn-amd-amdhsa--gfx950"')
    A(".text"); A(f".globl {NAME}_kernel"); A(".p2align 8"); A(f".type {NAME}_kernel,@function")
    A(f"{NAME}_kernel:")
    g.stamp(0)
    A("s_cmp_ge_u32 s2, 256"); A("s_cbranch_scc1 L_end")
    A("s_load_dwordx16 s[4:19], s[0:1], 0")
    A("s_load_dwordx8 s[20:27], s[0:1], 64")
    A("v_and_b32 v1, 63, v0")
    A("v_lshrrev_b32 v2, 6, v0")
    A("s_and_b32 s90, s2, 7")
    A("v_readfirstlane_b32 s3, v2")
    A("s_lshr_b32 s91, s2, 3")
    A("s_lshl_b32 s92, s90, 1"); A("s_lshr_b32 s72, s91, 4"); A("s_add_u32 s92, s92, s72")
    A("s_and_b32 s93, s91, 15")
    A("s_cmp_lt_u32 s90, 4")
    A(f"s_cselect_b32 s38, {P.NF_LO}, {P.NF_HI}")
    A(f"s_mul_i32 s72, s90, {P.NF_LO}"); A(f"s_mul_i32 s73, s90, {P.NF_HI}"); A(f"s_add_u32 s73, s73, {4*(P.NF_LO-P.NF_HI)}")
    A("s_cmp_lt_u32 s90, 4")
    A("s_cselect_b32 s39, s72, s73")
    A("s_mov_b32 s36, 0"); A("s_mov_b32 s37, s91")
    A("s_cmp_lt_u32 s91, s38"); A("s_cbranch_scc1 L_typed")
    A("s_mov_b32 s36, 1"); A("s_sub_u32 s37, s91, s38")
    A("s_cmp_lt_u32 s37, 8"); A("s_cbranch_scc1 L_typed")
    A("s_mov_b32 s36, 2"); A("s_sub_u32 s37, s37, 8")
    A("L_typed:")
    A(f"s_mov_b32 s100, {WS_XT}")
    A("s_getreg_b32 s101, hwreg(HW_REG_XCC_ID)"); A("s_and_b32 s101, s101, 15")
    A("v_and_b32 v2, 1, v1")
    A("v_mov_b32 v3, 0xffff")
    A("v_lshlrev_b32 v2, 4, v2")
    A("v_lshlrev_b32 v3, v2, v3")
    A("v_bfe_u32 v2, v1, 1, 2")
    for t in range(4):
        A(f"v_cmp_eq_u32 vcc, {t}, v2"); g.nop(2)
        A(f"v_cndmask_b32 v{124+t}, 0, v3, vcc")
    if stamps:
        for i in range(1, 16): A(f"s_mov_b64 s[{40+2*i}:{41+2*i}], 0")
    A("s_waitcnt lgkmcnt(0)")
    A(f"s_load_dword s94, s[26:27], {WS_EPOCH}")
    g.srd(96, 26, 27, 0x40000000)
    A("s_cmp_lt_u32 s3, 4"); A("s_cbranch_scc1 L_aux0")
    A("s_cmp_lt_u32 s3, 12"); A("s_cbranch_scc1 L_KV")
    A("s_sub_u32 s95, s3, 8"); A("s_branch L_aux")
    A("L_aux0:"); A("s_mov_b32 s95, s3")
    A("L_aux:")
    A("s_setprio 2")
    A("s_cmp_ge_u32 s95, 6"); A("s_cbranch_scc1 L_aux67")
    A("s_cmp_eq_u32 s36, 2"); A("s_cbranch_scc1 L_auxO")
    g.srd(32, 4, 5, 1152)
    A("v_lshlrev_b32 v5, 4, v1")
    A("buffer_load_dwordx4 v[56:59], v5, s[32:35], 0 offen")
    A("buffer_load_dwordx4 v[60:63], v5, s[32:35], 0 offen offset:1024")
    A("v_lshrrev_b32 v64, 4, v1"); A("v_and_b32 v65, 15, v1"); A("v_lshlrev_b32 v65, 4, v65")
    A("s_cmp_eq_u32 s36, 1"); A("s_cbranch_scc1 L_auxQ")
    A("s_add_u32 s72, s39, s91")
    A("s_lshr_b32 s88, s72, 2"); A("s_and_b32 s89, s72, 3")
    A("s_cmp_ge_u32 s95, 3"); A("s_cselect_b32 s73, 3, 0"); A("s_sub_u32 s73, s95, s73")
    A("s_mul_i32 s87, s89, 144"); A("s_mul_i32 s73, s73, 48"); A("s_add_u32 s87, s87, s73")
    A("s_cmp_lt_u32 s95, 3"); A("s_cselect_b32 s28, s16, s18"); A("s_cselect_b32 s29, s17, s19")
    A(f"s_mov_b32 s30, {576*4608*2}"); A("s_mov_b32 s31, 0x20000")
    A("s_mul_i32 s72, s87, 9216"); A("s_lshl_b32 s73, s88, 8"); A("s_add_u32 s72, s72, s73")
    A("v_mul_u32_u24 v5, 9216, v64"); A("v_add_u32 v5, v5, v65"); A("v_add_u32 v5, s72, v5")
    A(f"s_mov_b32 s76, {4*9216}")
    A("s_branch L_p1loadF")
    A("L_auxQ:")
    A("s_lshl_b32 s72, s90, 3"); A("s_add_u32 s72, s72, s37")
    A("s_lshr_b32 s88, s72, 1"); A("s_and_b32 s89, s72, 1")
    A("s_mul_i32 s87, s89, 288"); A("s_mul_i32 s72, s95, 48"); A("s_add_u32 s87, s87, s72")
    g.srd(28, 10, 11, 576*4096*2)
    A("s_lshl_b32 s72, s87, 13"); A("s_lshl_b32 s73, s88, 8"); A("s_add_u32 s72, s72, s73")
    A("v_lshlrev_b32 v5, 13, v64"); A("v_add_u32 v5, v5, v65"); A("v_add_u32 v5, s72, v5")
    A(f"s_mov_b32 s76, {4*8192}")
    def p1loads(dep):
        A("s_mov_b32 s77, 0")
        if P.EARLYB == 1:
            A("s_waitcnt lgkmcnt(0)"); g.tagmul(); A("s_barrier")
        for t in range(12):
            if P.EARLYB == 2 and t == 3:
                A("s_waitcnt lgkmcnt(0)"); g.tagmul(); A("s_barrier")
            if t >= dep: A(f"s_waitcnt vmcnt({dep-1})")
            A(f"buffer_load_dwordx4 v[{8+4*t}:{11+4*t}], v5, s[28:31], s77 offen nt")
            if t < 11: A("s_add_u32 s77, s77, s76")
    A("L_p1load:")
    p1loads(P.P1D_Q)
    A("s_branch L_p1ld_e")
    A("L_p1loadF:")
    p1loads(P.P1D_F)
    A("L_p1ld_e:")
    g.stamp(1)
    if P.EARLYB:
        g.lds_signal(L_CNTP1I)
    else:
        A("s_waitcnt lgkmcnt(0)")
        g.tagmul()
        A("s_barrier")
    g.stamp(2)
    A("s_waitcnt vmcnt(12)")
    A("v_lshlrev_b32 v5, 4, v1")
    A(f"ds_write_b128 v5, v[56:59] offset:{L_XRAW}")
    A("s_mov_b64 exec, 0xff")
    A(f"ds_write_b128 v5, v[60:63] offset:{L_XRAW+1024}")
    A("s_mov_b64 exec, -1")
    A("v_mov_b32 v64, 0"); A("v_mov_b32 v65, 0")
    A("v_mov_b32 v66, 0x3f803f80")
    for r in range(56, 64):
        A(f"v_dot2c_f32_bf16 v64, v{r}, v66")
        A(f"v_dot2c_f32_bf16 v65, v{r}, v{r}")
    A("s_lshl_b32 s72, s87, 1")
    A("v_lshrrev_b32 v5, 4, v1"); A("v_lshlrev_b32 v5, 1, v5"); A("v_add_u32 v5, s72, v5")
    A("s_waitcnt lgkmcnt(0)")
    for t in range(12):
        A(f"ds_read_u16 v{68+t}, v5 offset:{L_XRAW + 8*t}")
    g.wave_sum2(64, 65, 66, 67)
    A(f"s_mov_b32 s72, 0x{f32bits(1.0/576):08x}")
    A("v_mul_f32 v64, s72, v64")
    A("v_mul_f32 v65, s72, v65")
    A("v_fma_f32 v65, -v64, v64, v65")
    A("v_max_f32 v65, 0, v65")
    g.rne(64); g.rne(65)
    A(f"v_add_f32 v65, 0x{f32bits(1e-5):08x}, v65")
    g.rne(65)
    A("v_sqrt_f32 v65, v65"); g.nop(1)
    g.rne(65)
    A("v_rcp_f32 v65, v65")
    A("s_waitcnt lgkmcnt(0)")
    for t in range(12): A(f"v_lshlrev_b32 v{68+t}, 16, v{68+t}")
    for t in range(12): A(f"v_sub_f32 v{68+t}, v{68+t}, v64")
    for t in range(12): A(f"v_cvt_pk_bf16_f32 v{68+t}, v{68+t}, v{68+t}")
    for t in range(12): A(f"v_and_b32 v{68+t}, 0xffff0000, v{68+t}")
    for t in range(12): A(f"v_mul_f32 v{68+t}, v{68+t}, v65")
    for t in range(12): A(f"v_cvt_pk_bf16_f32 v{68+t}, v{68+t}, v{68+t}")
    g.stamp(3)
    for r in range(88, 92): A(f"v_mov_b32 v{r}, 0")
    A("s_lshl_b32 s72, s95, 10")
    A("v_lshlrev_b32 v5, 4, v1"); A("v_add_u32 v5, s72, v5")
    for t in range(12):
        at = 80 if t % 2 == 0 else 84
        for r in range(4):
            A(f"v_and_b32 v{at+r}, v{68+t}, v{124+r}")
        A(f"s_waitcnt vmcnt({11-t})")
        g.nop(1)
        A(f"v_mfma_f32_16x16x32_bf16 v[88:91], v[{at}:{at+3}], v[{8+4*t}:{11+4*t}], v[88:91]")
    g.stamp(4)
    g.nop(8)
    A(f"ds_write_b128 v5, v[88:91] offset:{L_P1}")
    g.lds_signal(L_CNTP1)
    A("s_branch L_auxD")
    A("L_auxO:")
    A("s_waitcnt lgkmcnt(0)")
    g.tagmul()
    A("s_barrier")
    g.stamp(2)
    A("s_branch L_auxD")
    A("L_aux67:")
    A("s_waitcnt lgkmcnt(0)")
    g.tagmul()
    A("s_barrier")
    g.stamp(2)
    A("s_setprio 3")
    A("s_cmp_eq_u32 s95, 7"); A("s_cbranch_scc1 L_a7")
    A("s_cmp_eq_u32 s36, 2"); A("s_cbranch_scc1 L_a6_h2")
    A("s_cmp_eq_u32 s36, 0"); A("s_cbranch_scc1 L_a6_F")

    A("s_lshl_b32 s72, s90, 3"); A("s_add_u32 s72, s72, s37")
    A("s_lshr_b32 s88, s72, 1"); A("s_and_b32 s89, s72, 1")
    A("v_bfe_u32 v8, v1, 1, 4"); A("v_and_b32 v9, 1, v1"); A("v_lshlrev_b32 v9, 4, v9"); A("v_add_u32 v8, v8, v9"); A("v_lshlrev_b32 v8, 4, v8")
    A("v_lshrrev_b32 v9, 5, v1"); A("v_mul_u32_u24 v9, 3072, v9"); A("v_add_u32 v8, v8, v9")
    A("s_lshl_b32 s72, s88, 11"); A("s_lshl_b32 s73, s89, 10"); A("s_add_u32 s80, s72, s73"); A(f"s_add_u32 s80, s80, {WS_QG}"); A(f"s_add_u32 s81, s80, {WS_B}")
    A("v_lshlrev_b32 v10, 5, v1")
    A("v_mov_b32 v21, s94"); A("v_mov_b32 v23, s94"); A("v_mov_b32 v25, s94"); A("v_mov_b32 v27, s94")
    g.lds_wait(L_CNTP1, 6)
    g.stamp(5)
    for w in range(3):
        A(f"ds_read_b128 v[{12+4*w if w == 0 else 28+4*w}:{15+4*w if w == 0 else 31+4*w}], v8 offset:{L_P1 + w*1024}")
    A("s_waitcnt lgkmcnt(1)")
    A("v_pk_add_f32 v[12:13], v[12:13], v[32:33]"); A("v_pk_add_f32 v[14:15], v[14:15], v[34:35]")
    A("s_waitcnt lgkmcnt(0)")
    A("v_pk_add_f32 v[12:13], v[12:13], v[36:37]"); A("v_pk_add_f32 v[14:15], v[14:15], v[38:39]")
    g.nop(1)
    for r in range(4): A(f"v_mov_b32 v{16+r}, v{12+r}")
    for r in range(4): A(f"v_permlane32_swap_b32 v{12+r}, v{16+r}")
    g.nop(1)
    A("v_add_f32 v20, v12, v16"); A("v_add_f32 v22, v13, v17"); A("v_add_f32 v24, v14, v18"); A("v_add_f32 v26, v15, v19")
    A("s_mov_b32 exec_hi, 0")
    A("buffer_store_dwordx4 v[20:23], v10, s[96:99], s80 offen")
    A("buffer_store_dwordx4 v[24:27], v10, s[96:99], s80 offen offset:16")
    if P.QGATE:
        A("s_mov_b64 exec, -1")
        g.lds_signal(L_FLAGQP)
        A("s_mov_b32 exec_hi, 0")
    A("buffer_store_dwordx4 v[20:23], v10, s[96:99], s81 offen sc1")
    A("buffer_store_dwordx4 v[24:27], v10, s[96:99], s81 offen offset:16 sc1")
    A("s_mov_b64 exec, -1")
    g.stamp(6)
    A("s_cmp_lt_u32 s90, 4"); A("s_cbranch_scc1 L_a6_h2")
    A("s_cmp_eq_u32 s37, 0"); A("s_cbranch_scc1 L_h3_slot16")
    A("s_branch L_fin")

    A("L_a6_F:")
    A("s_add_u32 s72, s39, s91")
    A("s_lshr_b32 s88, s72, 2"); A("s_and_b32 s89, s72, 3")
    A("v_lshrrev_b32 v10, 4, v1")
    A("s_and_b32 s72, s91, 0xfc"); A("v_add_u32 v40, s72, v10")
    A("v_lshlrev_b32 v40, 3, v40"); A("v_add_u32 v40, s90, v40")
    g.xt_check(40, 42, "s86")
    A("v_lshlrev_b32 v8, 2, v10"); A("v_bfe_u32 v9, v1, 1, 2"); A("v_add_u32 v8, v8, v9"); A("v_and_b32 v9, 1, v1"); A("v_lshlrev_b32 v9, 4, v9"); A("v_add_u32 v8, v8, v9")
    A("v_lshlrev_b32 v8, 4, v8")
    A("v_bfe_u32 v9, v1, 3, 1"); A("v_mul_u32_u24 v9, 3072, v9"); A("v_add_u32 v8, v8, v9")
    A("v_cmp_ne_u32 s[76:77], s89, v10")
    A("v_and_b32 v9, 15, v1"); A("v_lshlrev_b32 v9, 5, v9")
    A("v_lshlrev_b32 v11, 11, v10"); A("v_add_u32 v11, v11, v9")
    A("v_lshlrev_b32 v10, 9, v10"); A("v_add_u32 v9, v10, v9")
    A("s_lshl_b32 s72, s88, 13"); A(f"s_add_u32 s72, s72, {WS_XG}")
    A("s_lshl_b32 s73, s89, 9"); A("s_add_u32 s80, s72, s73"); A(f"s_add_u32 s82, s80, {WS_B}")
    A("s_lshl_b32 s73, s89, 11"); A("s_add_u32 s81, s72, s73"); A("s_add_u32 s81, s81, s86")
    A("v_mov_b32 v21, s94"); A("v_mov_b32 v23, s94"); A("v_mov_b32 v25, s94"); A("v_mov_b32 v27, s94")
    A("s_mov_b32 s78, 0x80008000"); A("s_mov_b32 s79, 0x80008000"); A("s_and_b64 s[78:79], s[78:79], s[76:77]")
    g.lds_wait(L_CNTP1, 6)
    g.stamp(5)
    A(f"ds_read_b128 v[12:15], v8 offset:{L_P1}")
    A(f"ds_read_b128 v[32:35], v8 offset:{L_P1+1024}")
    A(f"ds_read_b128 v[36:39], v8 offset:{L_P1+2048}")
    A("s_waitcnt lgkmcnt(1)")
    A("v_pk_add_f32 v[12:13], v[12:13], v[32:33]"); A("v_pk_add_f32 v[14:15], v[14:15], v[34:35]")
    A("s_waitcnt lgkmcnt(0)")
    A("v_pk_add_f32 v[12:13], v[12:13], v[36:37]"); A("v_pk_add_f32 v[14:15], v[14:15], v[38:39]")
    g.nop(1)
    A("v_mov_b32 v20, v12"); A("v_mov_b32 v22, v13"); A("v_mov_b32 v24, v14"); A("v_mov_b32 v26, v15")
    A("s_mov_b64 exec, s[76:77]")
    A("buffer_store_dwordx4 v[20:23], v11, s[96:99], s80 offen")
    A("buffer_store_dwordx4 v[24:27], v11, s[96:99], s80 offen offset:16")
    A("buffer_store_dwordx4 v[20:23], v11, s[96:99], s82 offen sc1")
    A("buffer_store_dwordx4 v[24:27], v11, s[96:99], s82 offen offset:16 sc1")
    g.stamp(6)
    if P.XSENT:
        A("s_mov_b64 exec, s[78:79]")
        g.poll(["buffer_load_dwordx4 v[28:31], v9, s[96:99], s81 offen offset:16 sc1"], [29, 31], P.SLP_X, "XS")
        A("s_mov_b64 exec, s[76:77]")
    g.poll(["buffer_load_dwordx4 v[28:31], v9, s[96:99], s81 offen sc1", "buffer_load_dwordx4 v[32:35], v9, s[96:99], s81 offen offset:16 sc1"], [29, 31, 33, 35], P.SLP_X, "XP")
    g.stamp(7)
    A("v_mov_b32 v12, v28"); A("v_mov_b32 v13, v30"); A("v_mov_b32 v14, v32"); A("v_mov_b32 v15, v34")
    A("s_mov_b64 exec, -1")
    g.xrow_multi("v_add_f32", [12, 13, 14, 15], [16, 17, 18, 19])
    g.nop(1)
    for r in range(4): A(f"v_mov_b32_dpp v{16+r}, v{12+r} row_ror:8 row_mask:0xf bank_mask:0xf")
    for r in range(4):
        g.rne(12+r); g.rne(16+r)
    g.silu4(12, 20)
    for r in range(4): A(f"v_mul_f32 v{20+r}, v{20+r}, v{16+r}")
    for r in range(4): A(f"v_cvt_pk_bf16_f32 v{20+r}, v{20+r}, v{20+r}")
    A("v_lshlrev_b32 v8, 4, v1")
    A("s_mov_b64 exec, 0xff")
    A(f"ds_write_b128 v8, v[20:23] offset:{L_X2U}")
    A("s_mov_b64 exec, -1")
    g.lds_signal(L_FLAGX0)
    g.stamp(8)
    A("s_branch L_fin")

    A("L_a6_h2:")
    A("s_mov_b32 s86, 0")
    A("L_h2:")
    A("s_cmp_eq_u32 s36, 2"); A("s_cbranch_scc1 L_h2_O")
    A("s_add_u32 s85, s37, 8"); A("s_branch L_h2_go")
    A("L_h2_O:")
    A("s_lshl_b32 s85, s37, 1"); A("s_add_u32 s85, s85, s86")
    A("L_h2_go:")
    A("s_lshl_b32 s72, s90, 4"); A("s_add_u32 s85, s85, s72")
    A("s_lshr_b32 s84, s85, 2"); A("s_and_b32 s83, s85, 3")
    A("s_lshr_b32 s72, s84, 1"); A("s_and_b32 s73, s72, 1"); A("s_lshl_b32 s73, s73, 7"); A("s_lshr_b32 s72, s72, 1"); A("s_add_u32 s72, s72, s73")
    A("v_and_b32 v40, 15, v1"); A("v_lshlrev_b32 v40, 3, v40"); A("v_add_u32 v40, s72, v40")
    g.xt_check(40, 42, "s87")
    A("s_lshl_b32 s72, s84, 13"); A("s_lshl_b32 s73, s83, 7"); A("s_add_u32 s80, s72, s73"); A(f"s_add_u32 s80, s80, {WS_AG}"); A("s_add_u32 s80, s80, s87")
    A("s_add_u32 s81, s80, 4096")
    A("v_lshrrev_b32 v8, 3, v1"); A("v_lshlrev_b32 v9, 9, v8"); A("v_and_b32 v10, 7, v1"); A("v_lshlrev_b32 v10, 4, v10"); A("v_add_u32 v9, v9, v10")
    A("v_lshlrev_b32 v8, 4, v8")
    A("s_lshl_b32 s82, s84, 7"); A(f"s_add_u32 s82, s82, {WS_LG}"); A("s_add_u32 s82, s82, s87")
    A("s_lshl_b32 s72, s86, 7")
    A("v_lshlrev_b32 v11, 4, v1"); A("v_add_u32 v11, s72, v11")
    g.lds_wait(L_CNTKV, 8)
    g.stamp(9)
    g.poll(["buffer_load_dwordx4 v[20:23], v8, s[96:99], s82 offen sc1",
            "buffer_load_dwordx4 v[12:15], v9, s[96:99], s80 offen sc1",
            "buffer_load_dwordx4 v[16:19], v9, s[96:99], s81 offen sc1"], [21, 23, 13, 15, 17, 19], P.SLP_H, "HP")
    g.stamp(10)
    A("v_max_f32 v24, v20, v22")
    A("v_lshlrev_b32 v26, 16, v12"); A("v_and_b32 v27, 0xffff0000, v12")
    g.dpp("v_max_f32", 24, 24, 24, "row_ror:8")
    A("v_lshlrev_b32 v28, 16, v14"); A("v_and_b32 v29, 0xffff0000, v14")
    A("v_mov_b32 v25, v24")
    A("v_lshlrev_b32 v30, 16, v16"); A("v_and_b32 v31, 0xffff0000, v16")
    A("v_permlane16_swap_b32 v24, v25")
    A("v_lshlrev_b32 v32, 16, v18")
    A("v_max_f32 v24, v24, v25")
    A("v_and_b32 v33, 0xffff0000, v18")
    A("v_mov_b32 v25, v24"); g.nop(2)
    A("v_permlane32_swap_b32 v24, v25"); g.nop(1)
    A("v_max_f32 v24, v24, v25")
    A("v_sub_f32 v20, v20, v24"); A("v_sub_f32 v22, v22, v24")
    A("v_exp_f32 v20, v20"); A("v_exp_f32 v22, v22"); g.nop(1)
    A("v_add_f32 v24, v20, v22")
    for r in range(4): A(f"v_mul_f32 v{26+r}, v{26+r}, v20")
    for r in range(4): A(f"v_fma_f32 v{26+r}, v{30+r}, v22, v{26+r}")
    for r in (24, 26, 27, 28, 29): g.dpp("v_add_f32", r, r, r, "row_ror:8")
    g.xrow_multi("v_add_f32", [24, 26, 27, 28, 29], [34, 35, 36, 37, 38])
    A("v_rcp_f32 v24, v24"); g.nop(1)
    for r in range(4): A(f"v_mul_f32 v{26+r}, v{26+r}, v24")
    for r in range(4): A(f"v_cvt_pk_bf16_f32 v{26+r}, v{26+r}, v{26+r}")
    A("s_mov_b64 exec, 0xff")
    A(f"ds_write_b128 v11, v[26:29] offset:{L_X2U}")
    A("s_mov_b64 exec, -1")
    A("s_cmp_eq_u32 s86, 0"); A("s_cbranch_scc1 L_h2_f0")
    g.lds_signal(L_FLAGX1)
    g.stamp(11)
    A("s_branch L_fin")
    A("L_h2_f0:")
    g.lds_signal(L_FLAGX0)
    g.stamp(11)
    A("s_cmp_eq_u32 s36, 2"); A("s_cbranch_scc1 L_h3_slot16")
    A("s_cmp_lt_u32 s37, 5"); A("s_cbranch_scc1 L_h3_slot16")
    A("s_branch L_fin")

    A("L_a7:")
    A("s_and_b32 s72, s92, 1"); A("s_lshl_b32 s72, s72, 2"); A("s_add_u32 s72, s72, s38"); A("s_lshl_b32 s72, s72, 3"); A("s_lshr_b32 s73, s92, 1"); A("s_add_u32 s72, s72, s73")
    A("v_and_b32 v40, 3, v1"); A("v_lshlrev_b32 v40, 3, v40"); A("v_add_u32 v40, s72, v40")
    A("v_lshlrev_b32 v40, 3, v40")
    A("s_lshl_b32 s72, s92, 12"); A(f"s_add_u32 s80, s72, {WS_QG}")
    if P.FORCE_B: A(f"s_add_u32 s80, s80, {WS_B}")
    A(f"s_add_u32 s81, s72, {WS_QG + WS_B}")
    A("v_lshlrev_b32 v8, 4, v1"); A("v_lshlrev_b32 v10, 2, v1")
    g.stamp(8)
    lp = g.lab("QP"); le = g.lab("QPE"); lx = g.lab("QPX")
    A(f"s_mov_b32 s73, {P.SPIN_G}")
    A("s_mov_b32 s82, 0")
    A(f"{lp}:")
    for i in range(4):
        A(f"buffer_load_dwordx4 v[{12+4*i}:{15+4*i}], v8, s[96:99], s80 offen offset:{1024*i} sc1")
    A("s_cmp_lg_u32 s82, 0"); A(f"s_cbranch_scc1 {lx}")
    A("buffer_load_dwordx2 v[42:43], v40, s[96:99], s100 offen sc1")
    A(f"{lx}:")
    A("s_waitcnt vmcnt(0)")
    A("v_cmp_ne_u32 vcc, s94, v13")
    for r in (15, 17, 19, 21, 23, 25, 27):
        A(f"v_cmp_ne_u32 s[74:75], s94, v{r}"); A("s_or_b64 vcc, vcc, s[74:75]")
    A("s_cmp_eq_u64 vcc, 0"); A(f"s_cbranch_scc1 {le}")
    A("s_sub_u32 s73, s73, 1"); A("s_cmp_eq_u32 s73, 0"); A(f"s_cbranch_scc1 {le}")
    A("s_cmp_lg_u32 s82, 0"); A(f"s_cbranch_scc1 {lp}_s")
    A("v_cmp_ne_u32 vcc, s94, v43")
    A("s_cmp_eq_u64 vcc, 0"); A(f"s_cbranch_scc0 {lp}_s")
    A("s_mov_b32 s82, 1")
    A("v_cmp_ne_u32 vcc, s101, v42")
    A("s_cmp_eq_u64 vcc, 0")
    A("s_cselect_b32 s80, s80, s81")
    A(f"{lp}_s:")
    if P.SLP_Q: A(f"s_sleep {P.SLP_Q}")
    A(f"s_branch {lp}")
    A(f"{le}:")
    g.stamp(9)
    A("v_add_f32 v12, v12, v16"); A("v_add_f32 v14, v14, v18"); A("v_add_f32 v20, v20, v24"); A("v_add_f32 v22, v22, v26")
    A("v_cvt_pk_bf16_f32 v12, v12, v14"); A("v_cvt_pk_bf16_f32 v20, v20, v22")
    A(f"ds_write_b32 v10, v12 offset:{L_QL}")
    A(f"ds_write_b32 v10, v20 offset:{L_QL+256}")
    g.lds_signal(L_FLAGQ)
    g.stamp(10)
    A("s_cmp_eq_u32 s36, 2"); A("s_cbranch_scc0 L_fin")
    A("s_mov_b32 s86, 1"); A("s_branch L_h2")

    A("L_auxD:")
    A("s_mov_b32 s86, 0"); A("s_mov_b32 s84, s95")
    A("s_cmp_eq_u32 s36, 2"); A("s_cbranch_scc1 L_D_O")
    A("s_cmp_ge_u32 s95, 3"); A("s_cbranch_scc1 L_fin")
    A("s_cmp_eq_u32 s36, 1"); A("s_cbranch_scc1 L_D_Q")
    g.srd(28, 20, 21, 4608*576*2)
    A("s_add_u32 s85, s39, s91")
    A("s_mov_b32 s83, s85")
    A("s_branch L_D_go")
    A("L_D_Q:")
    A("s_cmp_ge_u32 s90, 4"); A("s_cbranch_scc1 L_fin")
    A("s_add_u32 s85, s37, 8"); A("s_branch L_D_wo")
    A("L_D_O:")
    A("s_cmp_ge_u32 s95, 3"); A("s_cselect_b32 s86, 1, 0"); A("s_mul_i32 s72, s86, 3"); A("s_sub_u32 s84, s95, s72")
    A("s_lshl_b32 s85, s37, 1"); A("s_add_u32 s85, s85, s86")
    A("L_D_wo:")
    g.srd(28, 12, 13, 4096*576*2)
    A("s_lshl_b32 s72, s90, 4"); A("s_add_u32 s85, s85, s72")
    A("s_add_u32 s83, s85, 144")
    A("L_D_go:")
    A("s_setprio 0")
    A("v_lshrrev_b32 v3, 4, v1"); A("v_lshlrev_b32 v3, 1, v3"); A("v_bfe_u32 v4, v1, 3, 1"); A("v_add_u32 v3, v3, v4")
    A("v_and_b32 v4, 7, v1"); A("v_lshlrev_b32 v4, 4, v4")
    A(f"s_mul_i32 s72, s85, {32*1152}"); A("s_mul_i32 s73, s84, 384"); A("s_add_u32 s82, s72, s73")
    A("v_mul_u32_u24 v5, 1152, v3"); A("v_add_u32 v5, v5, v4"); A("v_add_u32 v5, s82, v5")
    A("s_lshl_b32 s72, s86, 7"); A("v_lshlrev_b32 v100, 2, v3"); A("v_add_u32 v100, s72, v100")
    A("v_bfe_u32 v101, v1, 3, 1"); A("v_lshrrev_b32 v102, 5, v1")
    A("v_cmp_eq_u32 s[78:79], v101, v102")
    A("v_mul_u32_u24 v101, 768, v102"); A("v_and_b32 v102, 7, v1"); A("v_lshlrev_b32 v102, 5, v102"); A("v_add_u32 v101, v101, v102")
    A("v_bfe_u32 v102, v1, 4, 1"); A("v_lshlrev_b32 v102, 4, v102"); A("v_add_u32 v101, v101, v102")
    A("s_mul_i32 s72, s95, 1536")
    A("v_add_u32 v101, s72, v101")
    A("v_lshlrev_b32 v102, 3, v1"); A("v_add_u32 v102, s72, v102")
    A("s_mul_i32 s72, s83, 4608"); A("s_mul_i32 s73, s84, 1536"); A("s_add_u32 s80, s72, s73"); A(f"s_add_u32 s80, s80, {WS_PG}")
    A("v_lshlrev_b32 v103, 4, v1")
    A("v_mov_b32 v105, s94"); A("v_mov_b32 v107, s94"); A("v_mov_b32 v109, s94"); A("v_mov_b32 v111, s94")
    for r in range(88, 100): A(f"v_mov_b32 v{r}, 0")
    if P.FGATE:
        A("s_cmp_lg_u32 s36, 0"); A("s_cbranch_scc1 L_D_g1")
        if P.FGATE == 1: g.lds_wait(L_FLAGPUB, 1, slp=1)
        else: g.lds_wait(L_CNTKV, P.FGN, slp=1)
        A("s_branch L_D_g2")
        A("L_D_g1:")
        g.lds_wait(L_CNTKVI, 8, slp=2)
        A("L_D_g2:")
    else:
        g.lds_wait(L_CNTKVI, P.KVIN, slp=2)
    g.stamp(9)
    A("s_cmp_eq_u32 s36, 2"); A("s_cbranch_scc1 L_D_ldO")
    for dep, lab in ((P.DD_F, None), (P.DD_O, "L_D_ldO")):
        if lab: A(f"{lab}:")
        A("s_mov_b32 s77, 0")
        for rg in range(4):
            for sg in range(3):
                b = 8 + 4*(rg*3+sg)
                if rg*3+sg >= dep: A(f"s_waitcnt vmcnt({dep-1})")
                A(f"buffer_load_dwordx4 v[{b}:{b+3}], v5, s[28:31], s77 offen offset:{sg*128} nt")
            if rg < 3: A(f"s_add_u32 s77, s77, {8*1152}")
        if not lab: A("s_branch L_D_ldE")
    A("L_D_ldE:")
    g.stamp(10)
    A("s_setprio 2")
    A("s_cmp_eq_u32 s86, 0"); A("s_cbranch_scc1 L_D_w0")
    g.lds_wait(L_FLAGX1, 1, slp=0)
    A("s_branch L_D_w1")
    A("L_D_w0:")
    g.lds_wait(L_FLAGX0, 1, slp=0)
    A("L_D_w1:")
    g.stamp(11)
    for rg in range(4):
        A(f"ds_read_b32 v{68+rg}, v100 offset:{L_X2U + 32*rg}")
    for rg in range(4):
        at = 80 if rg % 2 == 0 else 84
        A(f"s_waitcnt lgkmcnt({3-rg})")
        for r in range(4):
            A(f"v_and_b32 v{at+r}, v{68+rg}, v{124+r}")
        for sg in range(3):
            b = 8 + 4*(rg*3+sg)
            A(f"s_waitcnt vmcnt({11-(rg*3+sg)})")
            if sg == 0: g.nop(1)
            A(f"v_mfma_f32_16x16x32_bf16 v[{88+4*sg}:{91+4*sg}], v[{at}:{at+3}], v[{b}:{b+3}], v[{88+4*sg}:{91+4*sg}]")
    g.stamp(12)
    A("s_mov_b64 exec, s[78:79]")
    g.nop(5)
    for sg in range(3):
        A(f"ds_write_b128 v101, v[{88+4*sg}:{91+4*sg}] offset:{L_TB + sg*256}")
    A("s_mov_b64 exec, -1")
    A("s_waitcnt lgkmcnt(0)")
    A(f"ds_read_b64 v[24:25], v102 offset:{L_TB}")
    A(f"ds_read_b64 v[26:27], v102 offset:{L_TB+768}")
    A(f"ds_read_b64 v[28:29], v102 offset:{L_TB+512}")
    A(f"ds_read_b64 v[30:31], v102 offset:{L_TB+768+512}")
    A("s_waitcnt lgkmcnt(2)")
    A("v_add_f32 v104, v24, v26"); A("v_add_f32 v106, v25, v27")
    A("buffer_store_dwordx4 v[104:107], v103, s[96:99], s80 offen sc1")
    A("s_waitcnt lgkmcnt(0)")
    A("v_add_f32 v108, v28, v30"); A("v_add_f32 v110, v29, v31")
    A("s_mov_b32 exec_hi, 0")
    A("buffer_store_dwordx4 v[108:111], v103, s[96:99], s80 offen offset:1024 sc1")
    A("s_mov_b64 exec, -1")
    if P.H3WAIT: g.lds_signal(L_CNTDP)
    g.stamp(13)
    A("s_branch L_fin")

    A("L_KV:")
    A("s_sub_u32 s95, s3, 4")
    A("s_setprio 1")
    A("s_cmp_lg_u32 s95, 0"); A("s_cbranch_scc1 L_KV_ni")
    A("v_mov_b32 v5, 0"); A("v_lshlrev_b32 v6, 2, v1")
    A("s_mov_b64 exec, 0xffff")
    A("ds_write_b32 v6, v5")
    A("s_mov_b64 exec, -1")
    A("L_KV_ni:")
    g.srd(28, 6, 7, 0x10000000); g.srd(32, 8, 9, 0x10000000)
    A("s_lshl_b32 s76, s92, 24"); A("s_lshl_b32 s77, s93, 16"); A("s_add_u32 s76, s76, s77"); A(f"s_add_u32 s76, s76, {61440*256}")
    A("s_lshl_b32 s77, s95, 13"); A("s_add_u32 s76, s76, s77")
    A("v_bfe_u32 v3, v1, 2, 2"); A("v_lshlrev_b32 v3, 8, v3"); A("v_lshrrev_b32 v4, 4, v1"); A("v_lshlrev_b32 v4, 6, v4"); A("v_add_u32 v3, v3, v4")
    A("v_and_b32 v4, 3, v1"); A("v_lshlrev_b32 v4, 4, v4"); A("v_add_u32 v3, v3, v4"); A("v_add_u32 v3, s76, v3")
    A("v_lshlrev_b32 v4, 4, v1"); A("v_add_u32 v4, s76, v4")
    A("s_waitcnt lgkmcnt(0)")
    g.tagmul()
    A("s_cmp_lg_u32 s95, 1"); A("s_cbranch_scc1 L_KV_nx")
    A("v_mov_b32 v6, s101"); A("v_mov_b32 v7, s94"); A("s_lshl_b32 s72, s2, 3"); A("v_mov_b32 v5, s72")
    A("s_mov_b64 exec, 1")
    A("buffer_store_dwordx2 v[6:7], v5, s[96:99], s100 offen sc1")
    A("s_mov_b64 exec, -1")
    A("L_KV_nx:")
    A("s_barrier")
    g.stamp(2)
    if P.EARLYB:
        A("s_cmp_eq_u32 s36, 2"); A("s_cbranch_scc1 L_KV_ng2")
        A("s_cmp_eq_u32 s36, 0"); A(f"s_cselect_b32 s79, {P.NG_F}, {P.NG_Q}")
        l = g.lab("LW"); e = g.lab("LWE")
        A("v_mov_b32 v7, 0"); A(f"s_mov_b32 s73, {P.SPIN_L}")
        A(f"{l}:"); A(f"ds_read_b32 v6, v7 offset:{L_CNTP1I}"); A("s_waitcnt lgkmcnt(0)"); A("v_readfirstlane_b32 s72, v6")
        A("s_cmp_ge_u32 s72, s79"); A(f"s_cbranch_scc1 {e}"); A("s_sub_u32 s73, s73, 1"); A("s_cmp_eq_u32 s73, 0"); A(f"s_cbranch_scc1 {e}"); A("s_sleep 1"); A(f"s_branch {l}"); A(f"{e}:")
        A("L_KV_ng2:")
        g.stamp(1)
    if P.QGATE:
        A("s_cmp_lg_u32 s36, 1"); A("s_cbranch_scc1 L_KV_ng")
        if P.QGATE == 1:
            g.lds_wait(L_FLAGQP, 1, slp=1)
        else:
            g.lds_wait(L_CNTP1, P.QGATE, slp=1)
        A("L_KV_ng:")
    A("s_add_u32 s78, s95, s93")
    deps = [P.KVD, P.KVD_Q or P.KVD, P.KVD_O or P.KVD]
    uniq = sorted(set(deps))
    if len(uniq) > 1:
        for ty in (1, 2):
            if deps[ty] != deps[0]:
                A(f"s_cmp_eq_u32 s36, {ty}"); A(f"s_cbranch_scc1 L_KVL_{deps[ty]}")
    order = [deps[0]] + [d for d in uniq if d != deps[0]]
    for dep in order:
        A(f"L_KVL_{dep}:")
        for t in range(16):
            tt = t % 8
            A(f"s_add_u32 s77, s78, {tt}"); A("s_and_b32 s77, s77, 7"); A("s_lshl_b32 s77, s77, 10")
            d = dep
            if dep >= 100:
                pass
            if t >= d: A(f"s_waitcnt vmcnt({d-1})")
            if t < 8: A(f"buffer_load_dwordx4 v[{8+4*tt}:{11+4*tt}], v3, s[28:31], s77 offen nt")
            else: A(f"buffer_load_dwordx4 v[{40+4*tt}:{43+4*tt}], v4, s[32:35], s77 offen nt")
        if dep != order[-1]: A("s_branch L_KVL_e")
    A("L_KVL_e:")
    g.lds_signal(L_CNTKVI)
    g.stamp(3)
    A("v_bfe_u32 v3, v1, 3, 1"); A("v_lshlrev_b32 v3, 8, v3"); A("v_lshrrev_b32 v4, 4, v1"); A("v_lshlrev_b32 v4, 6, v4"); A("v_add_u32 v3, v3, v4")
    A("v_and_b32 v4, 3, v1"); A("v_lshlrev_b32 v4, 4, v4"); A("v_add_u32 v3, v3, v4")
    A("v_lshrrev_b32 v120, 5, v1"); A("v_lshlrev_b32 v120, 9, v120"); A("v_and_b32 v4, 15, v1"); A("v_lshlrev_b32 v4, 5, v4"); A("v_add_u32 v120, v120, v4")
    A("v_bfe_u32 v4, v1, 4, 1"); A("v_lshlrev_b32 v4, 4, v4"); A("v_add_u32 v120, v120, v4")
    A("s_lshl_b32 s72, s95, 10"); A("v_add_u32 v120, s72, v120")
    A("v_and_b32 v121, 8, v1"); A("s_lshl_b32 s72, s95, 4"); A("v_add_u32 v121, s72, v121")
    A("v_bfe_u32 v4, v1, 2, 1"); A("v_cmp_eq_u32 s[76:77], 0, v4")
    A("s_lshl_b32 s72, s92, 14"); A("s_lshl_b32 s73, s93, 9"); A("s_add_u32 s80, s72, s73"); A(f"s_add_u32 s80, s80, {WS_AG}"); A(f"s_add_u32 s81, s80, {WS_B}")
    A("s_lshl_b32 s72, s92, 8"); A("s_and_b32 s73, s93, 7"); A("s_lshl_b32 s73, s73, 4"); A("s_add_u32 s72, s72, s73")
    A("s_lshr_b32 s73, s93, 3"); A("s_lshl_b32 s73, s73, 3"); A("s_add_u32 s82, s72, s73"); A(f"s_add_u32 s82, s82, {WS_LG}"); A(f"s_add_u32 s83, s82, {WS_B}")
    g.lds_wait(L_FLAGQ, 1, slp=1)
    g.stamp(4)
    A("s_setprio 2")
    A(f"ds_read_b128 v[76:79], v3 offset:{L_QL}")
    A("s_waitcnt lgkmcnt(0)")
    for r in range(4): A(f"v_cndmask_b32 v{72+r}, 0, v{76+r}, s[76:77]")
    for r in range(4): A(f"v_cndmask_b32 v{76+r}, v{76+r}, 0, s[76:77]")
    g.nop(1)
    for p in range(4):
        A(f"s_waitcnt vmcnt({15-2*p-1})")
        d = 80 + 4*p
        A(f"v_mfma_f32_16x16x32_bf16 v[{d}:{d+3}], v[{8+8*p}:{11+8*p}], v[72:75], 0")
        A(f"v_mfma_f32_16x16x32_bf16 v[{d}:{d+3}], v[{12+8*p}:{15+8*p}], v[76:79], v[{d}:{d+3}]")
    g.stamp(5)
    g.nop(5)
    for p in range(4):
        d = 80 + 4*p
        A(f"v_mov_b32_dpp v{96+p}, v{d} quad_perm:[0,0,0,0] row_mask:0xf bank_mask:0xf")
        if p == 2: g.nop(3)
    for q in range(1, 4):
        for p in range(4):
            d = 80 + 4*p
            g.dpp("v_add_f32", 96+p, d+q, 96+p, f"quad_perm:[{q},{q},{q},{q}]")
    A("v_max3_f32 v116, v96, v97, v98"); A("v_max_f32 v116, v116, v99"); g.nop(2)
    g.dpp("v_max_f32", 116, 116, 116, "row_half_mirror"); g.nop(1)
    g.xrow("v_max_f32", 116, 117)
    c = 128**-0.5 * 1.4426950408889634
    A(f"s_mov_b32 s72, 0x{f32bits(c):08x}")
    A("v_mul_f32 v116, s72, v116")
    for p in range(4): A(f"v_fma_f32 v{96+p}, v{96+p}, s72, -v116")
    for p in range(4): A(f"v_exp_f32 v{96+p}, v{96+p}")
    for p in range(4): A(f"v_cvt_pk_bf16_f32 v{100+p}, v{96+p}, v{96+p}")
    for p in range(4): A(f"v_and_b32 v{96+p}, 0xffff0000, v{100+p}")
    for t in range(8):
        p, u = t // 2, t % 2
        at = 104 if t % 2 == 0 else 108
        for r in range(4):
            direct = (r < 2) if u == 0 else (r >= 2)
            if direct: A(f"v_and_b32 v{at+r}, v{100+p}, v{124+r}")
            else: g.dpp("v_and_b32", at+r, 100+p, 124+r, "row_half_mirror")
        if t == 0:
            A("v_add_f32 v118, v96, v97"); A("v_add_f32 v119, v98, v99"); A("v_add_f32 v118, v118, v119")
        if t == 1:
            g.dpp("v_add_f32", 118, 118, 118, "row_half_mirror")
        if t == 2:
            A("v_mov_b32 v117, v118")
        if t == 3:
            A("v_permlane16_swap_b32 v118, v117")
        if t == 4:
            A("v_add_f32 v118, v118, v117"); A("v_mov_b32 v117, v118")
        if t == 5:
            A("v_permlane32_swap_b32 v118, v117")
        if t == 6:
            A("v_add_f32 v117, v118, v117")
        A(f"s_waitcnt vmcnt({7-t})")
        g.nop(1)
        cin = "0" if t == 0 else "v[112:115]"
        A(f"v_mfma_f32_16x16x32_bf16 v[112:115], v[{at}:{at+3}], v[{40+4*t}:{43+4*t}], {cin}")
    g.stamp(6)
    A("s_mov_b64 exec, 0x101")
    A(f"ds_write_b64 v121, v[116:117] offset:{L_ML}")
    A("s_mov_b64 exec, -1")
    A("v_lshlrev_b32 v3, 4, v1")
    A("v_lshrrev_b32 v4, 5, v1"); A("v_lshlrev_b32 v122, 3, v4")
    A("v_lshlrev_b32 v5, 13, v4"); A("v_and_b32 v123, 31, v1"); A("v_lshlrev_b32 v123, 4, v123"); A("v_add_u32 v5, v5, v123")
    A("v_lshlrev_b32 v123, 7, v4")
    A(f"ds_write_b128 v120, v[112:115] offset:{L_OK}")
    g.lds_arrive(L_CNTKV)
    A("s_cmp_eq_u32 s72, 7"); A("s_cbranch_scc0 L_KV_done")
    A("s_setprio 3")
    for k in range(8):
        A(f"ds_read_b64 v[{8+2*k}:{9+2*k}], v122 offset:{L_ML + 16*k}")
    for k in range(7):
        A(f"ds_read_b128 v[{24+4*k}:{27+4*k}], v3 offset:{L_OK + 1024*k}")
    A("s_waitcnt lgkmcnt(7)")
    A(f"ds_read_b128 v[52:55], v3 offset:{L_OK + 1024*7}")
    A("v_max3_f32 v56, v8, v10, v12"); A("v_max3_f32 v57, v14, v16, v18"); A("v_max3_f32 v56, v56, v20, v22"); A("v_max_f32 v56, v56, v57")
    for k in range(8): A(f"v_sub_f32 v{8+2*k}, v{8+2*k}, v56")
    for k in range(8): A(f"v_exp_f32 v{8+2*k}, v{8+2*k}")
    A("v_mov_b32 v65, s94"); A("v_mov_b32 v67, s94"); A("v_mov_b32 v69, s94")
    A("v_mul_f32 v57, v8, v9")
    for k in range(1, 8): A(f"v_fma_f32 v57, v{8+2*k}, v{9+2*k}, v57")
    A("v_rcp_f32 v58, v57"); A("v_log_f32 v59, v57")
    A("s_waitcnt lgkmcnt(0)")
    for r in range(4): A(f"v_mul_f32 v{60+r}, v{24+r}, v8")
    for k in range(1, 8):
        for r in range(4): A(f"v_fma_f32 v{60+r}, v{24+4*k+r}, v{8+2*k}, v{60+r}")
    for r in range(4): A(f"v_mul_f32 v{60+r}, v{60+r}, v58")
    A("v_add_f32 v68, v56, v59")
    A("v_cvt_pk_bf16_f32 v64, v60, v61"); A("v_cvt_pk_bf16_f32 v66, v62, v63")
    A("buffer_store_dwordx4 v[64:67], v5, s[96:99], s80 offen")
    A("s_mov_b32 exec_lo, 1"); A("s_mov_b32 exec_hi, 1")
    A("buffer_store_dwordx2 v[68:69], v123, s[96:99], s82 offen")
    A("buffer_store_dwordx2 v[68:69], v123, s[96:99], s83 offen sc1")
    A("s_mov_b64 exec, -1")
    if P.FGATE == 1: g.lds_signal(L_FLAGPUB)
    A("buffer_store_dwordx4 v[64:67], v5, s[96:99], s81 offen sc1")
    g.stamp(7)
    A("L_KV_done:")
    A("s_cmp_eq_u32 s36, 2"); A("s_cbranch_scc1 L_h3_kv")
    A("s_cmp_eq_u32 s36, 0"); A("s_cbranch_scc1 L_fin")
    A("s_cmp_lt_u32 s90, 4"); A("s_cselect_b32 s72, 5, 1"); A("s_cmp_ge_u32 s37, s72"); A("s_cbranch_scc1 L_fin")
    A("L_h3_kv:")
    if P.H3WAIT:
        A("s_cmp_eq_u32 s36, 2"); A("s_cbranch_scc1 L_h3_w2")
        A("s_cmp_ge_u32 s90, 4"); A("s_cbranch_scc1 L_h3_w0")
        g.lds_wait(L_CNTDP, 3, slp=1)
        A("s_branch L_h3_w0")
        A("L_h3_w2:")
        g.lds_wait(L_CNTDP, 6, slp=1)
        A("L_h3_w0:")
    A("s_mov_b32 s86, s95"); A("s_add_u32 s87, s95, 9")
    A("s_branch L_h3")
    A("L_h3_slot16:")
    if P.H3WAIT:
        A("s_cmp_eq_u32 s36, 2"); A("s_cbranch_scc1 L_h3_v2")
        A("s_cmp_ge_u32 s90, 4"); A("s_cbranch_scc1 L_h3_v0")
        g.lds_wait(L_CNTDP, 3, slp=1)
        A("s_branch L_h3_v0")
        A("L_h3_v2:")
        g.lds_wait(L_CNTDP, 6, slp=1)
        A("L_h3_v0:")
    A("s_mov_b32 s86, 8"); A("s_mov_b32 s87, 17")
    A("L_h3:")
    A("s_setprio 3")
    A("s_mul_i32 s85, s90, 9")
    A("s_cmp_lt_u32 s90, 4"); A("s_cselect_b32 s72, 4, 8"); A("s_add_u32 s72, s72, s37")
    A("s_cmp_eq_u32 s36, 2"); A("s_cselect_b32 s72, s37, s72"); A("s_add_u32 s85, s85, s72")
    A("s_lshl_b32 s80, s86, 4")
    A("s_cmp_eq_u32 s87, 17"); A("s_cselect_b32 s81, 8, s87"); A("s_lshl_b32 s81, s81, 4")
    A("s_mul_i32 s80, s80, 4608"); A("s_mul_i32 s81, s81, 4608")
    A("s_lshl_b32 s72, s85, 6"); A(f"s_add_u32 s72, s72, {WS_PG}")
    A("s_add_u32 s80, s80, s72"); A("s_add_u32 s81, s81, s72")
    A("v_lshrrev_b32 v8, 2, v1"); A("v_mul_u32_u24 v8, 4608, v8"); A("v_and_b32 v9, 3, v1"); A("v_lshlrev_b32 v9, 4, v9"); A("v_add_u32 v8, v8, v9")
    A("v_lshlrev_b32 v9, 3, v1")
    A("s_lshl_b32 s72, s86, 5"); A("v_add_u32 v10, s72, v9")
    A("s_lshl_b32 s72, s87, 5"); A("v_add_u32 v11, s72, v9")
    g.srd(32, 4, 5, 1152)
    g.srd(28, 22, 23, 1152)
    A("s_lshl_b32 s72, s85, 4")
    A("v_lshlrev_b32 v30, 1, v1"); A("v_add_u32 v30, s72, v30")
    A("v_lshlrev_b32 v31, 2, v1")
    A("s_mov_b64 exec, 0xff")
    A("buffer_load_ushort v32, v30, s[32:35], 0 offen")
    A("s_mov_b64 exec, -1")
    g.stamp(13)
    if P.H3SENT:
        A("s_mov_b32 exec_lo, 0"); A("s_mov_b32 exec_hi, 0x80000000")
        g.poll(["buffer_load_dwordx4 v[12:15], v8, s[96:99], s80 offen sc1"], [13, 15], 2, "FS")
        A("s_mov_b64 exec, -1")
    g.poll(["buffer_load_dwordx4 v[12:15], v8, s[96:99], s80 offen sc1", "buffer_load_dwordx4 v[16:19], v8, s[96:99], s81 offen sc1"],
           [13, 15, 17, 19], P.SLP_F, "FP", masked=True)
    A("s_mov_b64 exec, -1")
    g.stamp(14)
    for ctrl in ("row_ror:4", "row_ror:8"):
        g.nop(1)
        for r in (12, 14, 16, 18): g.dpp("v_add_f32", r, r, r, ctrl)
    g.xrow_multi("v_add_f32", [12, 14, 16, 18], [20, 21, 22, 23])
    A("v_mov_b32 v13, v14"); A("v_mov_b32 v17, v18")
    A("s_mov_b64 exec, 0xf")
    A(f"ds_write_b64 v10, v[12:13] offset:{L_H3S}")
    A(f"ds_write_b64 v11, v[16:17] offset:{L_H3S}")
    A("s_mov_b64 exec, -1")
    g.lds_arrive(L_CNTH3)
    A("s_cmp_eq_u32 s72, 8"); A("s_cbranch_scc0 L_fin")
    A("s_mov_b64 exec, 0xff")
    for sl in range(15):
        A(f"ds_read_b32 v{12+sl}, v31 offset:{L_H3S + 32*sl}")
    A("s_waitcnt lgkmcnt(6)")
    for sl in (15, 16): A(f"ds_read_b32 v{40+sl}, v31 offset:{L_H3S + 32*sl}")
    A("v_add_f32 v12, v12, v13"); A("v_add_f32 v14, v14, v15"); A("v_add_f32 v16, v16, v17"); A("v_add_f32 v18, v18, v19")
    A("v_add_f32 v12, v12, v14"); A("v_add_f32 v16, v16, v18"); A("v_add_f32 v12, v12, v20"); A("v_add_f32 v12, v12, v16")
    g.rne(12)
    g.silu4(12, 13, n=1)
    A("s_waitcnt lgkmcnt(0)")
    A("v_add_f32 v21, v21, v22"); A("v_add_f32 v23, v23, v24"); A("v_add_f32 v25, v25, v26"); A("v_add_f32 v55, v55, v56")
    A("v_add_f32 v21, v21, v23"); A("v_add_f32 v25, v25, v55"); A("v_add_f32 v21, v21, v25")
    g.rne(21)
    A("v_mul_f32 v13, v13, v21")
    g.rne(13)
    A("v_lshlrev_b32 v32, 16, v32")
    A("v_add_f32 v13, v13, v32")
    A("v_cvt_pk_bf16_f32 v13, v13, v13")
    A("buffer_store_short v13, v30, s[28:31], 0 offen")
    A("s_cmp_lg_u32 s85, 0"); A("s_cbranch_scc1 L_fin_x")
    A("s_mov_b64 exec, 1")
    A("v_mov_b32 v14, s94"); A("v_mov_b32 v15, 0")
    A(f"buffer_store_dword v14, v15, s[96:99], 0 offen offset:{WS_EPOCH} sc1")
    A("L_fin_x:")
    A("s_mov_b64 exec, -1")
    g.stamp(15)
    A("L_fin:")
    if stamps:
        A("s_mov_b64 exec, -1")
        A("s_waitcnt lgkmcnt(0)")
        for i in range(16):
            A(f"v_writelane_b32 v8, s{40+2*i}, {i}"); A(f"v_writelane_b32 v9, s{41+2*i}, {i}")
        A("s_lshl_b32 s72, s2, 4"); A("s_add_u32 s72, s72, s3"); A("s_lshl_b32 s72, s72, 7"); A(f"s_add_u32 s72, s72, {WS_STAMP}")
        A("v_lshlrev_b32 v3, 3, v1")
        A("s_mov_b64 exec, 0xffff")
        A("buffer_store_dwordx2 v[8:9], v3, s[96:99], s72 offen")
    A("L_end:"); A("s_endpgm")
    A('.section .rodata,"a"'); A(".p2align 6"); A(f".amdhsa_kernel {NAME}_kernel")
    A("  .amdhsa_next_free_vgpr 128"); A("  .amdhsa_next_free_sgpr 102"); A("  .amdhsa_accum_offset 128")
    A("  .amdhsa_group_segment_fixed_size 0"); A("  .amdhsa_kernarg_size 96"); A("  .amdhsa_user_sgpr_count 2")
    A("  .amdhsa_user_sgpr_kernarg_segment_ptr 1"); A("  .amdhsa_system_sgpr_workgroup_id_x 1")
    A("  .amdhsa_float_denorm_mode_32 3")
    A(".end_amdhsa_kernel")
    return "\n".join(g.L) + "\n"

if __name__ == "__main__":
    ap = argparse.ArgumentParser(); ap.add_argument("-o", default="k6.s"); ap.add_argument("--stamps", action="store_true")
    ap.add_argument("--set", action="append", default=[])
    a = ap.parse_args()
    for kv in a.set:
        k, v = kv.split("="); setattr(P, k, int(v, 0))
    open(a.o, "w").write(gen(a.stamps))
```

```python
import sys, argparse, struct
NAME = "recurrent_scan__sliding_block_cached__swiglu_ffn__decode"
def f32bits(x): return struct.unpack("<I", struct.pack("<f", x))[0]

WS_EPOCH = 0x0
WS_XT = 0x8000
WS_QG = 0x10000
WS_XG = 0x20000
WS_LG = 0x68000
WS_AG = 0x70000
WS_PG = 0xC0000
WS_B = 0x400000
WS_STAMP = 0x800000
L_CNTP1, L_CNTKVI, L_FLAGQ, L_CNTKV, L_FLAGX0, L_FLAGX1, L_CNTH3, L_FLAGPUB, L_FLAGQP, L_CNTP1I, L_CNTDP = 0, 4, 8, 12, 16, 20, 24, 28, 32, 36, 40
L_XRAW = 0x40
L_QL = 0x500
L_ML = 0x700
L_X2U = 0x780
L_H3S = 0x880
L_P1 = 0x1000
L_OK = 0x3000
L_TB = 0x5000
LDS_BYTES = 0x7600

class P:
    KVD = 6; DD_F = 12; DD_O = 6
    SLP_Q = 2; SLP_X = 4; SLP_H = 0; SLP_F = 0; SLP_L = 1
    XSENT = 0; H3SENT = 0; QSENT = 0
    FORCE_B = 0; KVD_Q = 0; KVD_O = 4; H3WAIT = 1; QPIPE = 1; QPIPE_WAIT = 6; KD = 0; KSW = 8; FGN = 1; P1D_F = 5; P1D_Q = 12; QGATE = 0; EARLYB = 2; NG_F = 6; NG_Q = 6; NF_LO = 20; NF_HI = 16; FGATE = 1; FGIDX = 18; KVIN = 8
    SPIN_G = 40000; SPIN_L = 400000

class G:
    def __init__(self, stamps=False):
        self.L = []; self.stamps = stamps; self.nlab = 0
    def A(self, s): self.L.append(s)
    def lab(self, base="L"):
        self.nlab += 1; return f"{base}_{self.nlab}"
    def srd(self, d, lo, hi, size):
        A = self.A
        A(f"s_mov_b32 s{d}, s{lo}"); A(f"s_mov_b32 s{d+1}, s{hi}"); A(f"s_mov_b32 s{d+2}, {size}"); A(f"s_mov_b32 s{d+3}, 0x20000")
    def stamp(self, i):
        if self.stamps: self.A(f"s_memrealtime s[{40+2*i}:{41+2*i}]")
    def nop(self, n):
        while n > 0:
            k = min(n, 16); self.A(f"s_nop {k-1}"); n -= k
    def lds_wait(self, addr, val, vt=6, vz=7, slp=None):
        A = self.A
        if slp is None: slp = P.SLP_L
        l = self.lab("LW"); e = self.lab("LWE")
        A(f"v_mov_b32 v{vz}, 0")
        A(f"s_mov_b32 s73, {P.SPIN_L}")
        A(f"{l}:")
        A(f"ds_read_b32 v{vt}, v{vz} offset:{addr}")
        A("s_waitcnt lgkmcnt(0)")
        A(f"v_readfirstlane_b32 s72, v{vt}")
        A(f"s_cmp_ge_u32 s72, {val}")
        A(f"s_cbranch_scc1 {e}")
        A("s_sub_u32 s73, s73, 1")
        A("s_cmp_eq_u32 s73, 0")
        A(f"s_cbranch_scc1 {e}")
        if slp: A(f"s_sleep {slp}")
        A(f"s_branch {l}")
        A(f"{e}:")
    def lds_signal(self, addr, vt=6, vz=7):
        A = self.A
        A(f"v_mov_b32 v{vz}, 0"); A(f"v_mov_b32 v{vt}, 1")
        A("s_waitcnt lgkmcnt(0)")
        A("s_mov_b64 s[74:75], exec"); A("s_mov_b64 exec, 1")
        A(f"ds_add_u32 v{vz}, v{vt} offset:{addr}")
        A("s_mov_b64 exec, s[74:75]")
    def lds_arrive(self, addr, vt=6, vz=7):
        A = self.A
        A(f"v_mov_b32 v{vz}, 0"); A(f"v_mov_b32 v{vt}, 1")
        A("s_waitcnt lgkmcnt(0)")
        A("s_mov_b64 s[74:75], exec"); A("s_mov_b64 exec, 1")
        A(f"ds_add_rtn_u32 v{vt}, v{vz}, v{vt} offset:{addr}")
        A("s_waitcnt lgkmcnt(0)")
        A(f"v_readfirstlane_b32 s72, v{vt}")
        A("s_mov_b64 exec, s[74:75]")
    def xrow(self, op, v, t):
        A = self.A
        A(f"v_mov_b32 v{t}, v{v}"); self.nop(2)
        A(f"v_permlane16_swap_b32 v{v}, v{t}"); self.nop(1)
        A(f"{op} v{v}, v{v}, v{t}")
        A(f"v_mov_b32 v{t}, v{v}"); self.nop(2)
        A(f"v_permlane32_swap_b32 v{v}, v{t}"); self.nop(1)
        A(f"{op} v{v}, v{v}, v{t}")
    def xrow_multi(self, op, vs, ts):
        A = self.A
        n = len(vs); assert n >= 3
        for v, t in zip(vs, ts): A(f"v_mov_b32 v{t}, v{v}")
        for v, t in zip(vs, ts): A(f"v_permlane16_swap_b32 v{v}, v{t}")
        self.nop(1)
        for v, t in zip(vs, ts): A(f"{op} v{v}, v{v}, v{t}")
        for v, t in zip(vs, ts): A(f"v_mov_b32 v{t}, v{v}")
        for v, t in zip(vs, ts): A(f"v_permlane32_swap_b32 v{v}, v{t}")
        self.nop(1)
        for v, t in zip(vs, ts): A(f"{op} v{v}, v{v}, v{t}")
    def dpp(self, op, d, s0, s1, ctrl):
        self.A(f"{op}_dpp v{d}, v{s0}, v{s1} {ctrl} row_mask:0xf bank_mask:0xf")
    def wave_sum2(self, v, w, t, u):
        for ctrl in ["quad_perm:[1,0,3,2]", "quad_perm:[2,3,0,1]", "row_half_mirror", "row_mirror"]:
            self.nop(1)
            self.dpp("v_add_f32", v, v, v, ctrl)
            self.dpp("v_add_f32", w, w, w, ctrl)
        A = self.A
        A(f"v_mov_b32 v{t}, v{v}"); A(f"v_mov_b32 v{u}, v{w}"); self.nop(1)
        A(f"v_permlane16_swap_b32 v{v}, v{t}"); A(f"v_permlane16_swap_b32 v{w}, v{u}"); self.nop(1)
        A(f"v_add_f32 v{v}, v{v}, v{t}"); A(f"v_add_f32 v{w}, v{w}, v{u}")
        A(f"v_mov_b32 v{t}, v{v}"); A(f"v_mov_b32 v{u}, v{w}"); self.nop(1)
        A(f"v_permlane32_swap_b32 v{v}, v{t}"); A(f"v_permlane32_swap_b32 v{w}, v{u}"); self.nop(1)
        A(f"v_add_f32 v{v}, v{v}, v{t}"); A(f"v_add_f32 v{w}, v{w}, v{u}")
    def rne(self, v):
        A = self.A
        A(f"v_cvt_pk_bf16_f32 v{v}, v{v}, v{v}")
        A(f"v_and_b32 v{v}, 0xffff0000, v{v}")
    def tagmul(self):
        A = self.A
        A("s_mul_i32 s94, s94, 1664525"); A("s_add_u32 s94, s94, 1013904223")
    def poll(self, loads, tagregs, slp, name, masked=False):
        A = self.A
        lp = self.lab(name); le = self.lab(name + "E")
        A(f"s_mov_b32 s73, {P.SPIN_G}")
        A(f"{lp}:")
        for l in loads: A(l)
        A("s_waitcnt vmcnt(0)")
        A(f"v_cmp_ne_u32 vcc, s94, v{tagregs[0]}")
        for r in tagregs[1:]:
            A(f"v_cmp_ne_u32 s[74:75], s94, v{r}"); A("s_or_b64 vcc, vcc, s[74:75]")
        A("s_cmp_eq_u64 vcc, 0"); A(f"s_cbranch_scc1 {le}")
        A("s_sub_u32 s73, s73, 1"); A("s_cmp_eq_u32 s73, 0"); A(f"s_cbranch_scc1 {le}")
        if masked: A("s_mov_b64 exec, vcc")
        if slp: A(f"s_sleep {slp}")
        A(f"s_branch {lp}")
        A(f"{le}:")
    def xt_check(self, vwg, dst, sdst):
        A = self.A
        A(f"v_lshlrev_b32 v{vwg}, 3, v{vwg}")
        self.poll([f"buffer_load_dwordx2 v[{dst}:{dst+1}], v{vwg}, s[96:99], s100 offen sc1"], [dst+1], 2, "XT")
        A(f"v_cmp_ne_u32 vcc, s101, v{dst}")
        A("s_cmp_eq_u64 vcc, 0")
        A(f"s_cselect_b32 {sdst}, 0, {WS_B}")
        if P.FORCE_B: A(f"s_mov_b32 {sdst}, {WS_B}")
    def silu4(self, src, dst, n=4):
        A = self.A
        for r in range(n): A(f"v_mul_f32 v{dst+r}, 0x{f32bits(-1.4426950408889634):08x}, v{src+r}")
        for r in range(n): A(f"v_exp_f32 v{dst+r}, v{dst+r}")
        if n < 2: self.nop(1)
        for r in range(n): A(f"v_add_f32 v{dst+r}, 1.0, v{dst+r}")
        for r in range(n): A(f"v_rcp_f32 v{dst+r}, v{dst+r}")
        if n < 2: self.nop(1)
        for r in range(n): A(f"v_mul_f32 v{dst+r}, v{dst+r}, v{src+r}")
        for r in range(n): self.rne(dst+r)

def gen(stamps=False):
    g = G(stamps); A = g.A
    A(f"; @launch grid=(256,1,1) block=(1024,1,1) lds={LDS_BYTES}")
    A('.amdgcn_target "amdgcn-amd-amdhsa--gfx950"')
    A(".text"); A(f".globl {NAME}_kernel"); A(".p2align 8"); A(f".type {NAME}_kernel,@function")
    A(f"{NAME}_kernel:")
    g.stamp(0)
    A("s_cmp_ge_u32 s2, 256"); A("s_cbranch_scc1 L_end")
    A("s_load_dwordx16 s[4:19], s[0:1], 0")
    A("s_load_dwordx8 s[20:27], s[0:1], 64")
    A("v_and_b32 v1, 63, v0")
    A("v_lshrrev_b32 v2, 6, v0")
    A("s_and_b32 s90, s2, 7")
    A("v_readfirstlane_b32 s3, v2")
    A("s_lshr_b32 s91, s2, 3")
    A("s_lshl_b32 s92, s90, 1"); A("s_lshr_b32 s72, s91, 4"); A("s_add_u32 s92, s92, s72")
    A("s_and_b32 s93, s91, 15")
    A("s_cmp_lt_u32 s90, 4")
    A(f"s_cselect_b32 s38, {P.NF_LO}, {P.NF_HI}")
    A(f"s_mul_i32 s72, s90, {P.NF_LO}"); A(f"s_mul_i32 s73, s90, {P.NF_HI}"); A(f"s_add_u32 s73, s73, {4*(P.NF_LO-P.NF_HI)}")
    A("s_cmp_lt_u32 s90, 4")
    A("s_cselect_b32 s39, s72, s73")
    A("s_mov_b32 s36, 0"); A("s_mov_b32 s37, s91")
    A("s_cmp_lt_u32 s91, s38"); A("s_cbranch_scc1 L_typed")
    A("s_mov_b32 s36, 1"); A("s_sub_u32 s37, s91, s38")
    A("s_cmp_lt_u32 s37, 8"); A("s_cbranch_scc1 L_typed")
    A("s_mov_b32 s36, 2"); A("s_sub_u32 s37, s37, 8")
    A("L_typed:")
    A(f"s_mov_b32 s100, {WS_XT}")
    A("s_getreg_b32 s101, hwreg(HW_REG_XCC_ID)"); A("s_and_b32 s101, s101, 15")
    A("v_and_b32 v2, 1, v1")
    A("v_mov_b32 v3, 0xffff")
    A("v_lshlrev_b32 v2, 4, v2")
    A("v_lshlrev_b32 v3, v2, v3")
    A("v_bfe_u32 v2, v1, 1, 2")
    for t in range(4):
        A(f"v_cmp_eq_u32 vcc, {t}, v2"); g.nop(2)
        A(f"v_cndmask_b32 v{124+t}, 0, v3, vcc")
    if stamps:
        for i in range(1, 16): A(f"s_mov_b64 s[{40+2*i}:{41+2*i}], 0")
    A("s_waitcnt lgkmcnt(0)")
    A(f"s_load_dword s94, s[26:27], {WS_EPOCH}")
    g.srd(96, 26, 27, 0x40000000)
    A("s_cmp_lt_u32 s3, 4"); A("s_cbranch_scc1 L_aux0")
    A("s_cmp_lt_u32 s3, 12"); A("s_cbranch_scc1 L_KV")
    A("s_sub_u32 s95, s3, 8"); A("s_branch L_aux")
    A("L_aux0:"); A("s_mov_b32 s95, s3")
    A("L_aux:")
    A("s_setprio 2")
    A("s_cmp_ge_u32 s95, 6"); A("s_cbranch_scc1 L_aux67")
    A("s_cmp_eq_u32 s36, 2"); A("s_cbranch_scc1 L_auxO")
    g.srd(32, 4, 5, 1152)
    A("v_lshlrev_b32 v5, 4, v1")
    A("buffer_load_dwordx4 v[56:59], v5, s[32:35], 0 offen")
    A("buffer_load_dwordx4 v[60:63], v5, s[32:35], 0 offen offset:1024")
    A("v_lshrrev_b32 v64, 4, v1"); A("v_and_b32 v65, 15, v1"); A("v_lshlrev_b32 v65, 4, v65")
    A("s_cmp_eq_u32 s36, 1"); A("s_cbranch_scc1 L_auxQ")
    A("s_add_u32 s72, s39, s91")
    A("s_lshr_b32 s88, s72, 2"); A("s_and_b32 s89, s72, 3")
    A("s_cmp_ge_u32 s95, 3"); A("s_cselect_b32 s73, 3, 0"); A("s_sub_u32 s73, s95, s73")
    A("s_mul_i32 s87, s89, 144"); A("s_mul_i32 s73, s73, 48"); A("s_add_u32 s87, s87, s73")
    A("s_cmp_lt_u32 s95, 3"); A("s_cselect_b32 s28, s16, s18"); A("s_cselect_b32 s29, s17, s19")
    A(f"s_mov_b32 s30, {576*4608*2}"); A("s_mov_b32 s31, 0x20000")
    A("s_mul_i32 s72, s87, 9216"); A("s_lshl_b32 s73, s88, 8"); A("s_add_u32 s72, s72, s73")
    A("v_mul_u32_u24 v5, 9216, v64"); A("v_add_u32 v5, v5, v65"); A("v_add_u32 v5, s72, v5")
    A(f"s_mov_b32 s76, {4*9216}")
    A("s_branch L_p1loadF")
    A("L_auxQ:")
    A("s_lshl_b32 s72, s90, 3"); A("s_add_u32 s72, s72, s37")
    A("s_lshr_b32 s88, s72, 1"); A("s_and_b32 s89, s72, 1")
    A("s_mul_i32 s87, s89, 288"); A("s_mul_i32 s72, s95, 48"); A("s_add_u32 s87, s87, s72")
    g.srd(28, 10, 11, 576*4096*2)
    A("s_lshl_b32 s72, s87, 13"); A("s_lshl_b32 s73, s88, 8"); A("s_add_u32 s72, s72, s73")
    A("v_lshlrev_b32 v5, 13, v64"); A("v_add_u32 v5, v5, v65"); A("v_add_u32 v5, s72, v5")
    A(f"s_mov_b32 s76, {4*8192}")
    def p1loads(dep):
        A("s_mov_b32 s77, 0")
        if P.EARLYB == 1:
            A("s_waitcnt lgkmcnt(0)"); g.tagmul(); A("s_barrier")
        for t in range(12):
            if P.EARLYB == 2 and t == 3:
                A("s_waitcnt lgkmcnt(0)"); g.tagmul(); A("s_barrier")
            if t >= dep: A(f"s_waitcnt vmcnt({dep-1})")
            A(f"buffer_load_dwordx4 v[{8+4*t}:{11+4*t}], v5, s[28:31], s77 offen nt")
            if t < 11: A("s_add_u32 s77, s77, s76")
    A("L_p1load:")
    p1loads(P.P1D_Q)
    A("s_branch L_p1ld_e")
    A("L_p1loadF:")
    p1loads(P.P1D_F)
    A("L_p1ld_e:")
    g.stamp(1)
    if P.EARLYB:
        g.lds_signal(L_CNTP1I)
    else:
        A("s_waitcnt lgkmcnt(0)")
        g.tagmul()
        A("s_barrier")
    g.stamp(2)
    A("s_waitcnt vmcnt(12)")
    A("v_lshlrev_b32 v5, 4, v1")
    A(f"ds_write_b128 v5, v[56:59] offset:{L_XRAW}")
    A("s_mov_b64 exec, 0xff")
    A(f"ds_write_b128 v5, v[60:63] offset:{L_XRAW+1024}")
    A("s_mov_b64 exec, -1")
    A("v_mov_b32 v64, 0"); A("v_mov_b32 v65, 0")
    A("v_mov_b32 v66, 0x3f803f80")
    for r in range(56, 64):
        A(f"v_dot2c_f32_bf16 v64, v{r}, v66")
        A(f"v_dot2c_f32_bf16 v65, v{r}, v{r}")
    A("s_lshl_b32 s72, s87, 1")
    A("v_lshrrev_b32 v5, 4, v1"); A("v_lshlrev_b32 v5, 1, v5"); A("v_add_u32 v5, s72, v5")
    A("s_waitcnt lgkmcnt(0)")
    for t in range(12):
        A(f"ds_read_u16 v{68+t}, v5 offset:{L_XRAW + 8*t}")
    g.wave_sum2(64, 65, 66, 67)
    A(f"s_mov_b32 s72, 0x{f32bits(1.0/576):08x}")
    A("v_mul_f32 v64, s72, v64")
    A("v_mul_f32 v65, s72, v65")
    A("v_fma_f32 v65, -v64, v64, v65")
    A("v_max_f32 v65, 0, v65")
    g.rne(64); g.rne(65)
    A(f"v_add_f32 v65, 0x{f32bits(1e-5):08x}, v65")
    g.rne(65)
    A("v_sqrt_f32 v65, v65"); g.nop(1)
    g.rne(65)
    A("v_rcp_f32 v65, v65")
    A("s_waitcnt lgkmcnt(0)")
    for t in range(12): A(f"v_lshlrev_b32 v{68+t}, 16, v{68+t}")
    for t in range(12): A(f"v_sub_f32 v{68+t}, v{68+t}, v64")
    for t in range(12): A(f"v_cvt_pk_bf16_f32 v{68+t}, v{68+t}, v{68+t}")
    for t in range(12): A(f"v_and_b32 v{68+t}, 0xffff0000, v{68+t}")
    for t in range(12): A(f"v_mul_f32 v{68+t}, v{68+t}, v65")
    for t in range(12): A(f"v_cvt_pk_bf16_f32 v{68+t}, v{68+t}, v{68+t}")
    g.stamp(3)
    for r in range(88, 92): A(f"v_mov_b32 v{r}, 0")
    A("s_lshl_b32 s72, s95, 10")
    A("v_lshlrev_b32 v5, 4, v1"); A("v_add_u32 v5, s72, v5")
    for t in range(12):
        at = 80 if t % 2 == 0 else 84
        for r in range(4):
            A(f"v_and_b32 v{at+r}, v{68+t}, v{124+r}")
        A(f"s_waitcnt vmcnt({11-t})")
        g.nop(1)
        A(f"v_mfma_f32_16x16x32_bf16 v[88:91], v[{at}:{at+3}], v[{8+4*t}:{11+4*t}], v[88:91]")
    g.stamp(4)
    g.nop(8)
    A(f"ds_write_b128 v5, v[88:91] offset:{L_P1}")
    g.lds_signal(L_CNTP1)
    A("s_branch L_auxD")
    A("L_auxO:")
    A("s_waitcnt lgkmcnt(0)")
    g.tagmul()
    A("s_barrier")
    g.stamp(2)
    A("s_branch L_auxD")
    A("L_aux67:")
    A("s_waitcnt lgkmcnt(0)")
    g.tagmul()
    A("s_barrier")
    g.stamp(2)
    A("s_setprio 3")
    A("s_cmp_eq_u32 s95, 7"); A("s_cbranch_scc1 L_a7")
    A("s_cmp_eq_u32 s36, 2"); A("s_cbranch_scc1 L_a6_h2")
    A("s_cmp_eq_u32 s36, 0"); A("s_cbranch_scc1 L_a6_F")

    A("s_lshl_b32 s72, s90, 3"); A("s_add_u32 s72, s72, s37")
    A("s_lshr_b32 s88, s72, 1"); A("s_and_b32 s89, s72, 1")
    A("v_bfe_u32 v8, v1, 1, 4"); A("v_and_b32 v9, 1, v1"); A("v_lshlrev_b32 v9, 4, v9"); A("v_add_u32 v8, v8, v9"); A("v_lshlrev_b32 v8, 4, v8")
    A("v_lshrrev_b32 v9, 5, v1"); A("v_mul_u32_u24 v9, 3072, v9"); A("v_add_u32 v8, v8, v9")
    A("s_lshl_b32 s72, s88, 11"); A("s_lshl_b32 s73, s89, 10"); A("s_add_u32 s80, s72, s73"); A(f"s_add_u32 s80, s80, {WS_QG}"); A(f"s_add_u32 s81, s80, {WS_B}")
    A("v_lshlrev_b32 v10, 5, v1")
    A("v_mov_b32 v21, s94"); A("v_mov_b32 v23, s94"); A("v_mov_b32 v25, s94"); A("v_mov_b32 v27, s94")
    g.lds_wait(L_CNTP1, 6)
    g.stamp(5)
    for w in range(3):
        A(f"ds_read_b128 v[{12+4*w if w == 0 else 28+4*w}:{15+4*w if w == 0 else 31+4*w}], v8 offset:{L_P1 + w*1024}")
    A("s_waitcnt lgkmcnt(1)")
    A("v_pk_add_f32 v[12:13], v[12:13], v[32:33]"); A("v_pk_add_f32 v[14:15], v[14:15], v[34:35]")
    A("s_waitcnt lgkmcnt(0)")
    A("v_pk_add_f32 v[12:13], v[12:13], v[36:37]"); A("v_pk_add_f32 v[14:15], v[14:15], v[38:39]")
    g.nop(1)
    for r in range(4): A(f"v_mov_b32 v{16+r}, v{12+r}")
    for r in range(4): A(f"v_permlane32_swap_b32 v{12+r}, v{16+r}")
    g.nop(1)
    A("v_add_f32 v20, v12, v16"); A("v_add_f32 v22, v13, v17"); A("v_add_f32 v24, v14, v18"); A("v_add_f32 v26, v15, v19")
    A("s_mov_b32 exec_hi, 0")
    A("buffer_store_dwordx4 v[20:23], v10, s[96:99], s80 offen")
    A("buffer_store_dwordx4 v[24:27], v10, s[96:99], s80 offen offset:16")
    if P.QGATE:
        A("s_mov_b64 exec, -1")
        g.lds_signal(L_FLAGQP)
        A("s_mov_b32 exec_hi, 0")
    A("buffer_store_dwordx4 v[20:23], v10, s[96:99], s81 offen sc1")
    A("buffer_store_dwordx4 v[24:27], v10, s[96:99], s81 offen offset:16 sc1")
    A("s_mov_b64 exec, -1")
    g.stamp(6)
    A("s_cmp_lt_u32 s90, 4"); A("s_cbranch_scc1 L_a6_h2")
    A("s_cmp_eq_u32 s37, 0"); A("s_cbranch_scc1 L_h3_slot16")
    A("s_branch L_fin")

    A("L_a6_F:")
    A("s_add_u32 s72, s39, s91")
    A("s_lshr_b32 s88, s72, 2"); A("s_and_b32 s89, s72, 3")
    A("v_lshrrev_b32 v10, 4, v1")
    A("s_and_b32 s72, s91, 0xfc"); A("v_add_u32 v40, s72, v10")
    A("v_lshlrev_b32 v40, 3, v40"); A("v_add_u32 v40, s90, v40")
    g.xt_check(40, 42, "s86")
    A("v_lshlrev_b32 v8, 2, v10"); A("v_bfe_u32 v9, v1, 1, 2"); A("v_add_u32 v8, v8, v9"); A("v_and_b32 v9, 1, v1"); A("v_lshlrev_b32 v9, 4, v9"); A("v_add_u32 v8, v8, v9")
    A("v_lshlrev_b32 v8, 4, v8")
    A("v_bfe_u32 v9, v1, 3, 1"); A("v_mul_u32_u24 v9, 3072, v9"); A("v_add_u32 v8, v8, v9")
    A("v_cmp_ne_u32 s[76:77], s89, v10")
    A("v_and_b32 v9, 15, v1"); A("v_lshlrev_b32 v9, 5, v9")
    A("v_lshlrev_b32 v11, 11, v10"); A("v_add_u32 v11, v11, v9")
    A("v_lshlrev_b32 v10, 9, v10"); A("v_add_u32 v9, v10, v9")
    A("s_lshl_b32 s72, s88, 13"); A(f"s_add_u32 s72, s72, {WS_XG}")
    A("s_lshl_b32 s73, s89, 9"); A("s_add_u32 s80, s72, s73"); A(f"s_add_u32 s82, s80, {WS_B}")
    A("s_lshl_b32 s73, s89, 11"); A("s_add_u32 s81, s72, s73"); A("s_add_u32 s81, s81, s86")
    A("v_mov_b32 v21, s94"); A("v_mov_b32 v23, s94"); A("v_mov_b32 v25, s94"); A("v_mov_b32 v27, s94")
    A("s_mov_b32 s78, 0x80008000"); A("s_mov_b32 s79, 0x80008000"); A("s_and_b64 s[78:79], s[78:79], s[76:77]")
    g.lds_wait(L_CNTP1, 6)
    g.stamp(5)
    A(f"ds_read_b128 v[12:15], v8 offset:{L_P1}")
    A(f"ds_read_b128 v[32:35], v8 offset:{L_P1+1024}")
    A(f"ds_read_b128 v[36:39], v8 offset:{L_P1+2048}")
    A("s_waitcnt lgkmcnt(1)")
    A("v_pk_add_f32 v[12:13], v[12:13], v[32:33]"); A("v_pk_add_f32 v[14:15], v[14:15], v[34:35]")
    A("s_waitcnt lgkmcnt(0)")
    A("v_pk_add_f32 v[12:13], v[12:13], v[36:37]"); A("v_pk_add_f32 v[14:15], v[14:15], v[38:39]")
    g.nop(1)
    A("v_mov_b32 v20, v12"); A("v_mov_b32 v22, v13"); A("v_mov_b32 v24, v14"); A("v_mov_b32 v26, v15")
    A("s_mov_b64 exec, s[76:77]")
    A("buffer_store_dwordx4 v[20:23], v11, s[96:99], s80 offen")
    A("buffer_store_dwordx4 v[24:27], v11, s[96:99], s80 offen offset:16")
    A("buffer_store_dwordx4 v[20:23], v11, s[96:99], s82 offen sc1")
    A("buffer_store_dwordx4 v[24:27], v11, s[96:99], s82 offen offset:16 sc1")
    g.stamp(6)
    if P.XSENT:
        A("s_mov_b64 exec, s[78:79]")
        g.poll(["buffer_load_dwordx4 v[28:31], v9, s[96:99], s81 offen offset:16 sc1"], [29, 31], P.SLP_X, "XS")
        A("s_mov_b64 exec, s[76:77]")
    g.poll(["buffer_load_dwordx4 v[28:31], v9, s[96:99], s81 offen sc1", "buffer_load_dwordx4 v[32:35], v9, s[96:99], s81 offen offset:16 sc1"], [29, 31, 33, 35], P.SLP_X, "XP")
    g.stamp(7)
    A("v_mov_b32 v12, v28"); A("v_mov_b32 v13, v30"); A("v_mov_b32 v14, v32"); A("v_mov_b32 v15, v34")
    A("s_mov_b64 exec, -1")
    g.xrow_multi("v_add_f32", [12, 13, 14, 15], [16, 17, 18, 19])
    g.nop(1)
    for r in range(4): A(f"v_mov_b32_dpp v{16+r}, v{12+r} row_ror:8 row_mask:0xf bank_mask:0xf")
    for r in range(4):
        g.rne(12+r); g.rne(16+r)
    g.silu4(12, 20)
    for r in range(4): A(f"v_mul_f32 v{20+r}, v{20+r}, v{16+r}")
    for r in range(4): A(f"v_cvt_pk_bf16_f32 v{20+r}, v{20+r}, v{20+r}")
    A("v_lshlrev_b32 v8, 4, v1")
    A("s_mov_b64 exec, 0xff")
    A(f"ds_write_b128 v8, v[20:23] offset:{L_X2U}")
    A("s_mov_b64 exec, -1")
    g.lds_signal(L_FLAGX0)
    g.stamp(8)
    A("s_branch L_fin")

    A("L_a6_h2:")
    A("s_mov_b32 s86, 0")
    A("L_h2:")
    A("s_cmp_eq_u32 s36, 2"); A("s_cbranch_scc1 L_h2_O")
    A("s_add_u32 s85, s37, 8"); A("s_branch L_h2_go")
    A("L_h2_O:")
    A("s_lshl_b32 s85, s37, 1"); A("s_add_u32 s85, s85, s86")
    A("L_h2_go:")
    A("s_lshl_b32 s72, s90, 4"); A("s_add_u32 s85, s85, s72")
    A("s_lshr_b32 s84, s85, 2"); A("s_and_b32 s83, s85, 3")
    A("s_lshr_b32 s72, s84, 1"); A("s_and_b32 s73, s72, 1"); A("s_lshl_b32 s73, s73, 7"); A("s_lshr_b32 s72, s72, 1"); A("s_add_u32 s72, s72, s73")
    A("v_and_b32 v40, 15, v1"); A("v_lshlrev_b32 v40, 3, v40"); A("v_add_u32 v40, s72, v40")
    g.xt_check(40, 42, "s87")
    A("s_lshl_b32 s72, s84, 13"); A("s_lshl_b32 s73, s83, 7"); A("s_add_u32 s80, s72, s73"); A(f"s_add_u32 s80, s80, {WS_AG}"); A("s_add_u32 s80, s80, s87")
    A("s_add_u32 s81, s80, 4096")
    A("v_lshrrev_b32 v8, 3, v1"); A("v_lshlrev_b32 v9, 9, v8"); A("v_and_b32 v10, 7, v1"); A("v_lshlrev_b32 v10, 4, v10"); A("v_add_u32 v9, v9, v10")
    A("v_lshlrev_b32 v8, 4, v8")
    A("s_lshl_b32 s82, s84, 7"); A(f"s_add_u32 s82, s82, {WS_LG}"); A("s_add_u32 s82, s82, s87")
    A("s_lshl_b32 s72, s86, 7")
    A("v_lshlrev_b32 v11, 4, v1"); A("v_add_u32 v11, s72, v11")
    g.lds_wait(L_CNTKV, 8)
    g.stamp(9)
    g.poll(["buffer_load_dwordx4 v[20:23], v8, s[96:99], s82 offen sc1",
            "buffer_load_dwordx4 v[12:15], v9, s[96:99], s80 offen sc1",
            "buffer_load_dwordx4 v[16:19], v9, s[96:99], s81 offen sc1"], [21, 23, 13, 15, 17, 19], P.SLP_H, "HP")
    g.stamp(10)
    A("v_max_f32 v24, v20, v22")
    A("v_lshlrev_b32 v26, 16, v12"); A("v_and_b32 v27, 0xffff0000, v12")
    g.dpp("v_max_f32", 24, 24, 24, "row_ror:8")
    A("v_lshlrev_b32 v28, 16, v14"); A("v_and_b32 v29, 0xffff0000, v14")
    A("v_mov_b32 v25, v24")
    A("v_lshlrev_b32 v30, 16, v16"); A("v_and_b32 v31, 0xffff0000, v16")
    A("v_permlane16_swap_b32 v24, v25")
    A("v_lshlrev_b32 v32, 16, v18")
    A("v_max_f32 v24, v24, v25")
    A("v_and_b32 v33, 0xffff0000, v18")
    A("v_mov_b32 v25, v24"); g.nop(2)
    A("v_permlane32_swap_b32 v24, v25"); g.nop(1)
    A("v_max_f32 v24, v24, v25")
    A("v_sub_f32 v20, v20, v24"); A("v_sub_f32 v22, v22, v24")
    A("v_exp_f32 v20, v20"); A("v_exp_f32 v22, v22"); g.nop(1)
    A("v_add_f32 v24, v20, v22")
    for r in range(4): A(f"v_mul_f32 v{26+r}, v{26+r}, v20")
    for r in range(4): A(f"v_fma_f32 v{26+r}, v{30+r}, v22, v{26+r}")
    for r in (24, 26, 27, 28, 29): g.dpp("v_add_f32", r, r, r, "row_ror:8")
    g.xrow_multi("v_add_f32", [24, 26, 27, 28, 29], [34, 35, 36, 37, 38])
    A("v_rcp_f32 v24, v24"); g.nop(1)
    for r in range(4): A(f"v_mul_f32 v{26+r}, v{26+r}, v24")
    for r in range(4): A(f"v_cvt_pk_bf16_f32 v{26+r}, v{26+r}, v{26+r}")
    A("s_mov_b64 exec, 0xff")
    A(f"ds_write_b128 v11, v[26:29] offset:{L_X2U}")
    A("s_mov_b64 exec, -1")
    A("s_cmp_eq_u32 s86, 0"); A("s_cbranch_scc1 L_h2_f0")
    g.lds_signal(L_FLAGX1)
    g.stamp(11)
    A("s_branch L_fin")
    A("L_h2_f0:")
    g.lds_signal(L_FLAGX0)
    g.stamp(11)
    A("s_cmp_eq_u32 s36, 2"); A("s_cbranch_scc1 L_h3_slot16")
    A("s_cmp_lt_u32 s37, 5"); A("s_cbranch_scc1 L_h3_slot16")
    A("s_branch L_fin")

    A("L_a7:")
    A("s_and_b32 s72, s92, 1"); A("s_lshl_b32 s72, s72, 2"); A("s_add_u32 s72, s72, s38"); A("s_lshl_b32 s72, s72, 3"); A("s_lshr_b32 s73, s92, 1"); A("s_add_u32 s72, s72, s73")
    A("v_and_b32 v40, 3, v1"); A("v_lshlrev_b32 v40, 3, v40"); A("v_add_u32 v40, s72, v40")
    A("v_lshlrev_b32 v40, 3, v40")
    A("s_lshl_b32 s72, s92, 12"); A(f"s_add_u32 s80, s72, {WS_QG}")
    if P.FORCE_B: A(f"s_add_u32 s80, s80, {WS_B}")
    A(f"s_add_u32 s81, s72, {WS_QG + WS_B}")
    A("v_lshlrev_b32 v8, 4, v1"); A("v_lshlrev_b32 v10, 2, v1")
    g.stamp(8)
    if P.QPIPE:
        if P.QPIPE_WAIT:
            A("s_cmp_eq_u32 s36, 2"); A("s_cbranch_scc1 L_q_nw")
            g.lds_wait(L_CNTP1, P.QPIPE_WAIT, slp=2)
            A("L_q_nw:")
        sets = [(12, 42), (44, 60)]
        def issue(si):
            b, xb = sets[si]
            for i in range(4):
                A(f"buffer_load_dwordx4 v[{b+4*i}:{b+3+4*i}], v8, s[96:99], s80 offen offset:{1024*i} sc1")
            A(f"buffer_load_dwordx2 v[{xb}:{xb+1}], v40, s[96:99], s100 offen sc1")
        def check(si, done, nxt):
            b, xb = sets[si]
            A("s_waitcnt vmcnt(5)")
            A(f"v_cmp_ne_u32 vcc, s94, v{b+1}")
            for r in (3, 5, 7, 9, 11, 13, 15):
                A(f"v_cmp_ne_u32 s[74:75], s94, v{b+r}"); A("s_or_b64 vcc, vcc, s[74:75]")
            A("s_cmp_eq_u64 vcc, 0"); A(f"s_cbranch_scc1 {done}")
            A("s_sub_u32 s73, s73, 1"); A("s_cmp_eq_u32 s73, 0"); A(f"s_cbranch_scc1 {done}")
            A(f"v_cmp_ne_u32 vcc, s94, v{xb+1}")
            A("s_cmp_eq_u64 vcc, 0"); A(f"s_cbranch_scc0 {nxt}")
            A(f"v_cmp_ne_u32 vcc, s101, v{xb}")
            A("s_cmp_eq_u64 vcc, 0")
            A("s_cselect_b32 s80, s82, s81")
            A(f"{nxt}:")
        A("s_mov_b32 s82, s80")
        A(f"s_mov_b32 s73, {P.SPIN_G}")
        issue(0)
        A("L_qp_loop:")
        issue(1)
        check(0, "L_qp_d0", "L_qp_n0")
        issue(0)
        check(1, "L_qp_d1", "L_qp_n1")
        A("s_branch L_qp_loop")
        for si, lab in ((1, "L_qp_d1"), (0, "L_qp_d0")):
            b = sets[si][0]
            A(f"{lab}:")
            g.stamp(9)
            A(f"v_add_f32 v{b}, v{b}, v{b+4}"); A(f"v_add_f32 v{b+2}, v{b+2}, v{b+6}"); A(f"v_add_f32 v{b+8}, v{b+8}, v{b+12}"); A(f"v_add_f32 v{b+10}, v{b+10}, v{b+14}")
            A(f"v_cvt_pk_bf16_f32 v62, v{b}, v{b+2}"); A(f"v_cvt_pk_bf16_f32 v63, v{b+8}, v{b+10}")
            A(f"ds_write_b32 v10, v62 offset:{L_QL}")
            A(f"ds_write_b32 v10, v63 offset:{L_QL+256}")
            if si == 1: A("s_branch L_qp_e")
        A("L_qp_e:")
    else:
        lp = g.lab("QP"); le = g.lab("QPE"); lx = g.lab("QPX")
        A(f"s_mov_b32 s73, {P.SPIN_G}")
        A("s_mov_b32 s82, 0")
        A(f"{lp}:")
        for i in range(4):
            A(f"buffer_load_dwordx4 v[{12+4*i}:{15+4*i}], v8, s[96:99], s80 offen offset:{1024*i} sc1")
        A("s_cmp_lg_u32 s82, 0"); A(f"s_cbranch_scc1 {lx}")
        A("buffer_load_dwordx2 v[42:43], v40, s[96:99], s100 offen sc1")
        A(f"{lx}:")
        A("s_waitcnt vmcnt(0)")
        A("v_cmp_ne_u32 vcc, s94, v13")
        for r in (15, 17, 19, 21, 23, 25, 27):
            A(f"v_cmp_ne_u32 s[74:75], s94, v{r}"); A("s_or_b64 vcc, vcc, s[74:75]")
        A("s_cmp_eq_u64 vcc, 0"); A(f"s_cbranch_scc1 {le}")
        A("s_sub_u32 s73, s73, 1"); A("s_cmp_eq_u32 s73, 0"); A(f"s_cbranch_scc1 {le}")
        A("s_cmp_lg_u32 s82, 0"); A(f"s_cbranch_scc1 {lp}_s")
        A("v_cmp_ne_u32 vcc, s94, v43")
        A("s_cmp_eq_u64 vcc, 0"); A(f"s_cbranch_scc0 {lp}_s")
        A("s_mov_b32 s82, 1")
        A("v_cmp_ne_u32 vcc, s101, v42")
        A("s_cmp_eq_u64 vcc, 0")
        A("s_cselect_b32 s80, s80, s81")
        A(f"{lp}_s:")
        if P.SLP_Q: A(f"s_sleep {P.SLP_Q}")
        A(f"s_branch {lp}")
        A(f"{le}:")
        g.stamp(9)
        A("v_add_f32 v12, v12, v16"); A("v_add_f32 v14, v14, v18"); A("v_add_f32 v20, v20, v24"); A("v_add_f32 v22, v22, v26")
        A("v_cvt_pk_bf16_f32 v12, v12, v14"); A("v_cvt_pk_bf16_f32 v20, v20, v22")
        A(f"ds_write_b32 v10, v12 offset:{L_QL}")
        A(f"ds_write_b32 v10, v20 offset:{L_QL+256}")
    g.lds_signal(L_FLAGQ)
    g.stamp(10)
    A("s_cmp_eq_u32 s36, 2"); A("s_cbranch_scc0 L_fin")
    A("s_mov_b32 s86, 1"); A("s_branch L_h2")

    A("L_auxD:")
    A("s_mov_b32 s86, 0"); A("s_mov_b32 s84, s95")
    A("s_cmp_eq_u32 s36, 2"); A("s_cbranch_scc1 L_D_O")
    A("s_cmp_ge_u32 s95, 3"); A("s_cbranch_scc1 L_fin")
    A("s_cmp_eq_u32 s36, 1"); A("s_cbranch_scc1 L_D_Q")
    g.srd(28, 20, 21, 4608*576*2)
    A("s_add_u32 s85, s39, s91")
    A("s_mov_b32 s83, s85")
    A("s_branch L_D_go")
    A("L_D_Q:")
    A("s_cmp_ge_u32 s90, 4"); A("s_cbranch_scc1 L_fin")
    A("s_add_u32 s85, s37, 8"); A("s_branch L_D_wo")
    A("L_D_O:")
    A("s_cmp_ge_u32 s95, 3"); A("s_cselect_b32 s86, 1, 0"); A("s_mul_i32 s72, s86, 3"); A("s_sub_u32 s84, s95, s72")
    A("s_lshl_b32 s85, s37, 1"); A("s_add_u32 s85, s85, s86")
    A("L_D_wo:")
    g.srd(28, 12, 13, 4096*576*2)
    A("s_lshl_b32 s72, s90, 4"); A("s_add_u32 s85, s85, s72")
    A("s_add_u32 s83, s85, 144")
    A("L_D_go:")
    A("s_setprio 0")
    A("v_lshrrev_b32 v3, 4, v1"); A("v_lshlrev_b32 v3, 1, v3"); A("v_bfe_u32 v4, v1, 3, 1"); A("v_add_u32 v3, v3, v4")
    A("v_and_b32 v4, 7, v1"); A("v_lshlrev_b32 v4, 4, v4")
    A(f"s_mul_i32 s72, s85, {32*1152}"); A("s_mul_i32 s73, s84, 384"); A("s_add_u32 s82, s72, s73")
    A("v_mul_u32_u24 v5, 1152, v3"); A("v_add_u32 v5, v5, v4"); A("v_add_u32 v5, s82, v5")
    A("s_lshl_b32 s72, s86, 7"); A("v_lshlrev_b32 v100, 2, v3"); A("v_add_u32 v100, s72, v100")
    A("v_bfe_u32 v101, v1, 3, 1"); A("v_lshrrev_b32 v102, 5, v1")
    A("v_cmp_eq_u32 s[78:79], v101, v102")
    A("v_mul_u32_u24 v101, 768, v102"); A("v_and_b32 v102, 7, v1"); A("v_lshlrev_b32 v102, 5, v102"); A("v_add_u32 v101, v101, v102")
    A("v_bfe_u32 v102, v1, 4, 1"); A("v_lshlrev_b32 v102, 4, v102"); A("v_add_u32 v101, v101, v102")
    A("s_mul_i32 s72, s95, 1536")
    A("v_add_u32 v101, s72, v101")
    A("v_lshlrev_b32 v102, 3, v1"); A("v_add_u32 v102, s72, v102")
    A("s_mul_i32 s72, s83, 4608"); A("s_mul_i32 s73, s84, 1536"); A("s_add_u32 s80, s72, s73"); A(f"s_add_u32 s80, s80, {WS_PG}")
    A("v_lshlrev_b32 v103, 4, v1")
    A("v_mov_b32 v105, s94"); A("v_mov_b32 v107, s94"); A("v_mov_b32 v109, s94"); A("v_mov_b32 v111, s94")
    for r in range(88, 100): A(f"v_mov_b32 v{r}, 0")
    if P.FGATE:
        A("s_cmp_lg_u32 s36, 0"); A("s_cbranch_scc1 L_D_g1")
        if P.FGATE == 1: g.lds_wait(L_FLAGPUB, 1, slp=1)
        else: g.lds_wait(L_CNTKV, P.FGN, slp=1)
        A("s_branch L_D_g2")
        A("L_D_g1:")
        g.lds_wait(L_CNTKVI, 8, slp=2)
        A("L_D_g2:")
    else:
        g.lds_wait(L_CNTKVI, P.KVIN, slp=2)
    g.stamp(9)
    A("s_cmp_eq_u32 s36, 2"); A("s_cbranch_scc1 L_D_ldO")
    for dep, lab in ((P.DD_F, None), (P.DD_O, "L_D_ldO")):
        if lab: A(f"{lab}:")
        A("s_mov_b32 s77, 0")
        for rg in range(4):
            for sg in range(3):
                b = 8 + 4*(rg*3+sg)
                if rg*3+sg >= dep: A(f"s_waitcnt vmcnt({dep-1})")
                A(f"buffer_load_dwordx4 v[{b}:{b+3}], v5, s[28:31], s77 offen offset:{sg*128} nt")
            if rg < 3: A(f"s_add_u32 s77, s77, {8*1152}")
        if not lab: A("s_branch L_D_ldE")
    A("L_D_ldE:")
    g.stamp(10)
    A("s_setprio 2")
    A("s_cmp_eq_u32 s86, 0"); A("s_cbranch_scc1 L_D_w0")
    g.lds_wait(L_FLAGX1, 1, slp=0)
    A("s_branch L_D_w1")
    A("L_D_w0:")
    g.lds_wait(L_FLAGX0, 1, slp=0)
    A("L_D_w1:")
    g.stamp(11)
    for rg in range(4):
        A(f"ds_read_b32 v{68+rg}, v100 offset:{L_X2U + 32*rg}")
    for rg in range(4):
        at = 80 if rg % 2 == 0 else 84
        A(f"s_waitcnt lgkmcnt({3-rg})")
        for r in range(4):
            A(f"v_and_b32 v{at+r}, v{68+rg}, v{124+r}")
        for sg in range(3):
            b = 8 + 4*(rg*3+sg)
            A(f"s_waitcnt vmcnt({11-(rg*3+sg)})")
            if sg == 0: g.nop(1)
            A(f"v_mfma_f32_16x16x32_bf16 v[{88+4*sg}:{91+4*sg}], v[{at}:{at+3}], v[{b}:{b+3}], v[{88+4*sg}:{91+4*sg}]")
    g.stamp(12)
    A("s_mov_b64 exec, s[78:79]")
    g.nop(5)
    for sg in range(3):
        A(f"ds_write_b128 v101, v[{88+4*sg}:{91+4*sg}] offset:{L_TB + sg*256}")
    A("s_mov_b64 exec, -1")
    A("s_waitcnt lgkmcnt(0)")
    A(f"ds_read_b64 v[24:25], v102 offset:{L_TB}")
    A(f"ds_read_b64 v[26:27], v102 offset:{L_TB+768}")
    A(f"ds_read_b64 v[28:29], v102 offset:{L_TB+512}")
    A(f"ds_read_b64 v[30:31], v102 offset:{L_TB+768+512}")
    A("s_waitcnt lgkmcnt(2)")
    A("v_add_f32 v104, v24, v26"); A("v_add_f32 v106, v25, v27")
    A("buffer_store_dwordx4 v[104:107], v103, s[96:99], s80 offen sc1")
    A("s_waitcnt lgkmcnt(0)")
    A("v_add_f32 v108, v28, v30"); A("v_add_f32 v110, v29, v31")
    A("s_mov_b32 exec_hi, 0")
    A("buffer_store_dwordx4 v[108:111], v103, s[96:99], s80 offen offset:1024 sc1")
    A("s_mov_b64 exec, -1")
    if P.H3WAIT: g.lds_signal(L_CNTDP)
    g.stamp(13)
    A("s_branch L_fin")

    A("L_KV:")
    A("s_sub_u32 s95, s3, 4")
    A("s_setprio 1")
    A("s_cmp_lg_u32 s95, 0"); A("s_cbranch_scc1 L_KV_ni")
    A("v_mov_b32 v5, 0"); A("v_lshlrev_b32 v6, 2, v1")
    A("s_mov_b64 exec, 0xffff")
    A("ds_write_b32 v6, v5")
    A("s_mov_b64 exec, -1")
    A("L_KV_ni:")
    g.srd(28, 6, 7, 0x10000000); g.srd(32, 8, 9, 0x10000000)
    A("s_lshl_b32 s76, s92, 24"); A("s_lshl_b32 s77, s93, 16"); A("s_add_u32 s76, s76, s77"); A(f"s_add_u32 s76, s76, {61440*256}")
    A("s_lshl_b32 s77, s95, 13"); A("s_add_u32 s76, s76, s77")
    A("v_bfe_u32 v3, v1, 2, 2"); A("v_lshlrev_b32 v3, 8, v3"); A("v_lshrrev_b32 v4, 4, v1"); A("v_lshlrev_b32 v4, 6, v4"); A("v_add_u32 v3, v3, v4")
    A("v_and_b32 v4, 3, v1"); A("v_lshlrev_b32 v4, 4, v4"); A("v_add_u32 v3, v3, v4"); A("v_add_u32 v3, s76, v3")
    A("v_lshlrev_b32 v4, 4, v1"); A("v_add_u32 v4, s76, v4")
    A("s_waitcnt lgkmcnt(0)")
    g.tagmul()
    A("s_cmp_lg_u32 s95, 1"); A("s_cbranch_scc1 L_KV_nx")
    A("v_mov_b32 v6, s101"); A("v_mov_b32 v7, s94"); A("s_lshl_b32 s72, s2, 3"); A("v_mov_b32 v5, s72")
    A("s_mov_b64 exec, 1")
    A("buffer_store_dwordx2 v[6:7], v5, s[96:99], s100 offen sc1")
    A("s_mov_b64 exec, -1")
    A("L_KV_nx:")
    A("s_barrier")
    g.stamp(2)
    if P.EARLYB:
        A("s_cmp_eq_u32 s36, 2"); A("s_cbranch_scc1 L_KV_ng2")
        A("s_cmp_eq_u32 s36, 0"); A(f"s_cselect_b32 s79, {P.NG_F}, {P.NG_Q}")
        l = g.lab("LW"); e = g.lab("LWE")
        A("v_mov_b32 v7, 0"); A(f"s_mov_b32 s73, {P.SPIN_L}")
        A(f"{l}:"); A(f"ds_read_b32 v6, v7 offset:{L_CNTP1I}"); A("s_waitcnt lgkmcnt(0)"); A("v_readfirstlane_b32 s72, v6")
        A("s_cmp_ge_u32 s72, s79"); A(f"s_cbranch_scc1 {e}"); A("s_sub_u32 s73, s73, 1"); A("s_cmp_eq_u32 s73, 0"); A(f"s_cbranch_scc1 {e}"); A("s_sleep 1"); A(f"s_branch {l}"); A(f"{e}:")
        A("L_KV_ng2:")
        g.stamp(1)
    if P.QGATE:
        A("s_cmp_lg_u32 s36, 1"); A("s_cbranch_scc1 L_KV_ng")
        if P.QGATE == 1:
            g.lds_wait(L_FLAGQP, 1, slp=1)
        else:
            g.lds_wait(L_CNTP1, P.QGATE, slp=1)
        A("L_KV_ng:")
    A("s_add_u32 s78, s95, s93")
    deps = [P.KVD, P.KVD_Q or P.KVD, P.KVD_O or P.KVD]
    uniq = sorted(set(deps))
    if len(uniq) > 1:
        for ty in (1, 2):
            if deps[ty] != deps[0]:
                A(f"s_cmp_eq_u32 s36, {ty}"); A(f"s_cbranch_scc1 L_KVL_{deps[ty]}")
    order = [deps[0]] + [d for d in uniq if d != deps[0]]
    for dep in order:
        A(f"L_KVL_{dep}:")
        for t in range(16):
            tt = t % 8
            A(f"s_add_u32 s77, s78, {tt}"); A("s_and_b32 s77, s77, 7"); A("s_lshl_b32 s77, s77, 10")
            d = dep
            if P.KD and t < P.KSW: d = P.KD
            if t >= d: A(f"s_waitcnt vmcnt({d-1})")
            if t < 8: A(f"buffer_load_dwordx4 v[{8+4*tt}:{11+4*tt}], v3, s[28:31], s77 offen nt")
            else: A(f"buffer_load_dwordx4 v[{40+4*tt}:{43+4*tt}], v4, s[32:35], s77 offen nt")
        if dep != order[-1]: A("s_branch L_KVL_e")
    A("L_KVL_e:")
    g.lds_signal(L_CNTKVI)
    g.stamp(3)
    A("v_bfe_u32 v3, v1, 3, 1"); A("v_lshlrev_b32 v3, 8, v3"); A("v_lshrrev_b32 v4, 4, v1"); A("v_lshlrev_b32 v4, 6, v4"); A("v_add_u32 v3, v3, v4")
    A("v_and_b32 v4, 3, v1"); A("v_lshlrev_b32 v4, 4, v4"); A("v_add_u32 v3, v3, v4")
    A("v_lshrrev_b32 v120, 5, v1"); A("v_lshlrev_b32 v120, 9, v120"); A("v_and_b32 v4, 15, v1"); A("v_lshlrev_b32 v4, 5, v4"); A("v_add_u32 v120, v120, v4")
    A("v_bfe_u32 v4, v1, 4, 1"); A("v_lshlrev_b32 v4, 4, v4"); A("v_add_u32 v120, v120, v4")
    A("s_lshl_b32 s72, s95, 10"); A("v_add_u32 v120, s72, v120")
    A("v_and_b32 v121, 8, v1"); A("s_lshl_b32 s72, s95, 4"); A("v_add_u32 v121, s72, v121")
    A("v_bfe_u32 v4, v1, 2, 1"); A("v_cmp_eq_u32 s[76:77], 0, v4")
    A("s_lshl_b32 s72, s92, 14"); A("s_lshl_b32 s73, s93, 9"); A("s_add_u32 s80, s72, s73"); A(f"s_add_u32 s80, s80, {WS_AG}"); A(f"s_add_u32 s81, s80, {WS_B}")
    A("s_lshl_b32 s72, s92, 8"); A("s_and_b32 s73, s93, 7"); A("s_lshl_b32 s73, s73, 4"); A("s_add_u32 s72, s72, s73")
    A("s_lshr_b32 s73, s93, 3"); A("s_lshl_b32 s73, s73, 3"); A("s_add_u32 s82, s72, s73"); A(f"s_add_u32 s82, s82, {WS_LG}"); A(f"s_add_u32 s83, s82, {WS_B}")
    g.lds_wait(L_FLAGQ, 1, slp=1)
    g.stamp(4)
    A("s_setprio 2")
    A(f"ds_read_b128 v[76:79], v3 offset:{L_QL}")
    A("s_waitcnt lgkmcnt(0)")
    for r in range(4): A(f"v_cndmask_b32 v{72+r}, 0, v{76+r}, s[76:77]")
    for r in range(4): A(f"v_cndmask_b32 v{76+r}, v{76+r}, 0, s[76:77]")
    g.nop(1)
    for p in range(4):
        A(f"s_waitcnt vmcnt({15-2*p-1})")
        d = 80 + 4*p
        A(f"v_mfma_f32_16x16x32_bf16 v[{d}:{d+3}], v[{8+8*p}:{11+8*p}], v[72:75], 0")
        A(f"v_mfma_f32_16x16x32_bf16 v[{d}:{d+3}], v[{12+8*p}:{15+8*p}], v[76:79], v[{d}:{d+3}]")
    g.stamp(5)
    g.nop(5)
    for p in range(4):
        d = 80 + 4*p
        A(f"v_mov_b32_dpp v{96+p}, v{d} quad_perm:[0,0,0,0] row_mask:0xf bank_mask:0xf")
        if p == 2: g.nop(3)
    for q in range(1, 4):
        for p in range(4):
            d = 80 + 4*p
            g.dpp("v_add_f32", 96+p, d+q, 96+p, f"quad_perm:[{q},{q},{q},{q}]")
    A("v_max3_f32 v116, v96, v97, v98"); A("v_max_f32 v116, v116, v99"); g.nop(2)
    g.dpp("v_max_f32", 116, 116, 116, "row_half_mirror"); g.nop(1)
    g.xrow("v_max_f32", 116, 117)
    c = 128**-0.5 * 1.4426950408889634
    A(f"s_mov_b32 s72, 0x{f32bits(c):08x}")
    A("v_mul_f32 v116, s72, v116")
    for p in range(4): A(f"v_fma_f32 v{96+p}, v{96+p}, s72, -v116")
    for p in range(4): A(f"v_exp_f32 v{96+p}, v{96+p}")
    for p in range(4): A(f"v_cvt_pk_bf16_f32 v{100+p}, v{96+p}, v{96+p}")
    for p in range(4): A(f"v_and_b32 v{96+p}, 0xffff0000, v{100+p}")
    for t in range(8):
        p, u = t // 2, t % 2
        at = 104 if t % 2 == 0 else 108
        for r in range(4):
            direct = (r < 2) if u == 0 else (r >= 2)
            if direct: A(f"v_and_b32 v{at+r}, v{100+p}, v{124+r}")
            else: g.dpp("v_and_b32", at+r, 100+p, 124+r, "row_half_mirror")
        if t == 0:
            A("v_add_f32 v118, v96, v97"); A("v_add_f32 v119, v98, v99"); A("v_add_f32 v118, v118, v119")
        if t == 1:
            g.dpp("v_add_f32", 118, 118, 118, "row_half_mirror")
        if t == 2:
            A("v_mov_b32 v117, v118")
        if t == 3:
            A("v_permlane16_swap_b32 v118, v117")
        if t == 4:
            A("v_add_f32 v118, v118, v117"); A("v_mov_b32 v117, v118")
        if t == 5:
            A("v_permlane32_swap_b32 v118, v117")
        if t == 6:
            A("v_add_f32 v117, v118, v117")
        A(f"s_waitcnt vmcnt({7-t})")
        g.nop(1)
        cin = "0" if t == 0 else "v[112:115]"
        A(f"v_mfma_f32_16x16x32_bf16 v[112:115], v[{at}:{at+3}], v[{40+4*t}:{43+4*t}], {cin}")
    g.stamp(6)
    A("s_mov_b64 exec, 0x101")
    A(f"ds_write_b64 v121, v[116:117] offset:{L_ML}")
    A("s_mov_b64 exec, -1")
    A("v_lshlrev_b32 v3, 4, v1")
    A("v_lshrrev_b32 v4, 5, v1"); A("v_lshlrev_b32 v122, 3, v4")
    A("v_lshlrev_b32 v5, 13, v4"); A("v_and_b32 v123, 31, v1"); A("v_lshlrev_b32 v123, 4, v123"); A("v_add_u32 v5, v5, v123")
    A("v_lshlrev_b32 v123, 7, v4")
    A(f"ds_write_b128 v120, v[112:115] offset:{L_OK}")
    g.lds_arrive(L_CNTKV)
    A("s_cmp_eq_u32 s72, 7"); A("s_cbranch_scc0 L_KV_done")
    A("s_setprio 3")
    for k in range(8):
        A(f"ds_read_b64 v[{8+2*k}:{9+2*k}], v122 offset:{L_ML + 16*k}")
    for k in range(7):
        A(f"ds_read_b128 v[{24+4*k}:{27+4*k}], v3 offset:{L_OK + 1024*k}")
    A("s_waitcnt lgkmcnt(7)")
    A(f"ds_read_b128 v[52:55], v3 offset:{L_OK + 1024*7}")
    A("v_max3_f32 v56, v8, v10, v12"); A("v_max3_f32 v57, v14, v16, v18"); A("v_max3_f32 v56, v56, v20, v22"); A("v_max_f32 v56, v56, v57")
    for k in range(8): A(f"v_sub_f32 v{8+2*k}, v{8+2*k}, v56")
    for k in range(8): A(f"v_exp_f32 v{8+2*k}, v{8+2*k}")
    A("v_mov_b32 v65, s94"); A("v_mov_b32 v67, s94"); A("v_mov_b32 v69, s94")
    A("v_mul_f32 v57, v8, v9")
    for k in range(1, 8): A(f"v_fma_f32 v57, v{8+2*k}, v{9+2*k}, v57")
    A("v_rcp_f32 v58, v57"); A("v_log_f32 v59, v57")
    A("s_waitcnt lgkmcnt(0)")
    for r in range(4): A(f"v_mul_f32 v{60+r}, v{24+r}, v8")
    for k in range(1, 8):
        for r in range(4): A(f"v_fma_f32 v{60+r}, v{24+4*k+r}, v{8+2*k}, v{60+r}")
    for r in range(4): A(f"v_mul_f32 v{60+r}, v{60+r}, v58")
    A("v_add_f32 v68, v56, v59")
    A("v_cvt_pk_bf16_f32 v64, v60, v61"); A("v_cvt_pk_bf16_f32 v66, v62, v63")
    A("buffer_store_dwordx4 v[64:67], v5, s[96:99], s80 offen")
    A("s_mov_b32 exec_lo, 1"); A("s_mov_b32 exec_hi, 1")
    A("buffer_store_dwordx2 v[68:69], v123, s[96:99], s82 offen")
    A("buffer_store_dwordx2 v[68:69], v123, s[96:99], s83 offen sc1")
    A("s_mov_b64 exec, -1")
    if P.FGATE == 1: g.lds_signal(L_FLAGPUB)
    A("buffer_store_dwordx4 v[64:67], v5, s[96:99], s81 offen sc1")
    g.stamp(7)
    A("L_KV_done:")
    A("s_cmp_eq_u32 s36, 2"); A("s_cbranch_scc1 L_h3_kv")
    A("s_cmp_eq_u32 s36, 0"); A("s_cbranch_scc1 L_fin")
    A("s_cmp_lt_u32 s90, 4"); A("s_cselect_b32 s72, 5, 1"); A("s_cmp_ge_u32 s37, s72"); A("s_cbranch_scc1 L_fin")
    A("L_h3_kv:")
    if P.H3WAIT:
        A("s_cmp_eq_u32 s36, 2"); A("s_cbranch_scc1 L_h3_w2")
        A("s_cmp_ge_u32 s90, 4"); A("s_cbranch_scc1 L_h3_w0")
        g.lds_wait(L_CNTDP, 3, slp=1)
        A("s_branch L_h3_w0")
        A("L_h3_w2:")
        g.lds_wait(L_CNTDP, 6, slp=1)
        A("L_h3_w0:")
    A("s_mov_b32 s86, s95"); A("s_add_u32 s87, s95, 9")
    A("s_branch L_h3")
    A("L_h3_slot16:")
    if P.H3WAIT:
        A("s_cmp_eq_u32 s36, 2"); A("s_cbranch_scc1 L_h3_v2")
        A("s_cmp_ge_u32 s90, 4"); A("s_cbranch_scc1 L_h3_v0")
        g.lds_wait(L_CNTDP, 3, slp=1)
        A("s_branch L_h3_v0")
        A("L_h3_v2:")
        g.lds_wait(L_CNTDP, 6, slp=1)
        A("L_h3_v0:")
    A("s_mov_b32 s86, 8"); A("s_mov_b32 s87, 17")
    A("L_h3:")
    A("s_setprio 3")
    A("s_mul_i32 s85, s90, 9")
    A("s_cmp_lt_u32 s90, 4"); A("s_cselect_b32 s72, 4, 8"); A("s_add_u32 s72, s72, s37")
    A("s_cmp_eq_u32 s36, 2"); A("s_cselect_b32 s72, s37, s72"); A("s_add_u32 s85, s85, s72")
    A("s_lshl_b32 s80, s86, 4")
    A("s_cmp_eq_u32 s87, 17"); A("s_cselect_b32 s81, 8, s87"); A("s_lshl_b32 s81, s81, 4")
    A("s_mul_i32 s80, s80, 4608"); A("s_mul_i32 s81, s81, 4608")
    A("s_lshl_b32 s72, s85, 6"); A(f"s_add_u32 s72, s72, {WS_PG}")
    A("s_add_u32 s80, s80, s72"); A("s_add_u32 s81, s81, s72")
    A("v_lshrrev_b32 v8, 2, v1"); A("v_mul_u32_u24 v8, 4608, v8"); A("v_and_b32 v9, 3, v1"); A("v_lshlrev_b32 v9, 4, v9"); A("v_add_u32 v8, v8, v9")
    A("v_lshlrev_b32 v9, 3, v1")
    A("s_lshl_b32 s72, s86, 5"); A("v_add_u32 v10, s72, v9")
    A("s_lshl_b32 s72, s87, 5"); A("v_add_u32 v11, s72, v9")
    g.srd(32, 4, 5, 1152)
    g.srd(28, 22, 23, 1152)
    A("s_lshl_b32 s72, s85, 4")
    A("v_lshlrev_b32 v30, 1, v1"); A("v_add_u32 v30, s72, v30")
    A("v_lshlrev_b32 v31, 2, v1")
    A("s_mov_b64 exec, 0xff")
    A("buffer_load_ushort v32, v30, s[32:35], 0 offen")
    A("s_mov_b64 exec, -1")
    g.stamp(13)
    if P.H3SENT:
        A("s_mov_b32 exec_lo, 0"); A("s_mov_b32 exec_hi, 0x80000000")
        g.poll(["buffer_load_dwordx4 v[12:15], v8, s[96:99], s80 offen sc1"], [13, 15], 2, "FS")
        A("s_mov_b64 exec, -1")
    g.poll(["buffer_load_dwordx4 v[12:15], v8, s[96:99], s80 offen sc1", "buffer_load_dwordx4 v[16:19], v8, s[96:99], s81 offen sc1"],
           [13, 15, 17, 19], P.SLP_F, "FP", masked=True)
    A("s_mov_b64 exec, -1")
    g.stamp(14)
    for ctrl in ("row_ror:4", "row_ror:8"):
        g.nop(1)
        for r in (12, 14, 16, 18): g.dpp("v_add_f32", r, r, r, ctrl)
    g.xrow_multi("v_add_f32", [12, 14, 16, 18], [20, 21, 22, 23])
    A("v_mov_b32 v13, v14"); A("v_mov_b32 v17, v18")
    A("s_mov_b64 exec, 0xf")
    A(f"ds_write_b64 v10, v[12:13] offset:{L_H3S}")
    A(f"ds_write_b64 v11, v[16:17] offset:{L_H3S}")
    A("s_mov_b64 exec, -1")
    g.lds_arrive(L_CNTH3)
    A("s_cmp_eq_u32 s72, 8"); A("s_cbranch_scc0 L_fin")
    A("s_mov_b64 exec, 0xff")
    for sl in range(15):
        A(f"ds_read_b32 v{12+sl}, v31 offset:{L_H3S + 32*sl}")
    A("s_waitcnt lgkmcnt(6)")
    for sl in (15, 16): A(f"ds_read_b32 v{40+sl}, v31 offset:{L_H3S + 32*sl}")
    A("v_add_f32 v12, v12, v13"); A("v_add_f32 v14, v14, v15"); A("v_add_f32 v16, v16, v17"); A("v_add_f32 v18, v18, v19")
    A("v_add_f32 v12, v12, v14"); A("v_add_f32 v16, v16, v18"); A("v_add_f32 v12, v12, v20"); A("v_add_f32 v12, v12, v16")
    g.rne(12)
    g.silu4(12, 13, n=1)
    A("s_waitcnt lgkmcnt(0)")
    A("v_add_f32 v21, v21, v22"); A("v_add_f32 v23, v23, v24"); A("v_add_f32 v25, v25, v26"); A("v_add_f32 v55, v55, v56")
    A("v_add_f32 v21, v21, v23"); A("v_add_f32 v25, v25, v55"); A("v_add_f32 v21, v21, v25")
    g.rne(21)
    A("v_mul_f32 v13, v13, v21")
    g.rne(13)
    A("v_lshlrev_b32 v32, 16, v32")
    A("v_add_f32 v13, v13, v32")
    A("v_cvt_pk_bf16_f32 v13, v13, v13")
    A("buffer_store_short v13, v30, s[28:31], 0 offen")
    A("s_cmp_lg_u32 s85, 0"); A("s_cbranch_scc1 L_fin_x")
    A("s_mov_b64 exec, 1")
    A("v_mov_b32 v14, s94"); A("v_mov_b32 v15, 0")
    A(f"buffer_store_dword v14, v15, s[96:99], 0 offen offset:{WS_EPOCH} sc1")
    A("L_fin_x:")
    A("s_mov_b64 exec, -1")
    g.stamp(15)
    A("L_fin:")
    if stamps:
        A("s_mov_b64 exec, -1")
        A("s_waitcnt lgkmcnt(0)")
        for i in range(16):
            A(f"v_writelane_b32 v8, s{40+2*i}, {i}"); A(f"v_writelane_b32 v9, s{41+2*i}, {i}")
        A("s_lshl_b32 s72, s2, 4"); A("s_add_u32 s72, s72, s3"); A("s_lshl_b32 s72, s72, 7"); A(f"s_add_u32 s72, s72, {WS_STAMP}")
        A("v_lshlrev_b32 v3, 3, v1")
        A("s_mov_b64 exec, 0xffff")
        A("buffer_store_dwordx2 v[8:9], v3, s[96:99], s72 offen")
    A("L_end:"); A("s_endpgm")
    A('.section .rodata,"a"'); A(".p2align 6"); A(f".amdhsa_kernel {NAME}_kernel")
    A("  .amdhsa_next_free_vgpr 128"); A("  .amdhsa_next_free_sgpr 102"); A("  .amdhsa_accum_offset 128")
    A("  .amdhsa_group_segment_fixed_size 0"); A("  .amdhsa_kernarg_size 96"); A("  .amdhsa_user_sgpr_count 2")
    A("  .amdhsa_user_sgpr_kernarg_segment_ptr 1"); A("  .amdhsa_system_sgpr_workgroup_id_x 1")
    A("  .amdhsa_float_denorm_mode_32 3")
    A(".end_amdhsa_kernel")
    return "\n".join(g.L) + "\n"

if __name__ == "__main__":
    ap = argparse.ArgumentParser(); ap.add_argument("-o", default="k6.s"); ap.add_argument("--stamps", action="store_true")
    ap.add_argument("--set", action="append", default=[])
    a = ap.parse_args()
    for kv in a.set:
        k, v = kv.split("="); setattr(P, k, int(v, 0))
    open(a.o, "w").write(gen(a.stamps))
```

```python
import sys, argparse, struct
NAME = "recurrent_scan__sliding_block_cached__swiglu_ffn__decode"
def f32bits(x): return struct.unpack("<I", struct.pack("<f", x))[0]

WS_EPOCH = 0x0
WS_XT = 0x8000
WS_QG = 0x10000
WS_XG = 0x20000
WS_LG = 0x68000
WS_AG = 0x70000
WS_PG = 0xC0000
WS_B = 0x400000
WS_STAMP = 0x800000
L_CNTP1, L_CNTKVI, L_FLAGQ, L_CNTKV, L_FLAGX0, L_FLAGX1, L_CNTH3, L_FLAGPUB, L_FLAGQP, L_CNTP1I, L_CNTDP = 0, 4, 8, 12, 16, 20, 24, 28, 32, 36, 40
L_XRAW = 0x40
L_QL = 0x500
L_ML = 0x700
L_X2U = 0x780
L_H3S = 0x880
L_P1 = 0x1000
L_OK = 0x3000
L_TB = 0x5000
LDS_BYTES = 0x7600


HEADER = """
Fused decode step (layernorm -> GQA sliding-window attention + wo, SwiGLU FFN, gated residual) in ONE launch.
Kernarg (96 B): x, k_cache, v_cache, wq, wo, B_x(unused), w_gate, w_up, w_down, out, debug, ws.
256 workgroups x 16 waves, one per CU. Workgroup j: xc = j&7, idx = j>>3.
  attention : kv head 2*xc + (idx>>4), 256 keys (split idx&15); 8 "KV" waves (4..11), 32 keys each.
  type F    : gate/up tile (128 cols x 144 rows), 4-way exchange, h, 32 rows of w_down  -> partial b
  type Q    : wq tile (one head x 288 rows) -> q partial;  type O / Q : 32-row units of wo -> partial s
  72 reducer workgroups sum the 144 b + 128 s partial vectors (8 columns each) and write the output.
All matrix-vector products run on MFMA straight from the loaded registers (delta-masked operand trick).
Hand-offs between workgroups are 8-byte {payload, tag} granules in ws; tag = LCG(word 0 of ws at entry), the
word is advanced at the end of the launch.  Every hand-off is written twice (plain = same-XCD L2 copy, sc1 =
device-coherent copy); a consumer picks the copy from a per-launch table of XCC ids, so any placement is correct.
Generated by a python script (own generator).
"""

class P:
    KVD = 6; DD_F = 12; DD_O = 6
    SLP_Q = 2; SLP_X = 4; SLP_H = 0; SLP_F = 0; SLP_L = 1
    XSENT = 0; H3SENT = 0; QSENT = 0
    FORCE_B = 0; KVD_Q = 0; KVD_O = 4; H3WAIT = 1; QPIPE = 1; QPIPE_WAIT = 6; KD = 0; KSW = 8; FGN = 1; P1D_F = 5; P1D_Q = 12; QGATE = 0; EARLYB = 2; NG_F = 6; NG_Q = 6; NF_LO = 20; NF_HI = 16; FGATE = 1; FGIDX = 18; KVIN = 8
    SPIN_G = 40000; SPIN_L = 400000

class G:
    def __init__(self, stamps=False):
        self.L = []; self.stamps = stamps; self.nlab = 0
    def A(self, s): self.L.append(s)
    def lab(self, base="L"):
        self.nlab += 1; return f"{base}_{self.nlab}"
    def srd(self, d, lo, hi, size):
        A = self.A
        A(f"s_mov_b32 s{d}, s{lo}"); A(f"s_mov_b32 s{d+1}, s{hi}"); A(f"s_mov_b32 s{d+2}, {size}"); A(f"s_mov_b32 s{d+3}, 0x20000")
    def stamp(self, i):
        if self.stamps: self.A(f"s_memrealtime s[{40+2*i}:{41+2*i}]")
    def nop(self, n):
        while n > 0:
            k = min(n, 16); self.A(f"s_nop {k-1}"); n -= k
    def lds_wait(self, addr, val, vt=6, vz=7, slp=None):
        A = self.A
        if slp is None: slp = P.SLP_L
        l = self.lab("LW"); e = self.lab("LWE")
        A(f"v_mov_b32 v{vz}, 0")
        A(f"s_mov_b32 s73, {P.SPIN_L}")
        A(f"{l}:")
        A(f"ds_read_b32 v{vt}, v{vz} offset:{addr}")
        A("s_waitcnt lgkmcnt(0)")
        A(f"v_readfirstlane_b32 s72, v{vt}")
        A(f"s_cmp_ge_u32 s72, {val}")
        A(f"s_cbranch_scc1 {e}")
        A("s_sub_u32 s73, s73, 1")
        A("s_cmp_eq_u32 s73, 0")
        A(f"s_cbranch_scc1 {e}")
        if slp: A(f"s_sleep {slp}")
        A(f"s_branch {l}")
        A(f"{e}:")
    def lds_signal(self, addr, vt=6, vz=7):
        A = self.A
        A(f"v_mov_b32 v{vz}, 0"); A(f"v_mov_b32 v{vt}, 1")
        A("s_waitcnt lgkmcnt(0)")
        A("s_mov_b64 s[74:75], exec"); A("s_mov_b64 exec, 1")
        A(f"ds_add_u32 v{vz}, v{vt} offset:{addr}")
        A("s_mov_b64 exec, s[74:75]")
    def lds_arrive(self, addr, vt=6, vz=7):
        A = self.A
        A(f"v_mov_b32 v{vz}, 0"); A(f"v_mov_b32 v{vt}, 1")
        A("s_waitcnt lgkmcnt(0)")
        A("s_mov_b64 s[74:75], exec"); A("s_mov_b64 exec, 1")
        A(f"ds_add_rtn_u32 v{vt}, v{vz}, v{vt} offset:{addr}")
        A("s_waitcnt lgkmcnt(0)")
        A(f"v_readfirstlane_b32 s72, v{vt}")
        A("s_mov_b64 exec, s[74:75]")
    def xrow(self, op, v, t):
        A = self.A
        A(f"v_mov_b32 v{t}, v{v}"); self.nop(2)
        A(f"v_permlane16_swap_b32 v{v}, v{t}"); self.nop(1)
        A(f"{op} v{v}, v{v}, v{t}")
        A(f"v_mov_b32 v{t}, v{v}"); self.nop(2)
        A(f"v_permlane32_swap_b32 v{v}, v{t}"); self.nop(1)
        A(f"{op} v{v}, v{v}, v{t}")
    def xrow_multi(self, op, vs, ts):
        A = self.A
        n = len(vs); assert n >= 3
        for v, t in zip(vs, ts): A(f"v_mov_b32 v{t}, v{v}")
        for v, t in zip(vs, ts): A(f"v_permlane16_swap_b32 v{v}, v{t}")
        self.nop(1)
        for v, t in zip(vs, ts): A(f"{op} v{v}, v{v}, v{t}")
        for v, t in zip(vs, ts): A(f"v_mov_b32 v{t}, v{v}")
        for v, t in zip(vs, ts): A(f"v_permlane32_swap_b32 v{v}, v{t}")
        self.nop(1)
        for v, t in zip(vs, ts): A(f"{op} v{v}, v{v}, v{t}")
    def dpp(self, op, d, s0, s1, ctrl):
        self.A(f"{op}_dpp v{d}, v{s0}, v{s1} {ctrl} row_mask:0xf bank_mask:0xf")
    def wave_sum2(self, v, w, t, u):
        for ctrl in ["quad_perm:[1,0,3,2]", "quad_perm:[2,3,0,1]", "row_half_mirror", "row_mirror"]:
            self.nop(1)
            self.dpp("v_add_f32", v, v, v, ctrl)
            self.dpp("v_add_f32", w, w, w, ctrl)
        A = self.A
        A(f"v_mov_b32 v{t}, v{v}"); A(f"v_mov_b32 v{u}, v{w}"); self.nop(1)
        A(f"v_permlane16_swap_b32 v{v}, v{t}"); A(f"v_permlane16_swap_b32 v{w}, v{u}"); self.nop(1)
        A(f"v_add_f32 v{v}, v{v}, v{t}"); A(f"v_add_f32 v{w}, v{w}, v{u}")
        A(f"v_mov_b32 v{t}, v{v}"); A(f"v_mov_b32 v{u}, v{w}"); self.nop(1)
        A(f"v_permlane32_swap_b32 v{v}, v{t}"); A(f"v_permlane32_swap_b32 v{w}, v{u}"); self.nop(1)
        A(f"v_add_f32 v{v}, v{v}, v{t}"); A(f"v_add_f32 v{w}, v{w}, v{u}")
    def rne(self, v):
        A = self.A
        A(f"v_cvt_pk_bf16_f32 v{v}, v{v}, v{v}")
        A(f"v_and_b32 v{v}, 0xffff0000, v{v}")
    def tagmul(self):
        A = self.A
        A("s_mul_i32 s94, s94, 1664525"); A("s_add_u32 s94, s94, 1013904223")
    def poll(self, loads, tagregs, slp, name, masked=False):
        A = self.A
        lp = self.lab(name); le = self.lab(name + "E")
        A(f"s_mov_b32 s73, {P.SPIN_G}")
        A(f"{lp}:")
        for l in loads: A(l)
        A("s_waitcnt vmcnt(0)")
        A(f"v_cmp_ne_u32 vcc, s94, v{tagregs[0]}")
        for r in tagregs[1:]:
            A(f"v_cmp_ne_u32 s[74:75], s94, v{r}"); A("s_or_b64 vcc, vcc, s[74:75]")
        A("s_cmp_eq_u64 vcc, 0"); A(f"s_cbranch_scc1 {le}")
        A("s_sub_u32 s73, s73, 1"); A("s_cmp_eq_u32 s73, 0"); A(f"s_cbranch_scc1 {le}")
        if masked: A("s_mov_b64 exec, vcc")
        if slp: A(f"s_sleep {slp}")
        A(f"s_branch {lp}")
        A(f"{le}:")
    def xt_check(self, vwg, dst, sdst):
        A = self.A
        A(f"v_lshlrev_b32 v{vwg}, 3, v{vwg}")
        self.poll([f"buffer_load_dwordx2 v[{dst}:{dst+1}], v{vwg}, s[96:99], s100 offen sc1"], [dst+1], 2, "XT")
        A(f"v_cmp_ne_u32 vcc, s101, v{dst}")
        A("s_cmp_eq_u64 vcc, 0")
        A(f"s_cselect_b32 {sdst}, 0, {WS_B}")
        if P.FORCE_B: A(f"s_mov_b32 {sdst}, {WS_B}")
    def silu4(self, src, dst, n=4):
        A = self.A
        for r in range(n): A(f"v_mul_f32 v{dst+r}, 0x{f32bits(-1.4426950408889634):08x}, v{src+r}")
        for r in range(n): A(f"v_exp_f32 v{dst+r}, v{dst+r}")
        if n < 2: self.nop(1)
        for r in range(n): A(f"v_add_f32 v{dst+r}, 1.0, v{dst+r}")
        for r in range(n): A(f"v_rcp_f32 v{dst+r}, v{dst+r}")
        if n < 2: self.nop(1)
        for r in range(n): A(f"v_mul_f32 v{dst+r}, v{dst+r}, v{src+r}")
        for r in range(n): self.rne(dst+r)

def gen(stamps=False):
    g = G(stamps); A = g.A
    for line in HEADER.strip("\n").split("\n"): A("; " + line)
    A(f"; @launch grid=(256,1,1) block=(1024,1,1) lds={LDS_BYTES}")
    A('.amdgcn_target "amdgcn-amd-amdhsa--gfx950"')
    A(".text"); A(f".globl {NAME}_kernel"); A(".p2align 8"); A(f".type {NAME}_kernel,@function")
    A(f"{NAME}_kernel:")
    g.stamp(0)
    A("s_cmp_ge_u32 s2, 256"); A("s_cbranch_scc1 L_end")
    A("s_load_dwordx16 s[4:19], s[0:1], 0")
    A("s_load_dwordx8 s[20:27], s[0:1], 64")
    A("v_and_b32 v1, 63, v0")
    A("v_lshrrev_b32 v2, 6, v0")
    A("s_and_b32 s90, s2, 7")
    A("v_readfirstlane_b32 s3, v2")
    A("s_lshr_b32 s91, s2, 3")
    A("s_lshl_b32 s92, s90, 1"); A("s_lshr_b32 s72, s91, 4"); A("s_add_u32 s92, s92, s72")
    A("s_and_b32 s93, s91, 15")
    A("s_cmp_lt_u32 s90, 4")
    A(f"s_cselect_b32 s38, {P.NF_LO}, {P.NF_HI}")
    A(f"s_mul_i32 s72, s90, {P.NF_LO}"); A(f"s_mul_i32 s73, s90, {P.NF_HI}"); A(f"s_add_u32 s73, s73, {4*(P.NF_LO-P.NF_HI)}")
    A("s_cmp_lt_u32 s90, 4")
    A("s_cselect_b32 s39, s72, s73")
    A("s_mov_b32 s36, 0"); A("s_mov_b32 s37, s91")
    A("s_cmp_lt_u32 s91, s38"); A("s_cbranch_scc1 L_typed")
    A("s_mov_b32 s36, 1"); A("s_sub_u32 s37, s91, s38")
    A("s_cmp_lt_u32 s37, 8"); A("s_cbranch_scc1 L_typed")
    A("s_mov_b32 s36, 2"); A("s_sub_u32 s37, s37, 8")
    A("L_typed:")
    A(f"s_mov_b32 s100, {WS_XT}")
    A("s_getreg_b32 s101, hwreg(HW_REG_XCC_ID)"); A("s_and_b32 s101, s101, 15")
    A("v_and_b32 v2, 1, v1")
    A("v_mov_b32 v3, 0xffff")
    A("v_lshlrev_b32 v2, 4, v2")
    A("v_lshlrev_b32 v3, v2, v3")
    A("v_bfe_u32 v2, v1, 1, 2")
    for t in range(4):
        A(f"v_cmp_eq_u32 vcc, {t}, v2"); g.nop(2)
        A(f"v_cndmask_b32 v{124+t}, 0, v3, vcc")
    if stamps:
        for i in range(1, 16): A(f"s_mov_b64 s[{40+2*i}:{41+2*i}], 0")
    A("s_waitcnt lgkmcnt(0)")
    A(f"s_load_dword s94, s[26:27], {WS_EPOCH}")
    g.srd(96, 26, 27, 0x40000000)
    A("s_cmp_lt_u32 s3, 4"); A("s_cbranch_scc1 L_aux0")
    A("s_cmp_lt_u32 s3, 12"); A("s_cbranch_scc1 L_KV")
    A("s_sub_u32 s95, s3, 8"); A("s_branch L_aux")
    A("L_aux0:"); A("s_mov_b32 s95, s3")
    A("L_aux:")
    A("s_setprio 2")
    A("s_cmp_ge_u32 s95, 6"); A("s_cbranch_scc1 L_aux67")
    A("s_cmp_eq_u32 s36, 2"); A("s_cbranch_scc1 L_auxO")
    g.srd(32, 4, 5, 1152)
    A("v_lshlrev_b32 v5, 4, v1")
    A("buffer_load_dwordx4 v[56:59], v5, s[32:35], 0 offen")
    A("buffer_load_dwordx4 v[60:63], v5, s[32:35], 0 offen offset:1024")
    A("v_lshrrev_b32 v64, 4, v1"); A("v_and_b32 v65, 15, v1"); A("v_lshlrev_b32 v65, 4, v65")
    A("s_cmp_eq_u32 s36, 1"); A("s_cbranch_scc1 L_auxQ")
    A("s_add_u32 s72, s39, s91")
    A("s_lshr_b32 s88, s72, 2"); A("s_and_b32 s89, s72, 3")
    A("s_cmp_ge_u32 s95, 3"); A("s_cselect_b32 s73, 3, 0"); A("s_sub_u32 s73, s95, s73")
    A("s_mul_i32 s87, s89, 144"); A("s_mul_i32 s73, s73, 48"); A("s_add_u32 s87, s87, s73")
    A("s_cmp_lt_u32 s95, 3"); A("s_cselect_b32 s28, s16, s18"); A("s_cselect_b32 s29, s17, s19")
    A(f"s_mov_b32 s30, {576*4608*2}"); A("s_mov_b32 s31, 0x20000")
    A("s_mul_i32 s72, s87, 9216"); A("s_lshl_b32 s73, s88, 8"); A("s_add_u32 s72, s72, s73")
    A("v_mul_u32_u24 v5, 9216, v64"); A("v_add_u32 v5, v5, v65"); A("v_add_u32 v5, s72, v5")
    A(f"s_mov_b32 s76, {4*9216}")
    A("s_branch L_p1loadF")
    A("L_auxQ:")
    A("s_lshl_b32 s72, s90, 3"); A("s_add_u32 s72, s72, s37")
    A("s_lshr_b32 s88, s72, 1"); A("s_and_b32 s89, s72, 1")
    A("s_mul_i32 s87, s89, 288"); A("s_mul_i32 s72, s95, 48"); A("s_add_u32 s87, s87, s72")
    g.srd(28, 10, 11, 576*4096*2)
    A("s_lshl_b32 s72, s87, 13"); A("s_lshl_b32 s73, s88, 8"); A("s_add_u32 s72, s72, s73")
    A("v_lshlrev_b32 v5, 13, v64"); A("v_add_u32 v5, v5, v65"); A("v_add_u32 v5, s72, v5")
    A(f"s_mov_b32 s76, {4*8192}")
    def p1loads(dep):
        A("s_mov_b32 s77, 0")
        if P.EARLYB == 1:
            A("s_waitcnt lgkmcnt(0)"); g.tagmul(); A("s_barrier")
        for t in range(12):
            if P.EARLYB == 2 and t == 3:
                A("s_waitcnt lgkmcnt(0)"); g.tagmul(); A("s_barrier")
            if t >= dep: A(f"s_waitcnt vmcnt({dep-1})")
            A(f"buffer_load_dwordx4 v[{8+4*t}:{11+4*t}], v5, s[28:31], s77 offen nt")
            if t < 11: A("s_add_u32 s77, s77, s76")
    A("L_p1load:")
    p1loads(P.P1D_Q)
    A("s_branch L_p1ld_e")
    A("L_p1loadF:")
    p1loads(P.P1D_F)
    A("L_p1ld_e:")
    g.stamp(1)
    if P.EARLYB:
        g.lds_signal(L_CNTP1I)
    else:
        A("s_waitcnt lgkmcnt(0)")
        g.tagmul()
        A("s_barrier")
    g.stamp(2)
    A("s_waitcnt vmcnt(12)")
    A("v_lshlrev_b32 v5, 4, v1")
    A(f"ds_write_b128 v5, v[56:59] offset:{L_XRAW}")
    A("s_mov_b64 exec, 0xff")
    A(f"ds_write_b128 v5, v[60:63] offset:{L_XRAW+1024}")
    A("s_mov_b64 exec, -1")
    A("v_mov_b32 v64, 0"); A("v_mov_b32 v65, 0")
    A("v_mov_b32 v66, 0x3f803f80")
    for r in range(56, 64):
        A(f"v_dot2c_f32_bf16 v64, v{r}, v66")
        A(f"v_dot2c_f32_bf16 v65, v{r}, v{r}")
    A("s_lshl_b32 s72, s87, 1")
    A("v_lshrrev_b32 v5, 4, v1"); A("v_lshlrev_b32 v5, 1, v5"); A("v_add_u32 v5, s72, v5")
    A("s_waitcnt lgkmcnt(0)")
    for t in range(12):
        A(f"ds_read_u16 v{68+t}, v5 offset:{L_XRAW + 8*t}")
    g.wave_sum2(64, 65, 66, 67)
    A(f"s_mov_b32 s72, 0x{f32bits(1.0/576):08x}")
    A("v_mul_f32 v64, s72, v64")
    A("v_mul_f32 v65, s72, v65")
    A("v_fma_f32 v65, -v64, v64, v65")
    A("v_max_f32 v65, 0, v65")
    g.rne(64); g.rne(65)
    A(f"v_add_f32 v65, 0x{f32bits(1e-5):08x}, v65")
    g.rne(65)
    A("v_sqrt_f32 v65, v65"); g.nop(1)
    g.rne(65)
    A("v_rcp_f32 v65, v65")
    A("s_waitcnt lgkmcnt(0)")
    for t in range(12): A(f"v_lshlrev_b32 v{68+t}, 16, v{68+t}")
    for t in range(12): A(f"v_sub_f32 v{68+t}, v{68+t}, v64")
    for t in range(12): A(f"v_cvt_pk_bf16_f32 v{68+t}, v{68+t}, v{68+t}")
    for t in range(12): A(f"v_and_b32 v{68+t}, 0xffff0000, v{68+t}")
    for t in range(12): A(f"v_mul_f32 v{68+t}, v{68+t}, v65")
    for t in range(12): A(f"v_cvt_pk_bf16_f32 v{68+t}, v{68+t}, v{68+t}")
    g.stamp(3)
    for r in range(88, 92): A(f"v_mov_b32 v{r}, 0")
    A("s_lshl_b32 s72, s95, 10")
    A("v_lshlrev_b32 v5, 4, v1"); A("v_add_u32 v5, s72, v5")
    for t in range(12):
        at = 80 if t % 2 == 0 else 84
        for r in range(4):
            A(f"v_and_b32 v{at+r}, v{68+t}, v{124+r}")
        A(f"s_waitcnt vmcnt({11-t})")
        g.nop(1)
        A(f"v_mfma_f32_16x16x32_bf16 v[88:91], v[{at}:{at+3}], v[{8+4*t}:{11+4*t}], v[88:91]")
    g.stamp(4)
    g.nop(8)
    A(f"ds_write_b128 v5, v[88:91] offset:{L_P1}")
    g.lds_signal(L_CNTP1)
    A("s_branch L_auxD")
    A("L_auxO:")
    A("s_waitcnt lgkmcnt(0)")
    g.tagmul()
    A("s_barrier")
    g.stamp(2)
    A("s_branch L_auxD")
    A("L_aux67:")
    A("s_waitcnt lgkmcnt(0)")
    g.tagmul()
    A("s_barrier")
    g.stamp(2)
    A("s_setprio 3")
    A("s_cmp_eq_u32 s95, 7"); A("s_cbranch_scc1 L_a7")
    A("s_cmp_eq_u32 s36, 2"); A("s_cbranch_scc1 L_a6_h2")
    A("s_cmp_eq_u32 s36, 0"); A("s_cbranch_scc1 L_a6_F")

    A("s_lshl_b32 s72, s90, 3"); A("s_add_u32 s72, s72, s37")
    A("s_lshr_b32 s88, s72, 1"); A("s_and_b32 s89, s72, 1")
    A("v_bfe_u32 v8, v1, 1, 4"); A("v_and_b32 v9, 1, v1"); A("v_lshlrev_b32 v9, 4, v9"); A("v_add_u32 v8, v8, v9"); A("v_lshlrev_b32 v8, 4, v8")
    A("v_lshrrev_b32 v9, 5, v1"); A("v_mul_u32_u24 v9, 3072, v9"); A("v_add_u32 v8, v8, v9")
    A("s_lshl_b32 s72, s88, 11"); A("s_lshl_b32 s73, s89, 10"); A("s_add_u32 s80, s72, s73"); A(f"s_add_u32 s80, s80, {WS_QG}"); A(f"s_add_u32 s81, s80, {WS_B}")
    A("v_lshlrev_b32 v10, 5, v1")
    A("v_mov_b32 v21, s94"); A("v_mov_b32 v23, s94"); A("v_mov_b32 v25, s94"); A("v_mov_b32 v27, s94")
    g.lds_wait(L_CNTP1, 6)
    g.stamp(5)
    for w in range(3):
        A(f"ds_read_b128 v[{12+4*w if w == 0 else 28+4*w}:{15+4*w if w == 0 else 31+4*w}], v8 offset:{L_P1 + w*1024}")
    A("s_waitcnt lgkmcnt(1)")
    A("v_pk_add_f32 v[12:13], v[12:13], v[32:33]"); A("v_pk_add_f32 v[14:15], v[14:15], v[34:35]")
    A("s_waitcnt lgkmcnt(0)")
    A("v_pk_add_f32 v[12:13], v[12:13], v[36:37]"); A("v_pk_add_f32 v[14:15], v[14:15], v[38:39]")
    g.nop(1)
    for r in range(4): A(f"v_mov_b32 v{16+r}, v{12+r}")
    for r in range(4): A(f"v_permlane32_swap_b32 v{12+r}, v{16+r}")
    g.nop(1)
    A("v_add_f32 v20, v12, v16"); A("v_add_f32 v22, v13, v17"); A("v_add_f32 v24, v14, v18"); A("v_add_f32 v26, v15, v19")
    A("s_mov_b32 exec_hi, 0")
    A("buffer_store_dwordx4 v[20:23], v10, s[96:99], s80 offen")
    A("buffer_store_dwordx4 v[24:27], v10, s[96:99], s80 offen offset:16")
    if P.QGATE:
        A("s_mov_b64 exec, -1")
        g.lds_signal(L_FLAGQP)
        A("s_mov_b32 exec_hi, 0")
    A("buffer_store_dwordx4 v[20:23], v10, s[96:99], s81 offen sc1")
    A("buffer_store_dwordx4 v[24:27], v10, s[96:99], s81 offen offset:16 sc1")
    A("s_mov_b64 exec, -1")
    g.stamp(6)
    A("s_cmp_lt_u32 s90, 4"); A("s_cbranch_scc1 L_a6_h2")
    A("s_cmp_eq_u32 s37, 0"); A("s_cbranch_scc1 L_h3_slot16")
    A("s_branch L_fin")

    A("L_a6_F:")
    A("s_add_u32 s72, s39, s91")
    A("s_lshr_b32 s88, s72, 2"); A("s_and_b32 s89, s72, 3")
    A("v_lshrrev_b32 v10, 4, v1")
    A("s_and_b32 s72, s91, 0xfc"); A("v_add_u32 v40, s72, v10")
    A("v_lshlrev_b32 v40, 3, v40"); A("v_add_u32 v40, s90, v40")
    g.xt_check(40, 42, "s86")
    A("v_lshlrev_b32 v8, 2, v10"); A("v_bfe_u32 v9, v1, 1, 2"); A("v_add_u32 v8, v8, v9"); A("v_and_b32 v9, 1, v1"); A("v_lshlrev_b32 v9, 4, v9"); A("v_add_u32 v8, v8, v9")
    A("v_lshlrev_b32 v8, 4, v8")
    A("v_bfe_u32 v9, v1, 3, 1"); A("v_mul_u32_u24 v9, 3072, v9"); A("v_add_u32 v8, v8, v9")
    A("v_cmp_ne_u32 s[76:77], s89, v10")
    A("v_and_b32 v9, 15, v1"); A("v_lshlrev_b32 v9, 5, v9")
    A("v_lshlrev_b32 v11, 11, v10"); A("v_add_u32 v11, v11, v9")
    A("v_lshlrev_b32 v10, 9, v10"); A("v_add_u32 v9, v10, v9")
    A("s_lshl_b32 s72, s88, 13"); A(f"s_add_u32 s72, s72, {WS_XG}")
    A("s_lshl_b32 s73, s89, 9"); A("s_add_u32 s80, s72, s73"); A(f"s_add_u32 s82, s80, {WS_B}")
    A("s_lshl_b32 s73, s89, 11"); A("s_add_u32 s81, s72, s73"); A("s_add_u32 s81, s81, s86")
    A("v_mov_b32 v21, s94"); A("v_mov_b32 v23, s94"); A("v_mov_b32 v25, s94"); A("v_mov_b32 v27, s94")
    A("s_mov_b32 s78, 0x80008000"); A("s_mov_b32 s79, 0x80008000"); A("s_and_b64 s[78:79], s[78:79], s[76:77]")
    g.lds_wait(L_CNTP1, 6)
    g.stamp(5)
    A(f"ds_read_b128 v[12:15], v8 offset:{L_P1}")
    A(f"ds_read_b128 v[32:35], v8 offset:{L_P1+1024}")
    A(f"ds_read_b128 v[36:39], v8 offset:{L_P1+2048}")
    A("s_waitcnt lgkmcnt(1)")
    A("v_pk_add_f32 v[12:13], v[12:13], v[32:33]"); A("v_pk_add_f32 v[14:15], v[14:15], v[34:35]")
    A("s_waitcnt lgkmcnt(0)")
    A("v_pk_add_f32 v[12:13], v[12:13], v[36:37]"); A("v_pk_add_f32 v[14:15], v[14:15], v[38:39]")
    g.nop(1)
    A("v_mov_b32 v20, v12"); A("v_mov_b32 v22, v13"); A("v_mov_b32 v24, v14"); A("v_mov_b32 v26, v15")
    A("s_mov_b64 exec, s[76:77]")
    A("buffer_store_dwordx4 v[20:23], v11, s[96:99], s80 offen")
    A("buffer_store_dwordx4 v[24:27], v11, s[96:99], s80 offen offset:16")
    A("buffer_store_dwordx4 v[20:23], v11, s[96:99], s82 offen sc1")
    A("buffer_store_dwordx4 v[24:27], v11, s[96:99], s82 offen offset:16 sc1")
    g.stamp(6)
    if P.XSENT:
        A("s_mov_b64 exec, s[78:79]")
        g.poll(["buffer_load_dwordx4 v[28:31], v9, s[96:99], s81 offen offset:16 sc1"], [29, 31], P.SLP_X, "XS")
        A("s_mov_b64 exec, s[76:77]")
    g.poll(["buffer_load_dwordx4 v[28:31], v9, s[96:99], s81 offen sc1", "buffer_load_dwordx4 v[32:35], v9, s[96:99], s81 offen offset:16 sc1"], [29, 31, 33, 35], P.SLP_X, "XP")
    g.stamp(7)
    A("v_mov_b32 v12, v28"); A("v_mov_b32 v13, v30"); A("v_mov_b32 v14, v32"); A("v_mov_b32 v15, v34")
    A("s_mov_b64 exec, -1")
    g.xrow_multi("v_add_f32", [12, 13, 14, 15], [16, 17, 18, 19])
    g.nop(1)
    for r in range(4): A(f"v_mov_b32_dpp v{16+r}, v{12+r} row_ror:8 row_mask:0xf bank_mask:0xf")
    for r in range(4):
        g.rne(12+r); g.rne(16+r)
    g.silu4(12, 20)
    for r in range(4): A(f"v_mul_f32 v{20+r}, v{20+r}, v{16+r}")
    for r in range(4): A(f"v_cvt_pk_bf16_f32 v{20+r}, v{20+r}, v{20+r}")
    A("v_lshlrev_b32 v8, 4, v1")
    A("s_mov_b64 exec, 0xff")
    A(f"ds_write_b128 v8, v[20:23] offset:{L_X2U}")
    A("s_mov_b64 exec, -1")
    g.lds_signal(L_FLAGX0)
    g.stamp(8)
    A("s_branch L_fin")

    A("L_a6_h2:")
    A("s_mov_b32 s86, 0")
    A("L_h2:")
    A("s_cmp_eq_u32 s36, 2"); A("s_cbranch_scc1 L_h2_O")
    A("s_add_u32 s85, s37, 8"); A("s_branch L_h2_go")
    A("L_h2_O:")
    A("s_lshl_b32 s85, s37, 1"); A("s_add_u32 s85, s85, s86")
    A("L_h2_go:")
    A("s_lshl_b32 s72, s90, 4"); A("s_add_u32 s85, s85, s72")
    A("s_lshr_b32 s84, s85, 2"); A("s_and_b32 s83, s85, 3")
    A("s_lshr_b32 s72, s84, 1"); A("s_and_b32 s73, s72, 1"); A("s_lshl_b32 s73, s73, 7"); A("s_lshr_b32 s72, s72, 1"); A("s_add_u32 s72, s72, s73")
    A("v_and_b32 v40, 15, v1"); A("v_lshlrev_b32 v40, 3, v40"); A("v_add_u32 v40, s72, v40")
    g.xt_check(40, 42, "s87")
    A("s_lshl_b32 s72, s84, 13"); A("s_lshl_b32 s73, s83, 7"); A("s_add_u32 s80, s72, s73"); A(f"s_add_u32 s80, s80, {WS_AG}"); A("s_add_u32 s80, s80, s87")
    A("s_add_u32 s81, s80, 4096")
    A("v_lshrrev_b32 v8, 3, v1"); A("v_lshlrev_b32 v9, 9, v8"); A("v_and_b32 v10, 7, v1"); A("v_lshlrev_b32 v10, 4, v10"); A("v_add_u32 v9, v9, v10")
    A("v_lshlrev_b32 v8, 4, v8")
    A("s_lshl_b32 s82, s84, 7"); A(f"s_add_u32 s82, s82, {WS_LG}"); A("s_add_u32 s82, s82, s87")
    A("s_lshl_b32 s72, s86, 7")
    A("v_lshlrev_b32 v11, 4, v1"); A("v_add_u32 v11, s72, v11")
    g.lds_wait(L_CNTKV, 8)
    g.stamp(9)
    g.poll(["buffer_load_dwordx4 v[20:23], v8, s[96:99], s82 offen sc1",
            "buffer_load_dwordx4 v[12:15], v9, s[96:99], s80 offen sc1",
            "buffer_load_dwordx4 v[16:19], v9, s[96:99], s81 offen sc1"], [21, 23, 13, 15, 17, 19], P.SLP_H, "HP")
    g.stamp(10)
    A("v_max_f32 v24, v20, v22")
    A("v_lshlrev_b32 v26, 16, v12"); A("v_and_b32 v27, 0xffff0000, v12")
    g.dpp("v_max_f32", 24, 24, 24, "row_ror:8")
    A("v_lshlrev_b32 v28, 16, v14"); A("v_and_b32 v29, 0xffff0000, v14")
    A("v_mov_b32 v25, v24")
    A("v_lshlrev_b32 v30, 16, v16"); A("v_and_b32 v31, 0xffff0000, v16")
    A("v_permlane16_swap_b32 v24, v25")
    A("v_lshlrev_b32 v32, 16, v18")
    A("v_max_f32 v24, v24, v25")
    A("v_and_b32 v33, 0xffff0000, v18")
    A("v_mov_b32 v25, v24"); g.nop(2)
    A("v_permlane32_swap_b32 v24, v25"); g.nop(1)
    A("v_max_f32 v24, v24, v25")
    A("v_sub_f32 v20, v20, v24"); A("v_sub_f32 v22, v22, v24")
    A("v_exp_f32 v20, v20"); A("v_exp_f32 v22, v22"); g.nop(1)
    A("v_add_f32 v24, v20, v22")
    for r in range(4): A(f"v_mul_f32 v{26+r}, v{26+r}, v20")
    for r in range(4): A(f"v_fma_f32 v{26+r}, v{30+r}, v22, v{26+r}")
    for r in (24, 26, 27, 28, 29): g.dpp("v_add_f32", r, r, r, "row_ror:8")
    g.xrow_multi("v_add_f32", [24, 26, 27, 28, 29], [34, 35, 36, 37, 38])
    A("v_rcp_f32 v24, v24"); g.nop(1)
    for r in range(4): A(f"v_mul_f32 v{26+r}, v{26+r}, v24")
    for r in range(4): A(f"v_cvt_pk_bf16_f32 v{26+r}, v{26+r}, v{26+r}")
    A("s_mov_b64 exec, 0xff")
    A(f"ds_write_b128 v11, v[26:29] offset:{L_X2U}")
    A("s_mov_b64 exec, -1")
    A("s_cmp_eq_u32 s86, 0"); A("s_cbranch_scc1 L_h2_f0")
    g.lds_signal(L_FLAGX1)
    g.stamp(11)
    A("s_branch L_fin")
    A("L_h2_f0:")
    g.lds_signal(L_FLAGX0)
    g.stamp(11)
    A("s_cmp_eq_u32 s36, 2"); A("s_cbranch_scc1 L_h3_slot16")
    A("s_cmp_lt_u32 s37, 5"); A("s_cbranch_scc1 L_h3_slot16")
    A("s_branch L_fin")

    A("L_a7:")
    A("s_and_b32 s72, s92, 1"); A("s_lshl_b32 s72, s72, 2"); A("s_add_u32 s72, s72, s38"); A("s_lshl_b32 s72, s72, 3"); A("s_lshr_b32 s73, s92, 1"); A("s_add_u32 s72, s72, s73")
    A("v_and_b32 v40, 3, v1"); A("v_lshlrev_b32 v40, 3, v40"); A("v_add_u32 v40, s72, v40")
    A("v_lshlrev_b32 v40, 3, v40")
    A("s_lshl_b32 s72, s92, 12"); A(f"s_add_u32 s80, s72, {WS_QG}")
    if P.FORCE_B: A(f"s_add_u32 s80, s80, {WS_B}")
    A(f"s_add_u32 s81, s72, {WS_QG + WS_B}")
    A("v_lshlrev_b32 v8, 4, v1"); A("v_lshlrev_b32 v10, 2, v1")
    g.stamp(8)
    if P.QPIPE:
        if P.QPIPE_WAIT:
            A("s_cmp_eq_u32 s36, 2"); A("s_cbranch_scc1 L_q_nw")
            g.lds_wait(L_CNTP1, P.QPIPE_WAIT, slp=2)
            A("L_q_nw:")
        sets = [(12, 42), (44, 60)]
        def issue(si):
            b, xb = sets[si]
            for i in range(4):
                A(f"buffer_load_dwordx4 v[{b+4*i}:{b+3+4*i}], v8, s[96:99], s80 offen offset:{1024*i} sc1")
            A(f"buffer_load_dwordx2 v[{xb}:{xb+1}], v40, s[96:99], s100 offen sc1")
        def check(si, done, nxt):
            b, xb = sets[si]
            A("s_waitcnt vmcnt(5)")
            A(f"v_cmp_ne_u32 vcc, s94, v{b+1}")
            for r in (3, 5, 7, 9, 11, 13, 15):
                A(f"v_cmp_ne_u32 s[74:75], s94, v{b+r}"); A("s_or_b64 vcc, vcc, s[74:75]")
            A("s_cmp_eq_u64 vcc, 0"); A(f"s_cbranch_scc1 {done}")
            A("s_sub_u32 s73, s73, 1"); A("s_cmp_eq_u32 s73, 0"); A(f"s_cbranch_scc1 {done}")
            A(f"v_cmp_ne_u32 vcc, s94, v{xb+1}")
            A("s_cmp_eq_u64 vcc, 0"); A(f"s_cbranch_scc0 {nxt}")
            A(f"v_cmp_ne_u32 vcc, s101, v{xb}")
            A("s_cmp_eq_u64 vcc, 0")
            A("s_cselect_b32 s80, s82, s81")
            A(f"{nxt}:")
        A("s_mov_b32 s82, s80")
        A(f"s_mov_b32 s73, {P.SPIN_G}")
        issue(0)
        A("L_qp_loop:")
        issue(1)
        check(0, "L_qp_d0", "L_qp_n0")
        issue(0)
        check(1, "L_qp_d1", "L_qp_n1")
        A("s_branch L_qp_loop")
        for si, lab in ((1, "L_qp_d1"), (0, "L_qp_d0")):
            b = sets[si][0]
            A(f"{lab}:")
            g.stamp(9)
            A(f"v_add_f32 v{b}, v{b}, v{b+4}"); A(f"v_add_f32 v{b+2}, v{b+2}, v{b+6}"); A(f"v_add_f32 v{b+8}, v{b+8}, v{b+12}"); A(f"v_add_f32 v{b+10}, v{b+10}, v{b+14}")
            A(f"v_cvt_pk_bf16_f32 v62, v{b}, v{b+2}"); A(f"v_cvt_pk_bf16_f32 v63, v{b+8}, v{b+10}")
            A(f"ds_write_b32 v10, v62 offset:{L_QL}")
            A(f"ds_write_b32 v10, v63 offset:{L_QL+256}")
            if si == 1: A("s_branch L_qp_e")
        A("L_qp_e:")
    else:
        lp = g.lab("QP"); le = g.lab("QPE"); lx = g.lab("QPX")
        A(f"s_mov_b32 s73, {P.SPIN_G}")
        A("s_mov_b32 s82, 0")
        A(f"{lp}:")
        for i in range(4):
            A(f"buffer_load_dwordx4 v[{12+4*i}:{15+4*i}], v8, s[96:99], s80 offen offset:{1024*i} sc1")
        A("s_cmp_lg_u32 s82, 0"); A(f"s_cbranch_scc1 {lx}")
        A("buffer_load_dwordx2 v[42:43], v40, s[96:99], s100 offen sc1")
        A(f"{lx}:")
        A("s_waitcnt vmcnt(0)")
        A("v_cmp_ne_u32 vcc, s94, v13")
        for r in (15, 17, 19, 21, 23, 25, 27):
            A(f"v_cmp_ne_u32 s[74:75], s94, v{r}"); A("s_or_b64 vcc, vcc, s[74:75]")
        A("s_cmp_eq_u64 vcc, 0"); A(f"s_cbranch_scc1 {le}")
        A("s_sub_u32 s73, s73, 1"); A("s_cmp_eq_u32 s73, 0"); A(f"s_cbranch_scc1 {le}")
        A("s_cmp_lg_u32 s82, 0"); A(f"s_cbranch_scc1 {lp}_s")
        A("v_cmp_ne_u32 vcc, s94, v43")
        A("s_cmp_eq_u64 vcc, 0"); A(f"s_cbranch_scc0 {lp}_s")
        A("s_mov_b32 s82, 1")
        A("v_cmp_ne_u32 vcc, s101, v42")
        A("s_cmp_eq_u64 vcc, 0")
        A("s_cselect_b32 s80, s80, s81")
        A(f"{lp}_s:")
        if P.SLP_Q: A(f"s_sleep {P.SLP_Q}")
        A(f"s_branch {lp}")
        A(f"{le}:")
        g.stamp(9)
        A("v_add_f32 v12, v12, v16"); A("v_add_f32 v14, v14, v18"); A("v_add_f32 v20, v20, v24"); A("v_add_f32 v22, v22, v26")
        A("v_cvt_pk_bf16_f32 v12, v12, v14"); A("v_cvt_pk_bf16_f32 v20, v20, v22")
        A(f"ds_write_b32 v10, v12 offset:{L_QL}")
        A(f"ds_write_b32 v10, v20 offset:{L_QL+256}")
    g.lds_signal(L_FLAGQ)
    g.stamp(10)
    A("s_cmp_eq_u32 s36, 2"); A("s_cbranch_scc0 L_fin")
    A("s_mov_b32 s86, 1"); A("s_branch L_h2")

    A("L_auxD:")
    A("s_mov_b32 s86, 0"); A("s_mov_b32 s84, s95")
    A("s_cmp_eq_u32 s36, 2"); A("s_cbranch_scc1 L_D_O")
    A("s_cmp_ge_u32 s95, 3"); A("s_cbranch_scc1 L_fin")
    A("s_cmp_eq_u32 s36, 1"); A("s_cbranch_scc1 L_D_Q")
    g.srd(28, 20, 21, 4608*576*2)
    A("s_add_u32 s85, s39, s91")
    A("s_mov_b32 s83, s85")
    A("s_branch L_D_go")
    A("L_D_Q:")
    A("s_cmp_ge_u32 s90, 4"); A("s_cbranch_scc1 L_fin")
    A("s_add_u32 s85, s37, 8"); A("s_branch L_D_wo")
    A("L_D_O:")
    A("s_cmp_ge_u32 s95, 3"); A("s_cselect_b32 s86, 1, 0"); A("s_mul_i32 s72, s86, 3"); A("s_sub_u32 s84, s95, s72")
    A("s_lshl_b32 s85, s37, 1"); A("s_add_u32 s85, s85, s86")
    A("L_D_wo:")
    g.srd(28, 12, 13, 4096*576*2)
    A("s_lshl_b32 s72, s90, 4"); A("s_add_u32 s85, s85, s72")
    A("s_add_u32 s83, s85, 144")
    A("L_D_go:")
    A("s_setprio 0")
    A("v_lshrrev_b32 v3, 4, v1"); A("v_lshlrev_b32 v3, 1, v3"); A("v_bfe_u32 v4, v1, 3, 1"); A("v_add_u32 v3, v3, v4")
    A("v_and_b32 v4, 7, v1"); A("v_lshlrev_b32 v4, 4, v4")
    A(f"s_mul_i32 s72, s85, {32*1152}"); A("s_mul_i32 s73, s84, 384"); A("s_add_u32 s82, s72, s73")
    A("v_mul_u32_u24 v5, 1152, v3"); A("v_add_u32 v5, v5, v4"); A("v_add_u32 v5, s82, v5")
    A("s_lshl_b32 s72, s86, 7"); A("v_lshlrev_b32 v100, 2, v3"); A("v_add_u32 v100, s72, v100")
    A("v_bfe_u32 v101, v1, 3, 1"); A("v_lshrrev_b32 v102, 5, v1")
    A("v_cmp_eq_u32 s[78:79], v101, v102")
    A("v_mul_u32_u24 v101, 768, v102"); A("v_and_b32 v102, 7, v1"); A("v_lshlrev_b32 v102, 5, v102"); A("v_add_u32 v101, v101, v102")
    A("v_bfe_u32 v102, v1, 4, 1"); A("v_lshlrev_b32 v102, 4, v102"); A("v_add_u32 v101, v101, v102")
    A("s_mul_i32 s72, s95, 1536")
    A("v_add_u32 v101, s72, v101")
    A("v_lshlrev_b32 v102, 3, v1"); A("v_add_u32 v102, s72, v102")
    A("s_mul_i32 s72, s83, 4608"); A("s_mul_i32 s73, s84, 1536"); A("s_add_u32 s80, s72, s73"); A(f"s_add_u32 s80, s80, {WS_PG}")
    A("v_lshlrev_b32 v103, 4, v1")
    A("v_mov_b32 v105, s94"); A("v_mov_b32 v107, s94"); A("v_mov_b32 v109, s94"); A("v_mov_b32 v111, s94")
    for r in range(88, 100): A(f"v_mov_b32 v{r}, 0")
    if P.FGATE:
        A("s_cmp_lg_u32 s36, 0"); A("s_cbranch_scc1 L_D_g1")
        if P.FGATE == 1: g.lds_wait(L_FLAGPUB, 1, slp=1)
        else: g.lds_wait(L_CNTKV, P.FGN, slp=1)
        A("s_branch L_D_g2")
        A("L_D_g1:")
        g.lds_wait(L_CNTKVI, 8, slp=2)
        A("L_D_g2:")
    else:
        g.lds_wait(L_CNTKVI, P.KVIN, slp=2)
    g.stamp(9)
    A("s_cmp_eq_u32 s36, 2"); A("s_cbranch_scc1 L_D_ldO")
    for dep, lab in ((P.DD_F, None), (P.DD_O, "L_D_ldO")):
        if lab: A(f"{lab}:")
        A("s_mov_b32 s77, 0")
        for rg in range(4):
            for sg in range(3):
                b = 8 + 4*(rg*3+sg)
                if rg*3+sg >= dep: A(f"s_waitcnt vmcnt({dep-1})")
                A(f"buffer_load_dwordx4 v[{b}:{b+3}], v5, s[28:31], s77 offen offset:{sg*128} nt")
            if rg < 3: A(f"s_add_u32 s77, s77, {8*1152}")
        if not lab: A("s_branch L_D_ldE")
    A("L_D_ldE:")
    g.stamp(10)
    A("s_setprio 2")
    A("s_cmp_eq_u32 s86, 0"); A("s_cbranch_scc1 L_D_w0")
    g.lds_wait(L_FLAGX1, 1, slp=0)
    A("s_branch L_D_w1")
    A("L_D_w0:")
    g.lds_wait(L_FLAGX0, 1, slp=0)
    A("L_D_w1:")
    g.stamp(11)
    for rg in range(4):
        A(f"ds_read_b32 v{68+rg}, v100 offset:{L_X2U + 32*rg}")
    for rg in range(4):
        at = 80 if rg % 2 == 0 else 84
        A(f"s_waitcnt lgkmcnt({3-rg})")
        for r in range(4):
            A(f"v_and_b32 v{at+r}, v{68+rg}, v{124+r}")
        for sg in range(3):
            b = 8 + 4*(rg*3+sg)
            A(f"s_waitcnt vmcnt({11-(rg*3+sg)})")
            if sg == 0: g.nop(1)
            A(f"v_mfma_f32_16x16x32_bf16 v[{88+4*sg}:{91+4*sg}], v[{at}:{at+3}], v[{b}:{b+3}], v[{88+4*sg}:{91+4*sg}]")
    g.stamp(12)
    A("s_mov_b64 exec, s[78:79]")
    g.nop(5)
    for sg in range(3):
        A(f"ds_write_b128 v101, v[{88+4*sg}:{91+4*sg}] offset:{L_TB + sg*256}")
    A("s_mov_b64 exec, -1")
    A("s_waitcnt lgkmcnt(0)")
    A(f"ds_read_b64 v[24:25], v102 offset:{L_TB}")
    A(f"ds_read_b64 v[26:27], v102 offset:{L_TB+768}")
    A(f"ds_read_b64 v[28:29], v102 offset:{L_TB+512}")
    A(f"ds_read_b64 v[30:31], v102 offset:{L_TB+768+512}")
    A("s_waitcnt lgkmcnt(2)")
    A("v_add_f32 v104, v24, v26"); A("v_add_f32 v106, v25, v27")
    A("buffer_store_dwordx4 v[104:107], v103, s[96:99], s80 offen sc1")
    A("s_waitcnt lgkmcnt(0)")
    A("v_add_f32 v108, v28, v30"); A("v_add_f32 v110, v29, v31")
    A("s_mov_b32 exec_hi, 0")
    A("buffer_store_dwordx4 v[108:111], v103, s[96:99], s80 offen offset:1024 sc1")
    A("s_mov_b64 exec, -1")
    if P.H3WAIT: g.lds_signal(L_CNTDP)
    g.stamp(13)
    A("s_branch L_fin")

    A("L_KV:")
    A("s_sub_u32 s95, s3, 4")
    A("s_setprio 1")
    A("s_cmp_lg_u32 s95, 0"); A("s_cbranch_scc1 L_KV_ni")
    A("v_mov_b32 v5, 0"); A("v_lshlrev_b32 v6, 2, v1")
    A("s_mov_b64 exec, 0xffff")
    A("ds_write_b32 v6, v5")
    A("s_mov_b64 exec, -1")
    A("L_KV_ni:")
    g.srd(28, 6, 7, 0x10000000); g.srd(32, 8, 9, 0x10000000)
    A("s_lshl_b32 s76, s92, 24"); A("s_lshl_b32 s77, s93, 16"); A("s_add_u32 s76, s76, s77"); A(f"s_add_u32 s76, s76, {61440*256}")
    A("s_lshl_b32 s77, s95, 13"); A("s_add_u32 s76, s76, s77")
    A("v_bfe_u32 v3, v1, 2, 2"); A("v_lshlrev_b32 v3, 8, v3"); A("v_lshrrev_b32 v4, 4, v1"); A("v_lshlrev_b32 v4, 6, v4"); A("v_add_u32 v3, v3, v4")
    A("v_and_b32 v4, 3, v1"); A("v_lshlrev_b32 v4, 4, v4"); A("v_add_u32 v3, v3, v4"); A("v_add_u32 v3, s76, v3")
    A("v_lshlrev_b32 v4, 4, v1"); A("v_add_u32 v4, s76, v4")
    A("s_waitcnt lgkmcnt(0)")
    g.tagmul()
    A("s_cmp_lg_u32 s95, 1"); A("s_cbranch_scc1 L_KV_nx")
    A("v_mov_b32 v6, s101"); A("v_mov_b32 v7, s94"); A("s_lshl_b32 s72, s2, 3"); A("v_mov_b32 v5, s72")
    A("s_mov_b64 exec, 1")
    A("buffer_store_dwordx2 v[6:7], v5, s[96:99], s100 offen sc1")
    A("s_mov_b64 exec, -1")
    A("L_KV_nx:")
    A("s_barrier")
    g.stamp(2)
    if P.EARLYB:
        A("s_cmp_eq_u32 s36, 2"); A("s_cbranch_scc1 L_KV_ng2")
        A("s_cmp_eq_u32 s36, 0"); A(f"s_cselect_b32 s79, {P.NG_F}, {P.NG_Q}")
        l = g.lab("LW"); e = g.lab("LWE")
        A("v_mov_b32 v7, 0"); A(f"s_mov_b32 s73, {P.SPIN_L}")
        A(f"{l}:"); A(f"ds_read_b32 v6, v7 offset:{L_CNTP1I}"); A("s_waitcnt lgkmcnt(0)"); A("v_readfirstlane_b32 s72, v6")
        A("s_cmp_ge_u32 s72, s79"); A(f"s_cbranch_scc1 {e}"); A("s_sub_u32 s73, s73, 1"); A("s_cmp_eq_u32 s73, 0"); A(f"s_cbranch_scc1 {e}"); A("s_sleep 1"); A(f"s_branch {l}"); A(f"{e}:")
        A("L_KV_ng2:")
        g.stamp(1)
    if P.QGATE:
        A("s_cmp_lg_u32 s36, 1"); A("s_cbranch_scc1 L_KV_ng")
        if P.QGATE == 1:
            g.lds_wait(L_FLAGQP, 1, slp=1)
        else:
            g.lds_wait(L_CNTP1, P.QGATE, slp=1)
        A("L_KV_ng:")
    A("s_add_u32 s78, s95, s93")
    deps = [P.KVD, P.KVD_Q or P.KVD, P.KVD_O or P.KVD]
    uniq = sorted(set(deps))
    if len(uniq) > 1:
        for ty in (1, 2):
            if deps[ty] != deps[0]:
                A(f"s_cmp_eq_u32 s36, {ty}"); A(f"s_cbranch_scc1 L_KVL_{deps[ty]}")
    order = [deps[0]] + [d for d in uniq if d != deps[0]]
    for dep in order:
        A(f"L_KVL_{dep}:")
        for t in range(16):
            tt = t % 8
            A(f"s_add_u32 s77, s78, {tt}"); A("s_and_b32 s77, s77, 7"); A("s_lshl_b32 s77, s77, 10")
            d = dep
            if P.KD and t < P.KSW: d = P.KD
            if t >= d: A(f"s_waitcnt vmcnt({d-1})")
            if t < 8: A(f"buffer_load_dwordx4 v[{8+4*tt}:{11+4*tt}], v3, s[28:31], s77 offen nt")
            else: A(f"buffer_load_dwordx4 v[{40+4*tt}:{43+4*tt}], v4, s[32:35], s77 offen nt")
        if dep != order[-1]: A("s_branch L_KVL_e")
    A("L_KVL_e:")
    g.lds_signal(L_CNTKVI)
    g.stamp(3)
    A("v_bfe_u32 v3, v1, 3, 1"); A("v_lshlrev_b32 v3, 8, v3"); A("v_lshrrev_b32 v4, 4, v1"); A("v_lshlrev_b32 v4, 6, v4"); A("v_add_u32 v3, v3, v4")
    A("v_and_b32 v4, 3, v1"); A("v_lshlrev_b32 v4, 4, v4"); A("v_add_u32 v3, v3, v4")
    A("v_lshrrev_b32 v120, 5, v1"); A("v_lshlrev_b32 v120, 9, v120"); A("v_and_b32 v4, 15, v1"); A("v_lshlrev_b32 v4, 5, v4"); A("v_add_u32 v120, v120, v4")
    A("v_bfe_u32 v4, v1, 4, 1"); A("v_lshlrev_b32 v4, 4, v4"); A("v_add_u32 v120, v120, v4")
    A("s_lshl_b32 s72, s95, 10"); A("v_add_u32 v120, s72, v120")
    A("v_and_b32 v121, 8, v1"); A("s_lshl_b32 s72, s95, 4"); A("v_add_u32 v121, s72, v121")
    A("v_bfe_u32 v4, v1, 2, 1"); A("v_cmp_eq_u32 s[76:77], 0, v4")
    A("s_lshl_b32 s72, s92, 14"); A("s_lshl_b32 s73, s93, 9"); A("s_add_u32 s80, s72, s73"); A(f"s_add_u32 s80, s80, {WS_AG}"); A(f"s_add_u32 s81, s80, {WS_B}")
    A("s_lshl_b32 s72, s92, 8"); A("s_and_b32 s73, s93, 7"); A("s_lshl_b32 s73, s73, 4"); A("s_add_u32 s72, s72, s73")
    A("s_lshr_b32 s73, s93, 3"); A("s_lshl_b32 s73, s73, 3"); A("s_add_u32 s82, s72, s73"); A(f"s_add_u32 s82, s82, {WS_LG}"); A(f"s_add_u32 s83, s82, {WS_B}")
    g.lds_wait(L_FLAGQ, 1, slp=1)
    g.stamp(4)
    A("s_setprio 2")
    A(f"ds_read_b128 v[76:79], v3 offset:{L_QL}")
    A("s_waitcnt lgkmcnt(0)")
    for r in range(4): A(f"v_cndmask_b32 v{72+r}, 0, v{76+r}, s[76:77]")
    for r in range(4): A(f"v_cndmask_b32 v{76+r}, v{76+r}, 0, s[76:77]")
    g.nop(1)
    for p in range(4):
        A(f"s_waitcnt vmcnt({15-2*p-1})")
        d = 80 + 4*p
        A(f"v_mfma_f32_16x16x32_bf16 v[{d}:{d+3}], v[{8+8*p}:{11+8*p}], v[72:75], 0")
        A(f"v_mfma_f32_16x16x32_bf16 v[{d}:{d+3}], v[{12+8*p}:{15+8*p}], v[76:79], v[{d}:{d+3}]")
    g.stamp(5)
    g.nop(5)
    for p in range(4):
        d = 80 + 4*p
        A(f"v_mov_b32_dpp v{96+p}, v{d} quad_perm:[0,0,0,0] row_mask:0xf bank_mask:0xf")
        if p == 2: g.nop(3)
    for q in range(1, 4):
        for p in range(4):
            d = 80 + 4*p
            g.dpp("v_add_f32", 96+p, d+q, 96+p, f"quad_perm:[{q},{q},{q},{q}]")
    A("v_max3_f32 v116, v96, v97, v98"); A("v_max_f32 v116, v116, v99"); g.nop(2)
    g.dpp("v_max_f32", 116, 116, 116, "row_half_mirror"); g.nop(1)
    g.xrow("v_max_f32", 116, 117)
    c = 128**-0.5 * 1.4426950408889634
    A(f"s_mov_b32 s72, 0x{f32bits(c):08x}")
    A("v_mul_f32 v116, s72, v116")
    for p in range(4): A(f"v_fma_f32 v{96+p}, v{96+p}, s72, -v116")
    for p in range(4): A(f"v_exp_f32 v{96+p}, v{96+p}")
    for p in range(4): A(f"v_cvt_pk_bf16_f32 v{100+p}, v{96+p}, v{96+p}")
    for p in range(4): A(f"v_and_b32 v{96+p}, 0xffff0000, v{100+p}")
    for t in range(8):
        p, u = t // 2, t % 2
        at = 104 if t % 2 == 0 else 108
        for r in range(4):
            direct = (r < 2) if u == 0 else (r >= 2)
            if direct: A(f"v_and_b32 v{at+r}, v{100+p}, v{124+r}")
            else: g.dpp("v_and_b32", at+r, 100+p, 124+r, "row_half_mirror")
        if t == 0:
            A("v_add_f32 v118, v96, v97"); A("v_add_f32 v119, v98, v99"); A("v_add_f32 v118, v118, v119")
        if t == 1:
            g.dpp("v_add_f32", 118, 118, 118, "row_half_mirror")
        if t == 2:
            A("v_mov_b32 v117, v118")
        if t == 3:
            A("v_permlane16_swap_b32 v118, v117")
        if t == 4:
            A("v_add_f32 v118, v118, v117"); A("v_mov_b32 v117, v118")
        if t == 5:
            A("v_permlane32_swap_b32 v118, v117")
        if t == 6:
            A("v_add_f32 v117, v118, v117")
        A(f"s_waitcnt vmcnt({7-t})")
        g.nop(1)
        cin = "0" if t == 0 else "v[112:115]"
        A(f"v_mfma_f32_16x16x32_bf16 v[112:115], v[{at}:{at+3}], v[{40+4*t}:{43+4*t}], {cin}")
    g.stamp(6)
    A("s_mov_b64 exec, 0x101")
    A(f"ds_write_b64 v121, v[116:117] offset:{L_ML}")
    A("s_mov_b64 exec, -1")
    A("v_lshlrev_b32 v3, 4, v1")
    A("v_lshrrev_b32 v4, 5, v1"); A("v_lshlrev_b32 v122, 3, v4")
    A("v_lshlrev_b32 v5, 13, v4"); A("v_and_b32 v123, 31, v1"); A("v_lshlrev_b32 v123, 4, v123"); A("v_add_u32 v5, v5, v123")
    A("v_lshlrev_b32 v123, 7, v4")
    A(f"ds_write_b128 v120, v[112:115] offset:{L_OK}")
    g.lds_arrive(L_CNTKV)
    A("s_cmp_eq_u32 s72, 7"); A("s_cbranch_scc0 L_KV_done")
    A("s_setprio 3")
    for k in range(8):
        A(f"ds_read_b64 v[{8+2*k}:{9+2*k}], v122 offset:{L_ML + 16*k}")
    for k in range(7):
        A(f"ds_read_b128 v[{24+4*k}:{27+4*k}], v3 offset:{L_OK + 1024*k}")
    A("s_waitcnt lgkmcnt(7)")
    A(f"ds_read_b128 v[52:55], v3 offset:{L_OK + 1024*7}")
    A("v_max3_f32 v56, v8, v10, v12"); A("v_max3_f32 v57, v14, v16, v18"); A("v_max3_f32 v56, v56, v20, v22"); A("v_max_f32 v56, v56, v57")
    for k in range(8): A(f"v_sub_f32 v{8+2*k}, v{8+2*k}, v56")
    for k in range(8): A(f"v_exp_f32 v{8+2*k}, v{8+2*k}")
    A("v_mov_b32 v65, s94"); A("v_mov_b32 v67, s94"); A("v_mov_b32 v69, s94")
    A("v_mul_f32 v57, v8, v9")
    for k in range(1, 8): A(f"v_fma_f32 v57, v{8+2*k}, v{9+2*k}, v57")
    A("v_rcp_f32 v58, v57"); A("v_log_f32 v59, v57")
    A("s_waitcnt lgkmcnt(0)")
    for r in range(4): A(f"v_mul_f32 v{60+r}, v{24+r}, v8")
    for k in range(1, 8):
        for r in range(4): A(f"v_fma_f32 v{60+r}, v{24+4*k+r}, v{8+2*k}, v{60+r}")
    for r in range(4): A(f"v_mul_f32 v{60+r}, v{60+r}, v58")
    A("v_add_f32 v68, v56, v59")
    A("v_cvt_pk_bf16_f32 v64, v60, v61"); A("v_cvt_pk_bf16_f32 v66, v62, v63")
    A("buffer_store_dwordx4 v[64:67], v5, s[96:99], s80 offen")
    A("s_mov_b32 exec_lo, 1"); A("s_mov_b32 exec_hi, 1")
    A("buffer_store_dwordx2 v[68:69], v123, s[96:99], s82 offen")
    A("buffer_store_dwordx2 v[68:69], v123, s[96:99], s83 offen sc1")
    A("s_mov_b64 exec, -1")
    if P.FGATE == 1: g.lds_signal(L_FLAGPUB)
    A("buffer_store_dwordx4 v[64:67], v5, s[96:99], s81 offen sc1")
    g.stamp(7)
    A("L_KV_done:")
    A("s_cmp_eq_u32 s36, 2"); A("s_cbranch_scc1 L_h3_kv")
    A("s_cmp_eq_u32 s36, 0"); A("s_cbranch_scc1 L_fin")
    A("s_cmp_lt_u32 s90, 4"); A("s_cselect_b32 s72, 5, 1"); A("s_cmp_ge_u32 s37, s72"); A("s_cbranch_scc1 L_fin")
    A("L_h3_kv:")
    if P.H3WAIT:
        A("s_cmp_eq_u32 s36, 2"); A("s_cbranch_scc1 L_h3_w2")
        A("s_cmp_ge_u32 s90, 4"); A("s_cbranch_scc1 L_h3_w0")
        g.lds_wait(L_CNTDP, 3, slp=1)
        A("s_branch L_h3_w0")
        A("L_h3_w2:")
        g.lds_wait(L_CNTDP, 6, slp=1)
        A("L_h3_w0:")
    A("s_mov_b32 s86, s95"); A("s_add_u32 s87, s95, 9")
    A("s_branch L_h3")
    A("L_h3_slot16:")
    if P.H3WAIT:
        A("s_cmp_eq_u32 s36, 2"); A("s_cbranch_scc1 L_h3_v2")
        A("s_cmp_ge_u32 s90, 4"); A("s_cbranch_scc1 L_h3_v0")
        g.lds_wait(L_CNTDP, 3, slp=1)
        A("s_branch L_h3_v0")
        A("L_h3_v2:")
        g.lds_wait(L_CNTDP, 6, slp=1)
        A("L_h3_v0:")
    A("s_mov_b32 s86, 8"); A("s_mov_b32 s87, 17")
    A("L_h3:")
    A("s_setprio 3")
    A("s_mul_i32 s85, s90, 9")
    A("s_cmp_lt_u32 s90, 4"); A("s_cselect_b32 s72, 4, 8"); A("s_add_u32 s72, s72, s37")
    A("s_cmp_eq_u32 s36, 2"); A("s_cselect_b32 s72, s37, s72"); A("s_add_u32 s85, s85, s72")
    A("s_lshl_b32 s80, s86, 4")
    A("s_cmp_eq_u32 s87, 17"); A("s_cselect_b32 s81, 8, s87"); A("s_lshl_b32 s81, s81, 4")
    A("s_mul_i32 s80, s80, 4608"); A("s_mul_i32 s81, s81, 4608")
    A("s_lshl_b32 s72, s85, 6"); A(f"s_add_u32 s72, s72, {WS_PG}")
    A("s_add_u32 s80, s80, s72"); A("s_add_u32 s81, s81, s72")
    A("v_lshrrev_b32 v8, 2, v1"); A("v_mul_u32_u24 v8, 4608, v8"); A("v_and_b32 v9, 3, v1"); A("v_lshlrev_b32 v9, 4, v9"); A("v_add_u32 v8, v8, v9")
    A("v_lshlrev_b32 v9, 3, v1")
    A("s_lshl_b32 s72, s86, 5"); A("v_add_u32 v10, s72, v9")
    A("s_lshl_b32 s72, s87, 5"); A("v_add_u32 v11, s72, v9")
    g.srd(32, 4, 5, 1152)
    g.srd(28, 22, 23, 1152)
    A("s_lshl_b32 s72, s85, 4")
    A("v_lshlrev_b32 v30, 1, v1"); A("v_add_u32 v30, s72, v30")
    A("v_lshlrev_b32 v31, 2, v1")
    A("s_mov_b64 exec, 0xff")
    A("buffer_load_ushort v32, v30, s[32:35], 0 offen")
    A("s_mov_b64 exec, -1")
    g.stamp(13)
    if P.H3SENT:
        A("s_mov_b32 exec_lo, 0"); A("s_mov_b32 exec_hi, 0x80000000")
        g.poll(["buffer_load_dwordx4 v[12:15], v8, s[96:99], s80 offen sc1"], [13, 15], 2, "FS")
        A("s_mov_b64 exec, -1")
    g.poll(["buffer_load_dwordx4 v[12:15], v8, s[96:99], s80 offen sc1", "buffer_load_dwordx4 v[16:19], v8, s[96:99], s81 offen sc1"],
           [13, 15, 17, 19], P.SLP_F, "FP", masked=True)
    A("s_mov_b64 exec, -1")
    g.stamp(14)
    for ctrl in ("row_ror:4", "row_ror:8"):
        g.nop(1)
        for r in (12, 14, 16, 18): g.dpp("v_add_f32", r, r, r, ctrl)
    g.xrow_multi("v_add_f32", [12, 14, 16, 18], [20, 21, 22, 23])
    A("v_mov_b32 v13, v14"); A("v_mov_b32 v17, v18")
    A("s_mov_b64 exec, 0xf")
    A(f"ds_write_b64 v10, v[12:13] offset:{L_H3S}")
    A(f"ds_write_b64 v11, v[16:17] offset:{L_H3S}")
    A("s_mov_b64 exec, -1")
    g.lds_arrive(L_CNTH3)
    A("s_cmp_eq_u32 s72, 8"); A("s_cbranch_scc0 L_fin")
    A("s_mov_b64 exec, 0xff")
    for sl in range(15):
        A(f"ds_read_b32 v{12+sl}, v31 offset:{L_H3S + 32*sl}")
    A("s_waitcnt lgkmcnt(6)")
    for sl in (15, 16): A(f"ds_read_b32 v{40+sl}, v31 offset:{L_H3S + 32*sl}")
    A("v_add_f32 v12, v12, v13"); A("v_add_f32 v14, v14, v15"); A("v_add_f32 v16, v16, v17"); A("v_add_f32 v18, v18, v19")
    A("v_add_f32 v12, v12, v14"); A("v_add_f32 v16, v16, v18"); A("v_add_f32 v12, v12, v20"); A("v_add_f32 v12, v12, v16")
    g.rne(12)
    g.silu4(12, 13, n=1)
    A("s_waitcnt lgkmcnt(0)")
    A("v_add_f32 v21, v21, v22"); A("v_add_f32 v23, v23, v24"); A("v_add_f32 v25, v25, v26"); A("v_add_f32 v55, v55, v56")
    A("v_add_f32 v21, v21, v23"); A("v_add_f32 v25, v25, v55"); A("v_add_f32 v21, v21, v25")
    g.rne(21)
    A("v_mul_f32 v13, v13, v21")
    g.rne(13)
    A("v_lshlrev_b32 v32, 16, v32")
    A("v_add_f32 v13, v13, v32")
    A("v_cvt_pk_bf16_f32 v13, v13, v13")
    A("buffer_store_short v13, v30, s[28:31], 0 offen")
    A("s_cmp_lg_u32 s85, 0"); A("s_cbranch_scc1 L_fin_x")
    A("s_mov_b64 exec, 1")
    A("v_mov_b32 v14, s94"); A("v_mov_b32 v15, 0")
    A(f"buffer_store_dword v14, v15, s[96:99], 0 offen offset:{WS_EPOCH} sc1")
    A("L_fin_x:")
    A("s_mov_b64 exec, -1")
    g.stamp(15)
    A("L_fin:")
    if stamps:
        A("s_mov_b64 exec, -1")
        A("s_waitcnt lgkmcnt(0)")
        for i in range(16):
            A(f"v_writelane_b32 v8, s{40+2*i}, {i}"); A(f"v_writelane_b32 v9, s{41+2*i}, {i}")
        A("s_lshl_b32 s72, s2, 4"); A("s_add_u32 s72, s72, s3"); A("s_lshl_b32 s72, s72, 7"); A(f"s_add_u32 s72, s72, {WS_STAMP}")
        A("v_lshlrev_b32 v3, 3, v1")
        A("s_mov_b64 exec, 0xffff")
        A("buffer_store_dwordx2 v[8:9], v3, s[96:99], s72 offen")
    A("L_end:"); A("s_endpgm")
    A('.section .rodata,"a"'); A(".p2align 6"); A(f".amdhsa_kernel {NAME}_kernel")
    A("  .amdhsa_next_free_vgpr 128"); A("  .amdhsa_next_free_sgpr 102"); A("  .amdhsa_accum_offset 128")
    A("  .amdhsa_group_segment_fixed_size 0"); A("  .amdhsa_kernarg_size 96"); A("  .amdhsa_user_sgpr_count 2")
    A("  .amdhsa_user_sgpr_kernarg_segment_ptr 1"); A("  .amdhsa_system_sgpr_workgroup_id_x 1")
    A("  .amdhsa_float_denorm_mode_32 3")
    A(".end_amdhsa_kernel")
    return "\n".join(g.L) + "\n"

if __name__ == "__main__":
    ap = argparse.ArgumentParser(); ap.add_argument("-o", default="k6.s"); ap.add_argument("--stamps", action="store_true")
    ap.add_argument("--set", action="append", default=[])
    a = ap.parse_args()
    for kv in a.set:
        k, v = kv.split("="); setattr(P, k, int(v, 0))
    open(a.o, "w").write(gen(a.stamps))
```

```python
import sys, argparse, struct
NAME = "recurrent_scan__sliding_block_cached__swiglu_ffn__decode"
def f32bits(x): return struct.unpack("<I", struct.pack("<f", x))[0]

WS_EPOCH = 0x0
WS_XT = 0x8000
WS_QG = 0x10000
WS_XG = 0x20000
WS_LG = 0x68000
WS_AG = 0x70000
WS_PG = 0xC0000
WS_B = 0x400000
WS_STAMP = 0x800000
L_CNTP1, L_CNTKVI, L_FLAGQ, L_CNTKV, L_FLAGX0, L_FLAGX1, L_CNTH3, L_FLAGPUB, L_FLAGQP, L_CNTP1I, L_CNTDP = 0, 4, 8, 12, 16, 20, 24, 28, 32, 36, 40
L_XRAW = 0x40
L_QL = 0x500
L_ML = 0x700
L_X2U = 0x780
L_H3S = 0x880
L_P1 = 0x1000
L_OK = 0x3000
L_TB = 0x5000
LDS_BYTES = 0x7600


HEADER = """
Fused decode step (layernorm -> GQA sliding-window attention + wo, SwiGLU FFN, gated residual) in ONE launch.
Kernarg (96 B): x, k_cache, v_cache, wq, wo, B_x(unused), w_gate, w_up, w_down, out, debug, ws.
256 workgroups x 16 waves, one per CU. Workgroup j: xc = j&7, idx = j>>3.
  attention : kv head 2*xc + (idx>>4), 256 keys (split idx&15); 8 "KV" waves (4..11), 32 keys each.
  type F    : gate/up tile (128 cols x 144 rows), 4-way exchange, h, 32 rows of w_down  -> partial b
  type Q    : wq tile (one head x 288 rows) -> q partial;  type O / Q : 32-row units of wo -> partial s
  72 reducer workgroups sum the 144 b + 128 s partial vectors (8 columns each) and write the output.
All matrix-vector products run on MFMA straight from the loaded registers (delta-masked operand trick).
Hand-offs between workgroups are 8-byte {payload, tag} granules in ws; tag = LCG(word 0 of ws at entry), the
word is advanced at the end of the launch.  Every hand-off is written twice (plain = same-XCD L2 copy, sc1 =
device-coherent copy); a consumer picks the copy from a per-launch table of XCC ids, so any placement is correct.
Generated by a python script (own generator).
"""

class P:
    KVD = 6; DD_F = 12; DD_O = 6
    SLP_Q = 2; SLP_X = 4; SLP_H = 0; SLP_F = 0; SLP_L = 1
    XSENT = 0; H3SENT = 0; QSENT = 0
    FORCE_B = 0; KVD_Q = 0; KVD_O = 4; H3WAIT = 1; HEAVY = 0x0f; TLBW = 0; QPIPE = 1; QPIPE_WAIT = 6; KD = 0; KSW = 8; FGN = 1; P1D_F = 5; P1D_Q = 12; QGATE = 0; EARLYB = 2; NG_F = 6; NG_Q = 6; NF_LO = 20; NF_HI = 16; FGATE = 1; FGIDX = 18; KVIN = 8
    SPIN_G = 40000; SPIN_L = 400000

class G:
    def __init__(self, stamps=False):
        self.L = []; self.stamps = stamps; self.nlab = 0
    def A(self, s): self.L.append(s)
    def lab(self, base="L"):
        self.nlab += 1; return f"{base}_{self.nlab}"
    def srd(self, d, lo, hi, size):
        A = self.A
        A(f"s_mov_b32 s{d}, s{lo}"); A(f"s_mov_b32 s{d+1}, s{hi}"); A(f"s_mov_b32 s{d+2}, {size}"); A(f"s_mov_b32 s{d+3}, 0x20000")
    def stamp(self, i):
        if self.stamps: self.A(f"s_memrealtime s[{40+2*i}:{41+2*i}]")
    def nop(self, n):
        while n > 0:
            k = min(n, 16); self.A(f"s_nop {k-1}"); n -= k
    def lds_wait(self, addr, val, vt=6, vz=7, slp=None):
        A = self.A
        if slp is None: slp = P.SLP_L
        l = self.lab("LW"); e = self.lab("LWE")
        A(f"v_mov_b32 v{vz}, 0")
        A(f"s_mov_b32 s73, {P.SPIN_L}")
        A(f"{l}:")
        A(f"ds_read_b32 v{vt}, v{vz} offset:{addr}")
        A("s_waitcnt lgkmcnt(0)")
        A(f"v_readfirstlane_b32 s72, v{vt}")
        A(f"s_cmp_ge_u32 s72, {val}")
        A(f"s_cbranch_scc1 {e}")
        A("s_sub_u32 s73, s73, 1")
        A("s_cmp_eq_u32 s73, 0")
        A(f"s_cbranch_scc1 {e}")
        if slp: A(f"s_sleep {slp}")
        A(f"s_branch {l}")
        A(f"{e}:")
    def lds_signal(self, addr, vt=6, vz=7):
        A = self.A
        A(f"v_mov_b32 v{vz}, 0"); A(f"v_mov_b32 v{vt}, 1")
        A("s_waitcnt lgkmcnt(0)")
        A("s_mov_b64 s[74:75], exec"); A("s_mov_b64 exec, 1")
        A(f"ds_add_u32 v{vz}, v{vt} offset:{addr}")
        A("s_mov_b64 exec, s[74:75]")
    def lds_arrive(self, addr, vt=6, vz=7):
        A = self.A
        A(f"v_mov_b32 v{vz}, 0"); A(f"v_mov_b32 v{vt}, 1")
        A("s_waitcnt lgkmcnt(0)")
        A("s_mov_b64 s[74:75], exec"); A("s_mov_b64 exec, 1")
        A(f"ds_add_rtn_u32 v{vt}, v{vz}, v{vt} offset:{addr}")
        A("s_waitcnt lgkmcnt(0)")
        A(f"v_readfirstlane_b32 s72, v{vt}")
        A("s_mov_b64 exec, s[74:75]")
    def xrow(self, op, v, t):
        A = self.A
        A(f"v_mov_b32 v{t}, v{v}"); self.nop(2)
        A(f"v_permlane16_swap_b32 v{v}, v{t}"); self.nop(1)
        A(f"{op} v{v}, v{v}, v{t}")
        A(f"v_mov_b32 v{t}, v{v}"); self.nop(2)
        A(f"v_permlane32_swap_b32 v{v}, v{t}"); self.nop(1)
        A(f"{op} v{v}, v{v}, v{t}")
    def xrow_multi(self, op, vs, ts):
        A = self.A
        n = len(vs); assert n >= 3
        for v, t in zip(vs, ts): A(f"v_mov_b32 v{t}, v{v}")
        for v, t in zip(vs, ts): A(f"v_permlane16_swap_b32 v{v}, v{t}")
        self.nop(1)
        for v, t in zip(vs, ts): A(f"{op} v{v}, v{v}, v{t}")
        for v, t in zip(vs, ts): A(f"v_mov_b32 v{t}, v{v}")
        for v, t in zip(vs, ts): A(f"v_permlane32_swap_b32 v{v}, v{t}")
        self.nop(1)
        for v, t in zip(vs, ts): A(f"{op} v{v}, v{v}, v{t}")
    def dpp(self, op, d, s0, s1, ctrl):
        self.A(f"{op}_dpp v{d}, v{s0}, v{s1} {ctrl} row_mask:0xf bank_mask:0xf")
    def wave_sum2(self, v, w, t, u):
        for ctrl in ["quad_perm:[1,0,3,2]", "quad_perm:[2,3,0,1]", "row_half_mirror", "row_mirror"]:
            self.nop(1)
            self.dpp("v_add_f32", v, v, v, ctrl)
            self.dpp("v_add_f32", w, w, w, ctrl)
        A = self.A
        A(f"v_mov_b32 v{t}, v{v}"); A(f"v_mov_b32 v{u}, v{w}"); self.nop(1)
        A(f"v_permlane16_swap_b32 v{v}, v{t}"); A(f"v_permlane16_swap_b32 v{w}, v{u}"); self.nop(1)
        A(f"v_add_f32 v{v}, v{v}, v{t}"); A(f"v_add_f32 v{w}, v{w}, v{u}")
        A(f"v_mov_b32 v{t}, v{v}"); A(f"v_mov_b32 v{u}, v{w}"); self.nop(1)
        A(f"v_permlane32_swap_b32 v{v}, v{t}"); A(f"v_permlane32_swap_b32 v{w}, v{u}"); self.nop(1)
        A(f"v_add_f32 v{v}, v{v}, v{t}"); A(f"v_add_f32 v{w}, v{w}, v{u}")
    def rne(self, v):
        A = self.A
        A(f"v_cvt_pk_bf16_f32 v{v}, v{v}, v{v}")
        A(f"v_and_b32 v{v}, 0xffff0000, v{v}")
    def tagmul(self):
        A = self.A
        A("s_mul_i32 s94, s94, 1664525"); A("s_add_u32 s94, s94, 1013904223")
    def poll(self, loads, tagregs, slp, name, masked=False):
        A = self.A
        lp = self.lab(name); le = self.lab(name + "E")
        A(f"s_mov_b32 s73, {P.SPIN_G}")
        A(f"{lp}:")
        for l in loads: A(l)
        A("s_waitcnt vmcnt(0)")
        A(f"v_cmp_ne_u32 vcc, s94, v{tagregs[0]}")
        for r in tagregs[1:]:
            A(f"v_cmp_ne_u32 s[74:75], s94, v{r}"); A("s_or_b64 vcc, vcc, s[74:75]")
        A("s_cmp_eq_u64 vcc, 0"); A(f"s_cbranch_scc1 {le}")
        A("s_sub_u32 s73, s73, 1"); A("s_cmp_eq_u32 s73, 0"); A(f"s_cbranch_scc1 {le}")
        if masked: A("s_mov_b64 exec, vcc")
        if slp: A(f"s_sleep {slp}")
        A(f"s_branch {lp}")
        A(f"{le}:")
    def xt_check(self, vwg, dst, sdst):
        A = self.A
        A(f"v_lshlrev_b32 v{vwg}, 3, v{vwg}")
        self.poll([f"buffer_load_dwordx2 v[{dst}:{dst+1}], v{vwg}, s[96:99], s100 offen sc1"], [dst+1], 2, "XT")
        A(f"v_cmp_ne_u32 vcc, s101, v{dst}")
        A("s_cmp_eq_u64 vcc, 0")
        A(f"s_cselect_b32 {sdst}, 0, {WS_B}")
        if P.FORCE_B: A(f"s_mov_b32 {sdst}, {WS_B}")
    def silu4(self, src, dst, n=4):
        A = self.A
        for r in range(n): A(f"v_mul_f32 v{dst+r}, 0x{f32bits(-1.4426950408889634):08x}, v{src+r}")
        for r in range(n): A(f"v_exp_f32 v{dst+r}, v{dst+r}")
        if n < 2: self.nop(1)
        for r in range(n): A(f"v_add_f32 v{dst+r}, 1.0, v{dst+r}")
        for r in range(n): A(f"v_rcp_f32 v{dst+r}, v{dst+r}")
        if n < 2: self.nop(1)
        for r in range(n): A(f"v_mul_f32 v{dst+r}, v{dst+r}, v{src+r}")
        for r in range(n): self.rne(dst+r)

def gen(stamps=False):
    g = G(stamps); A = g.A
    for line in HEADER.strip("\n").split("\n"): A("; " + line)
    A(f"; @launch grid=(256,1,1) block=(1024,1,1) lds={LDS_BYTES}")
    A('.amdgcn_target "amdgcn-amd-amdhsa--gfx950"')
    A(".text"); A(f".globl {NAME}_kernel"); A(".p2align 8"); A(f".type {NAME}_kernel,@function")
    A(f"{NAME}_kernel:")
    g.stamp(0)
    A("s_cmp_ge_u32 s2, 256"); A("s_cbranch_scc1 L_end")
    A("s_load_dwordx16 s[4:19], s[0:1], 0")
    A("s_load_dwordx8 s[20:27], s[0:1], 64")
    A("v_and_b32 v1, 63, v0")
    A("v_lshrrev_b32 v2, 6, v0")
    A("s_and_b32 s90, s2, 7")
    A("v_readfirstlane_b32 s3, v2")
    A("s_lshr_b32 s91, s2, 3")
    A("s_lshl_b32 s92, s90, 1"); A("s_lshr_b32 s72, s91, 4"); A("s_add_u32 s92, s92, s72")
    A("s_and_b32 s93, s91, 15")
    heavy = [(P.HEAVY >> x) & 1 for x in range(8)]
    assert sum(heavy) == 4
    nfs = [20 if h else 16 for h in heavy]
    bases = [sum(nfs[:x]) for x in range(8)]
    pk = 0
    for x in range(8): pk |= bases[x] << (8*x)
    A(f"s_lshr_b32 s72, {P.HEAVY}, s90"); A("s_and_b32 s72, s72, 1")
    A("s_cmp_eq_u32 s72, 1"); A("s_cselect_b32 s38, 20, 16")
    A(f"s_mov_b32 s72, 0x{pk & 0xffffffff:08x}"); A(f"s_mov_b32 s73, 0x{pk >> 32:08x}")
    A("s_lshl_b32 s39, s90, 3"); A("s_lshr_b64 s[72:73], s[72:73], s39"); A("s_and_b32 s39, s72, 0xff")
    A("s_mov_b32 s36, 0"); A("s_mov_b32 s37, s91")
    A("s_cmp_lt_u32 s91, s38"); A("s_cbranch_scc1 L_typed")
    A("s_mov_b32 s36, 1"); A("s_sub_u32 s37, s91, s38")
    A("s_cmp_lt_u32 s37, 8"); A("s_cbranch_scc1 L_typed")
    A("s_mov_b32 s36, 2"); A("s_sub_u32 s37, s37, 8")
    A("L_typed:")
    A(f"s_mov_b32 s100, {WS_XT}")
    A("s_getreg_b32 s101, hwreg(HW_REG_XCC_ID)"); A("s_and_b32 s101, s101, 15")
    A("v_and_b32 v2, 1, v1")
    A("v_mov_b32 v3, 0xffff")
    A("v_lshlrev_b32 v2, 4, v2")
    A("v_lshlrev_b32 v3, v2, v3")
    A("v_bfe_u32 v2, v1, 1, 2")
    for t in range(4):
        A(f"v_cmp_eq_u32 vcc, {t}, v2"); g.nop(2)
        A(f"v_cndmask_b32 v{124+t}, 0, v3, vcc")
    if stamps:
        for i in range(1, 16): A(f"s_mov_b64 s[{40+2*i}:{41+2*i}], 0")
    A("s_waitcnt lgkmcnt(0)")
    A(f"s_load_dword s94, s[26:27], {WS_EPOCH}")
    g.srd(96, 26, 27, 0x40000000)
    A("s_cmp_lt_u32 s3, 4"); A("s_cbranch_scc1 L_aux0")
    A("s_cmp_lt_u32 s3, 12"); A("s_cbranch_scc1 L_KV")
    A("s_sub_u32 s95, s3, 8"); A("s_branch L_aux")
    A("L_aux0:"); A("s_mov_b32 s95, s3")
    A("L_aux:")
    A("s_setprio 2")
    A("s_cmp_ge_u32 s95, 6"); A("s_cbranch_scc1 L_aux67")
    A("s_cmp_eq_u32 s36, 2"); A("s_cbranch_scc1 L_auxO")
    g.srd(32, 4, 5, 1152)
    A("v_lshlrev_b32 v5, 4, v1")
    A("buffer_load_dwordx4 v[56:59], v5, s[32:35], 0 offen")
    A("buffer_load_dwordx4 v[60:63], v5, s[32:35], 0 offen offset:1024")
    A("v_lshrrev_b32 v64, 4, v1"); A("v_and_b32 v65, 15, v1"); A("v_lshlrev_b32 v65, 4, v65")
    A("s_cmp_eq_u32 s36, 1"); A("s_cbranch_scc1 L_auxQ")
    A("s_add_u32 s72, s39, s91")
    A("s_lshr_b32 s88, s72, 2"); A("s_and_b32 s89, s72, 3")
    A("s_cmp_ge_u32 s95, 3"); A("s_cselect_b32 s73, 3, 0"); A("s_sub_u32 s73, s95, s73")
    A("s_mul_i32 s87, s89, 144"); A("s_mul_i32 s73, s73, 48"); A("s_add_u32 s87, s87, s73")
    A("s_cmp_lt_u32 s95, 3"); A("s_cselect_b32 s28, s16, s18"); A("s_cselect_b32 s29, s17, s19")
    A(f"s_mov_b32 s30, {576*4608*2}"); A("s_mov_b32 s31, 0x20000")
    A("s_mul_i32 s72, s87, 9216"); A("s_lshl_b32 s73, s88, 8"); A("s_add_u32 s72, s72, s73")
    A("v_mul_u32_u24 v5, 9216, v64"); A("v_add_u32 v5, v5, v65"); A("v_add_u32 v5, s72, v5")
    A(f"s_mov_b32 s76, {4*9216}")
    A("s_branch L_p1loadF")
    A("L_auxQ:")
    A("s_lshl_b32 s72, s90, 3"); A("s_add_u32 s72, s72, s37")
    A("s_lshr_b32 s88, s72, 1"); A("s_and_b32 s89, s72, 1")
    A("s_mul_i32 s87, s89, 288"); A("s_mul_i32 s72, s95, 48"); A("s_add_u32 s87, s87, s72")
    g.srd(28, 10, 11, 576*4096*2)
    A("s_lshl_b32 s72, s87, 13"); A("s_lshl_b32 s73, s88, 8"); A("s_add_u32 s72, s72, s73")
    A("v_lshlrev_b32 v5, 13, v64"); A("v_add_u32 v5, v5, v65"); A("v_add_u32 v5, s72, v5")
    A(f"s_mov_b32 s76, {4*8192}")
    def p1loads(dep):
        A("s_mov_b32 s77, 0")
        if P.EARLYB == 1:
            A("s_waitcnt lgkmcnt(0)"); g.tagmul(); A("s_barrier")
        for t in range(12):
            if P.EARLYB == 2 and t == 3:
                A("s_waitcnt lgkmcnt(0)"); g.tagmul(); A("s_barrier")
            if t >= dep: A(f"s_waitcnt vmcnt({dep-1})")
            A(f"buffer_load_dwordx4 v[{8+4*t}:{11+4*t}], v5, s[28:31], s77 offen nt")
            if t < 11: A("s_add_u32 s77, s77, s76")
    A("L_p1load:")
    p1loads(P.P1D_Q)
    A("s_branch L_p1ld_e")
    A("L_p1loadF:")
    p1loads(P.P1D_F)
    A("L_p1ld_e:")
    g.stamp(1)
    if P.EARLYB:
        g.lds_signal(L_CNTP1I)
    else:
        A("s_waitcnt lgkmcnt(0)")
        g.tagmul()
        A("s_barrier")
    g.stamp(2)
    A("s_waitcnt vmcnt(12)")
    A("v_lshlrev_b32 v5, 4, v1")
    A(f"ds_write_b128 v5, v[56:59] offset:{L_XRAW}")
    A("s_mov_b64 exec, 0xff")
    A(f"ds_write_b128 v5, v[60:63] offset:{L_XRAW+1024}")
    A("s_mov_b64 exec, -1")
    A("v_mov_b32 v64, 0"); A("v_mov_b32 v65, 0")
    A("v_mov_b32 v66, 0x3f803f80")
    for r in range(56, 64):
        A(f"v_dot2c_f32_bf16 v64, v{r}, v66")
        A(f"v_dot2c_f32_bf16 v65, v{r}, v{r}")
    A("s_lshl_b32 s72, s87, 1")
    A("v_lshrrev_b32 v5, 4, v1"); A("v_lshlrev_b32 v5, 1, v5"); A("v_add_u32 v5, s72, v5")
    A("s_waitcnt lgkmcnt(0)")
    for t in range(12):
        A(f"ds_read_u16 v{68+t}, v5 offset:{L_XRAW + 8*t}")
    g.wave_sum2(64, 65, 66, 67)
    A(f"s_mov_b32 s72, 0x{f32bits(1.0/576):08x}")
    A("v_mul_f32 v64, s72, v64")
    A("v_mul_f32 v65, s72, v65")
    A("v_fma_f32 v65, -v64, v64, v65")
    A("v_max_f32 v65, 0, v65")
    g.rne(64); g.rne(65)
    A(f"v_add_f32 v65, 0x{f32bits(1e-5):08x}, v65")
    g.rne(65)
    A("v_sqrt_f32 v65, v65"); g.nop(1)
    g.rne(65)
    A("v_rcp_f32 v65, v65")
    A("s_waitcnt lgkmcnt(0)")
    for t in range(12): A(f"v_lshlrev_b32 v{68+t}, 16, v{68+t}")
    for t in range(12): A(f"v_sub_f32 v{68+t}, v{68+t}, v64")
    for t in range(12): A(f"v_cvt_pk_bf16_f32 v{68+t}, v{68+t}, v{68+t}")
    for t in range(12): A(f"v_and_b32 v{68+t}, 0xffff0000, v{68+t}")
    for t in range(12): A(f"v_mul_f32 v{68+t}, v{68+t}, v65")
    for t in range(12): A(f"v_cvt_pk_bf16_f32 v{68+t}, v{68+t}, v{68+t}")
    g.stamp(3)
    for r in range(88, 92): A(f"v_mov_b32 v{r}, 0")
    A("s_lshl_b32 s72, s95, 10")
    A("v_lshlrev_b32 v5, 4, v1"); A("v_add_u32 v5, s72, v5")
    for t in range(12):
        at = 80 if t % 2 == 0 else 84
        for r in range(4):
            A(f"v_and_b32 v{at+r}, v{68+t}, v{124+r}")
        A(f"s_waitcnt vmcnt({11-t})")
        g.nop(1)
        A(f"v_mfma_f32_16x16x32_bf16 v[88:91], v[{at}:{at+3}], v[{8+4*t}:{11+4*t}], v[88:91]")
    g.stamp(4)
    g.nop(8)
    A(f"ds_write_b128 v5, v[88:91] offset:{L_P1}")
    g.lds_signal(L_CNTP1)
    A("s_branch L_auxD")
    A("L_auxO:")
    A("s_waitcnt lgkmcnt(0)")
    g.tagmul()
    A("s_barrier")
    g.stamp(2)
    A("s_branch L_auxD")
    A("L_aux67:")
    A("s_waitcnt lgkmcnt(0)")
    g.tagmul()
    A("s_barrier")
    g.stamp(2)
    A("s_setprio 3")
    A("s_cmp_eq_u32 s95, 7"); A("s_cbranch_scc1 L_a7")
    A("s_cmp_eq_u32 s36, 2"); A("s_cbranch_scc1 L_a6_h2")
    A("s_cmp_eq_u32 s36, 0"); A("s_cbranch_scc1 L_a6_F")

    A("s_lshl_b32 s72, s90, 3"); A("s_add_u32 s72, s72, s37")
    A("s_lshr_b32 s88, s72, 1"); A("s_and_b32 s89, s72, 1")
    A("v_bfe_u32 v8, v1, 1, 4"); A("v_and_b32 v9, 1, v1"); A("v_lshlrev_b32 v9, 4, v9"); A("v_add_u32 v8, v8, v9"); A("v_lshlrev_b32 v8, 4, v8")
    A("v_lshrrev_b32 v9, 5, v1"); A("v_mul_u32_u24 v9, 3072, v9"); A("v_add_u32 v8, v8, v9")
    A("s_lshl_b32 s72, s88, 11"); A("s_lshl_b32 s73, s89, 10"); A("s_add_u32 s80, s72, s73"); A(f"s_add_u32 s80, s80, {WS_QG}"); A(f"s_add_u32 s81, s80, {WS_B}")
    A("v_lshlrev_b32 v10, 5, v1")
    A("v_mov_b32 v21, s94"); A("v_mov_b32 v23, s94"); A("v_mov_b32 v25, s94"); A("v_mov_b32 v27, s94")
    g.lds_wait(L_CNTP1, 6)
    g.stamp(5)
    for w in range(3):
        A(f"ds_read_b128 v[{12+4*w if w == 0 else 28+4*w}:{15+4*w if w == 0 else 31+4*w}], v8 offset:{L_P1 + w*1024}")
    A("s_waitcnt lgkmcnt(1)")
    A("v_pk_add_f32 v[12:13], v[12:13], v[32:33]"); A("v_pk_add_f32 v[14:15], v[14:15], v[34:35]")
    A("s_waitcnt lgkmcnt(0)")
    A("v_pk_add_f32 v[12:13], v[12:13], v[36:37]"); A("v_pk_add_f32 v[14:15], v[14:15], v[38:39]")
    g.nop(1)
    for r in range(4): A(f"v_mov_b32 v{16+r}, v{12+r}")
    for r in range(4): A(f"v_permlane32_swap_b32 v{12+r}, v{16+r}")
    g.nop(1)
    A("v_add_f32 v20, v12, v16"); A("v_add_f32 v22, v13, v17"); A("v_add_f32 v24, v14, v18"); A("v_add_f32 v26, v15, v19")
    A("s_mov_b32 exec_hi, 0")
    A("buffer_store_dwordx4 v[20:23], v10, s[96:99], s80 offen")
    A("buffer_store_dwordx4 v[24:27], v10, s[96:99], s80 offen offset:16")
    if P.QGATE:
        A("s_mov_b64 exec, -1")
        g.lds_signal(L_FLAGQP)
        A("s_mov_b32 exec_hi, 0")
    A("buffer_store_dwordx4 v[20:23], v10, s[96:99], s81 offen sc1")
    A("buffer_store_dwordx4 v[24:27], v10, s[96:99], s81 offen offset:16 sc1")
    A("s_mov_b64 exec, -1")
    g.stamp(6)
    A("s_cmp_eq_u32 s38, 20"); A("s_cbranch_scc1 L_a6_h2")
    A("s_cmp_eq_u32 s37, 0"); A("s_cbranch_scc1 L_h3_slot16")
    A("s_branch L_fin")

    A("L_a6_F:")
    A("s_add_u32 s72, s39, s91")
    A("s_lshr_b32 s88, s72, 2"); A("s_and_b32 s89, s72, 3")
    A("v_lshrrev_b32 v10, 4, v1")
    A("s_and_b32 s72, s91, 0xfc"); A("v_add_u32 v40, s72, v10")
    A("v_lshlrev_b32 v40, 3, v40"); A("v_add_u32 v40, s90, v40")
    g.xt_check(40, 42, "s86")
    A("v_lshlrev_b32 v8, 2, v10"); A("v_bfe_u32 v9, v1, 1, 2"); A("v_add_u32 v8, v8, v9"); A("v_and_b32 v9, 1, v1"); A("v_lshlrev_b32 v9, 4, v9"); A("v_add_u32 v8, v8, v9")
    A("v_lshlrev_b32 v8, 4, v8")
    A("v_bfe_u32 v9, v1, 3, 1"); A("v_mul_u32_u24 v9, 3072, v9"); A("v_add_u32 v8, v8, v9")
    A("v_cmp_ne_u32 s[76:77], s89, v10")
    A("v_and_b32 v9, 15, v1"); A("v_lshlrev_b32 v9, 5, v9")
    A("v_lshlrev_b32 v11, 11, v10"); A("v_add_u32 v11, v11, v9")
    A("v_lshlrev_b32 v10, 9, v10"); A("v_add_u32 v9, v10, v9")
    A("s_lshl_b32 s72, s88, 13"); A(f"s_add_u32 s72, s72, {WS_XG}")
    A("s_lshl_b32 s73, s89, 9"); A("s_add_u32 s80, s72, s73"); A(f"s_add_u32 s82, s80, {WS_B}")
    A("s_lshl_b32 s73, s89, 11"); A("s_add_u32 s81, s72, s73"); A("s_add_u32 s81, s81, s86")
    A("v_mov_b32 v21, s94"); A("v_mov_b32 v23, s94"); A("v_mov_b32 v25, s94"); A("v_mov_b32 v27, s94")
    A("s_mov_b32 s78, 0x80008000"); A("s_mov_b32 s79, 0x80008000"); A("s_and_b64 s[78:79], s[78:79], s[76:77]")
    g.lds_wait(L_CNTP1, 6)
    g.stamp(5)
    A(f"ds_read_b128 v[12:15], v8 offset:{L_P1}")
    A(f"ds_read_b128 v[32:35], v8 offset:{L_P1+1024}")
    A(f"ds_read_b128 v[36:39], v8 offset:{L_P1+2048}")
    A("s_waitcnt lgkmcnt(1)")
    A("v_pk_add_f32 v[12:13], v[12:13], v[32:33]"); A("v_pk_add_f32 v[14:15], v[14:15], v[34:35]")
    A("s_waitcnt lgkmcnt(0)")
    A("v_pk_add_f32 v[12:13], v[12:13], v[36:37]"); A("v_pk_add_f32 v[14:15], v[14:15], v[38:39]")
    g.nop(1)
    A("v_mov_b32 v20, v12"); A("v_mov_b32 v22, v13"); A("v_mov_b32 v24, v14"); A("v_mov_b32 v26, v15")
    A("s_mov_b64 exec, s[76:77]")
    A("buffer_store_dwordx4 v[20:23], v11, s[96:99], s80 offen")
    A("buffer_store_dwordx4 v[24:27], v11, s[96:99], s80 offen offset:16")
    A("buffer_store_dwordx4 v[20:23], v11, s[96:99], s82 offen sc1")
    A("buffer_store_dwordx4 v[24:27], v11, s[96:99], s82 offen offset:16 sc1")
    g.stamp(6)
    if P.XSENT:
        A("s_mov_b64 exec, s[78:79]")
        g.poll(["buffer_load_dwordx4 v[28:31], v9, s[96:99], s81 offen offset:16 sc1"], [29, 31], P.SLP_X, "XS")
        A("s_mov_b64 exec, s[76:77]")
    g.poll(["buffer_load_dwordx4 v[28:31], v9, s[96:99], s81 offen sc1", "buffer_load_dwordx4 v[32:35], v9, s[96:99], s81 offen offset:16 sc1"], [29, 31, 33, 35], P.SLP_X, "XP")
    g.stamp(7)
    A("v_mov_b32 v12, v28"); A("v_mov_b32 v13, v30"); A("v_mov_b32 v14, v32"); A("v_mov_b32 v15, v34")
    A("s_mov_b64 exec, -1")
    g.xrow_multi("v_add_f32", [12, 13, 14, 15], [16, 17, 18, 19])
    g.nop(1)
    for r in range(4): A(f"v_mov_b32_dpp v{16+r}, v{12+r} row_ror:8 row_mask:0xf bank_mask:0xf")
    for r in range(4):
        g.rne(12+r); g.rne(16+r)
    g.silu4(12, 20)
    for r in range(4): A(f"v_mul_f32 v{20+r}, v{20+r}, v{16+r}")
    for r in range(4): A(f"v_cvt_pk_bf16_f32 v{20+r}, v{20+r}, v{20+r}")
    A("v_lshlrev_b32 v8, 4, v1")
    A("s_mov_b64 exec, 0xff")
    A(f"ds_write_b128 v8, v[20:23] offset:{L_X2U}")
    A("s_mov_b64 exec, -1")
    g.lds_signal(L_FLAGX0)
    g.stamp(8)
    A("s_branch L_fin")

    A("L_a6_h2:")
    A("s_mov_b32 s86, 0")
    A("L_h2:")
    A("s_cmp_eq_u32 s36, 2"); A("s_cbranch_scc1 L_h2_O")
    A("s_add_u32 s85, s37, 8"); A("s_branch L_h2_go")
    A("L_h2_O:")
    A("s_lshl_b32 s85, s37, 1"); A("s_add_u32 s85, s85, s86")
    A("L_h2_go:")
    A("s_lshl_b32 s72, s90, 4"); A("s_add_u32 s85, s85, s72")
    A("s_lshr_b32 s84, s85, 2"); A("s_and_b32 s83, s85, 3")
    A("s_lshr_b32 s72, s84, 1"); A("s_and_b32 s73, s72, 1"); A("s_lshl_b32 s73, s73, 7"); A("s_lshr_b32 s72, s72, 1"); A("s_add_u32 s72, s72, s73")
    A("v_and_b32 v40, 15, v1"); A("v_lshlrev_b32 v40, 3, v40"); A("v_add_u32 v40, s72, v40")
    g.xt_check(40, 42, "s87")
    A("s_lshl_b32 s72, s84, 13"); A("s_lshl_b32 s73, s83, 7"); A("s_add_u32 s80, s72, s73"); A(f"s_add_u32 s80, s80, {WS_AG}"); A("s_add_u32 s80, s80, s87")
    A("s_add_u32 s81, s80, 4096")
    A("v_lshrrev_b32 v8, 3, v1"); A("v_lshlrev_b32 v9, 9, v8"); A("v_and_b32 v10, 7, v1"); A("v_lshlrev_b32 v10, 4, v10"); A("v_add_u32 v9, v9, v10")
    A("v_lshlrev_b32 v8, 4, v8")
    A("s_lshl_b32 s82, s84, 7"); A(f"s_add_u32 s82, s82, {WS_LG}"); A("s_add_u32 s82, s82, s87")
    A("s_lshl_b32 s72, s86, 7")
    A("v_lshlrev_b32 v11, 4, v1"); A("v_add_u32 v11, s72, v11")
    g.lds_wait(L_CNTKV, 8)
    g.stamp(9)
    g.poll(["buffer_load_dwordx4 v[20:23], v8, s[96:99], s82 offen sc1",
            "buffer_load_dwordx4 v[12:15], v9, s[96:99], s80 offen sc1",
            "buffer_load_dwordx4 v[16:19], v9, s[96:99], s81 offen sc1"], [21, 23, 13, 15, 17, 19], P.SLP_H, "HP")
    g.stamp(10)
    A("v_max_f32 v24, v20, v22")
    A("v_lshlrev_b32 v26, 16, v12"); A("v_and_b32 v27, 0xffff0000, v12")
    g.dpp("v_max_f32", 24, 24, 24, "row_ror:8")
    A("v_lshlrev_b32 v28, 16, v14"); A("v_and_b32 v29, 0xffff0000, v14")
    A("v_mov_b32 v25, v24")
    A("v_lshlrev_b32 v30, 16, v16"); A("v_and_b32 v31, 0xffff0000, v16")
    A("v_permlane16_swap_b32 v24, v25")
    A("v_lshlrev_b32 v32, 16, v18")
    A("v_max_f32 v24, v24, v25")
    A("v_and_b32 v33, 0xffff0000, v18")
    A("v_mov_b32 v25, v24"); g.nop(2)
    A("v_permlane32_swap_b32 v24, v25"); g.nop(1)
    A("v_max_f32 v24, v24, v25")
    A("v_sub_f32 v20, v20, v24"); A("v_sub_f32 v22, v22, v24")
    A("v_exp_f32 v20, v20"); A("v_exp_f32 v22, v22"); g.nop(1)
    A("v_add_f32 v24, v20, v22")
    for r in range(4): A(f"v_mul_f32 v{26+r}, v{26+r}, v20")
    for r in range(4): A(f"v_fma_f32 v{26+r}, v{30+r}, v22, v{26+r}")
    for r in (24, 26, 27, 28, 29): g.dpp("v_add_f32", r, r, r, "row_ror:8")
    g.xrow_multi("v_add_f32", [24, 26, 27, 28, 29], [34, 35, 36, 37, 38])
    A("v_rcp_f32 v24, v24"); g.nop(1)
    for r in range(4): A(f"v_mul_f32 v{26+r}, v{26+r}, v24")
    for r in range(4): A(f"v_cvt_pk_bf16_f32 v{26+r}, v{26+r}, v{26+r}")
    A("s_mov_b64 exec, 0xff")
    A(f"ds_write_b128 v11, v[26:29] offset:{L_X2U}")
    A("s_mov_b64 exec, -1")
    A("s_cmp_eq_u32 s86, 0"); A("s_cbranch_scc1 L_h2_f0")
    g.lds_signal(L_FLAGX1)
    g.stamp(11)
    A("s_branch L_fin")
    A("L_h2_f0:")
    g.lds_signal(L_FLAGX0)
    g.stamp(11)
    A("s_cmp_eq_u32 s36, 2"); A("s_cbranch_scc1 L_h3_slot16")
    A("s_cmp_lt_u32 s37, 5"); A("s_cbranch_scc1 L_h3_slot16")
    A("s_branch L_fin")

    A("L_a7:")
    A("s_and_b32 s72, s92, 1"); A("s_lshl_b32 s72, s72, 2"); A("s_add_u32 s72, s72, s38"); A("s_lshl_b32 s72, s72, 3"); A("s_lshr_b32 s73, s92, 1"); A("s_add_u32 s72, s72, s73")
    A("v_and_b32 v40, 3, v1"); A("v_lshlrev_b32 v40, 3, v40"); A("v_add_u32 v40, s72, v40")
    A("v_lshlrev_b32 v40, 3, v40")
    A("s_lshl_b32 s72, s92, 12"); A(f"s_add_u32 s80, s72, {WS_QG}")
    if P.FORCE_B: A(f"s_add_u32 s80, s80, {WS_B}")
    A(f"s_add_u32 s81, s72, {WS_QG + WS_B}")
    A("v_lshlrev_b32 v8, 4, v1"); A("v_lshlrev_b32 v10, 2, v1")
    g.stamp(8)
    if P.QPIPE:
        if P.QPIPE_WAIT:
            A("s_cmp_eq_u32 s36, 2"); A("s_cbranch_scc1 L_q_nw")
            g.lds_wait(L_CNTP1, P.QPIPE_WAIT, slp=2)
            A("L_q_nw:")
        sets = [(12, 42), (44, 60)]
        def issue(si):
            b, xb = sets[si]
            for i in range(4):
                A(f"buffer_load_dwordx4 v[{b+4*i}:{b+3+4*i}], v8, s[96:99], s80 offen offset:{1024*i} sc1")
            A(f"buffer_load_dwordx2 v[{xb}:{xb+1}], v40, s[96:99], s100 offen sc1")
        def check(si, done, nxt):
            b, xb = sets[si]
            A("s_waitcnt vmcnt(5)")
            A(f"v_cmp_ne_u32 vcc, s94, v{b+1}")
            for r in (3, 5, 7, 9, 11, 13, 15):
                A(f"v_cmp_ne_u32 s[74:75], s94, v{b+r}"); A("s_or_b64 vcc, vcc, s[74:75]")
            A("s_cmp_eq_u64 vcc, 0"); A(f"s_cbranch_scc1 {done}")
            A("s_sub_u32 s73, s73, 1"); A("s_cmp_eq_u32 s73, 0"); A(f"s_cbranch_scc1 {done}")
            A(f"v_cmp_ne_u32 vcc, s94, v{xb+1}")
            A("s_cmp_eq_u64 vcc, 0"); A(f"s_cbranch_scc0 {nxt}")
            A(f"v_cmp_ne_u32 vcc, s101, v{xb}")
            A("s_cmp_eq_u64 vcc, 0")
            A("s_cselect_b32 s80, s82, s81")
            A(f"{nxt}:")
        A("s_mov_b32 s82, s80")
        A(f"s_mov_b32 s73, {P.SPIN_G}")
        issue(0)
        A("L_qp_loop:")
        issue(1)
        check(0, "L_qp_d0", "L_qp_n0")
        issue(0)
        check(1, "L_qp_d1", "L_qp_n1")
        A("s_branch L_qp_loop")
        for si, lab in ((1, "L_qp_d1"), (0, "L_qp_d0")):
            b = sets[si][0]
            A(f"{lab}:")
            g.stamp(9)
            A(f"v_add_f32 v{b}, v{b}, v{b+4}"); A(f"v_add_f32 v{b+2}, v{b+2}, v{b+6}"); A(f"v_add_f32 v{b+8}, v{b+8}, v{b+12}"); A(f"v_add_f32 v{b+10}, v{b+10}, v{b+14}")
            A(f"v_cvt_pk_bf16_f32 v62, v{b}, v{b+2}"); A(f"v_cvt_pk_bf16_f32 v63, v{b+8}, v{b+10}")
            A(f"ds_write_b32 v10, v62 offset:{L_QL}")
            A(f"ds_write_b32 v10, v63 offset:{L_QL+256}")
            if si == 1: A("s_branch L_qp_e")
        A("L_qp_e:")
    else:
        lp = g.lab("QP"); le = g.lab("QPE"); lx = g.lab("QPX")
        A(f"s_mov_b32 s73, {P.SPIN_G}")
        A("s_mov_b32 s82, 0")
        A(f"{lp}:")
        for i in range(4):
            A(f"buffer_load_dwordx4 v[{12+4*i}:{15+4*i}], v8, s[96:99], s80 offen offset:{1024*i} sc1")
        A("s_cmp_lg_u32 s82, 0"); A(f"s_cbranch_scc1 {lx}")
        A("buffer_load_dwordx2 v[42:43], v40, s[96:99], s100 offen sc1")
        A(f"{lx}:")
        A("s_waitcnt vmcnt(0)")
        A("v_cmp_ne_u32 vcc, s94, v13")
        for r in (15, 17, 19, 21, 23, 25, 27):
            A(f"v_cmp_ne_u32 s[74:75], s94, v{r}"); A("s_or_b64 vcc, vcc, s[74:75]")
        A("s_cmp_eq_u64 vcc, 0"); A(f"s_cbranch_scc1 {le}")
        A("s_sub_u32 s73, s73, 1"); A("s_cmp_eq_u32 s73, 0"); A(f"s_cbranch_scc1 {le}")
        A("s_cmp_lg_u32 s82, 0"); A(f"s_cbranch_scc1 {lp}_s")
        A("v_cmp_ne_u32 vcc, s94, v43")
        A("s_cmp_eq_u64 vcc, 0"); A(f"s_cbranch_scc0 {lp}_s")
        A("s_mov_b32 s82, 1")
        A("v_cmp_ne_u32 vcc, s101, v42")
        A("s_cmp_eq_u64 vcc, 0")
        A("s_cselect_b32 s80, s80, s81")
        A(f"{lp}_s:")
        if P.SLP_Q: A(f"s_sleep {P.SLP_Q}")
        A(f"s_branch {lp}")
        A(f"{le}:")
        g.stamp(9)
        A("v_add_f32 v12, v12, v16"); A("v_add_f32 v14, v14, v18"); A("v_add_f32 v20, v20, v24"); A("v_add_f32 v22, v22, v26")
        A("v_cvt_pk_bf16_f32 v12, v12, v14"); A("v_cvt_pk_bf16_f32 v20, v20, v22")
        A(f"ds_write_b32 v10, v12 offset:{L_QL}")
        A(f"ds_write_b32 v10, v20 offset:{L_QL+256}")
    g.lds_signal(L_FLAGQ)
    g.stamp(10)
    A("s_cmp_eq_u32 s36, 2"); A("s_cbranch_scc0 L_fin")
    A("s_mov_b32 s86, 1"); A("s_branch L_h2")

    A("L_auxD:")
    A("s_mov_b32 s86, 0"); A("s_mov_b32 s84, s95")
    A("s_cmp_eq_u32 s36, 2"); A("s_cbranch_scc1 L_D_O")
    A("s_cmp_ge_u32 s95, 3"); A("s_cbranch_scc1 L_fin")
    A("s_cmp_eq_u32 s36, 1"); A("s_cbranch_scc1 L_D_Q")
    g.srd(28, 20, 21, 4608*576*2)
    A("s_add_u32 s85, s39, s91")
    A("s_mov_b32 s83, s85")
    A("s_branch L_D_go")
    A("L_D_Q:")
    A("s_cmp_lg_u32 s38, 20"); A("s_cbranch_scc1 L_fin")
    A("s_add_u32 s85, s37, 8"); A("s_branch L_D_wo")
    A("L_D_O:")
    A("s_cmp_ge_u32 s95, 3"); A("s_cselect_b32 s86, 1, 0"); A("s_mul_i32 s72, s86, 3"); A("s_sub_u32 s84, s95, s72")
    A("s_lshl_b32 s85, s37, 1"); A("s_add_u32 s85, s85, s86")
    A("L_D_wo:")
    g.srd(28, 12, 13, 4096*576*2)
    A("s_lshl_b32 s72, s90, 4"); A("s_add_u32 s85, s85, s72")
    A("s_add_u32 s83, s85, 144")
    A("L_D_go:")
    A("s_setprio 0")
    A("v_lshrrev_b32 v3, 4, v1"); A("v_lshlrev_b32 v3, 1, v3"); A("v_bfe_u32 v4, v1, 3, 1"); A("v_add_u32 v3, v3, v4")
    A("v_and_b32 v4, 7, v1"); A("v_lshlrev_b32 v4, 4, v4")
    A(f"s_mul_i32 s72, s85, {32*1152}"); A("s_mul_i32 s73, s84, 384"); A("s_add_u32 s82, s72, s73")
    A("v_mul_u32_u24 v5, 1152, v3"); A("v_add_u32 v5, v5, v4"); A("v_add_u32 v5, s82, v5")
    if P.TLBW & 1:
        A("s_mov_b64 exec, 1")
        A("buffer_load_dword v112, v5, s[28:31], 0 offen nt")
        A(f"s_mov_b32 s72, {24*1152}")
        A("buffer_load_dword v113, v5, s[28:31], s72 offen nt")
        A("s_mov_b64 exec, -1")
    A("s_lshl_b32 s72, s86, 7"); A("v_lshlrev_b32 v100, 2, v3"); A("v_add_u32 v100, s72, v100")
    A("v_bfe_u32 v101, v1, 3, 1"); A("v_lshrrev_b32 v102, 5, v1")
    A("v_cmp_eq_u32 s[78:79], v101, v102")
    A("v_mul_u32_u24 v101, 768, v102"); A("v_and_b32 v102, 7, v1"); A("v_lshlrev_b32 v102, 5, v102"); A("v_add_u32 v101, v101, v102")
    A("v_bfe_u32 v102, v1, 4, 1"); A("v_lshlrev_b32 v102, 4, v102"); A("v_add_u32 v101, v101, v102")
    A("s_mul_i32 s72, s95, 1536")
    A("v_add_u32 v101, s72, v101")
    A("v_lshlrev_b32 v102, 3, v1"); A("v_add_u32 v102, s72, v102")
    A("s_mul_i32 s72, s83, 4608"); A("s_mul_i32 s73, s84, 1536"); A("s_add_u32 s80, s72, s73"); A(f"s_add_u32 s80, s80, {WS_PG}")
    A("v_lshlrev_b32 v103, 4, v1")
    A("v_mov_b32 v105, s94"); A("v_mov_b32 v107, s94"); A("v_mov_b32 v109, s94"); A("v_mov_b32 v111, s94")
    for r in range(88, 100): A(f"v_mov_b32 v{r}, 0")
    if P.FGATE:
        A("s_cmp_lg_u32 s36, 0"); A("s_cbranch_scc1 L_D_g1")
        if P.FGATE == 1: g.lds_wait(L_FLAGPUB, 1, slp=1)
        else: g.lds_wait(L_CNTKV, P.FGN, slp=1)
        A("s_branch L_D_g2")
        A("L_D_g1:")
        g.lds_wait(L_CNTKVI, 8, slp=2)
        A("L_D_g2:")
    else:
        g.lds_wait(L_CNTKVI, P.KVIN, slp=2)
    g.stamp(9)
    A("s_cmp_eq_u32 s36, 2"); A("s_cbranch_scc1 L_D_ldO")
    for dep, lab in ((P.DD_F, None), (P.DD_O, "L_D_ldO")):
        if lab: A(f"{lab}:")
        A("s_mov_b32 s77, 0")
        for rg in range(4):
            for sg in range(3):
                b = 8 + 4*(rg*3+sg)
                if rg*3+sg >= dep: A(f"s_waitcnt vmcnt({dep-1})")
                A(f"buffer_load_dwordx4 v[{b}:{b+3}], v5, s[28:31], s77 offen offset:{sg*128} nt")
            if rg < 3: A(f"s_add_u32 s77, s77, {8*1152}")
        if not lab: A("s_branch L_D_ldE")
    A("L_D_ldE:")
    g.stamp(10)
    A("s_setprio 2")
    A("s_cmp_eq_u32 s86, 0"); A("s_cbranch_scc1 L_D_w0")
    g.lds_wait(L_FLAGX1, 1, slp=0)
    A("s_branch L_D_w1")
    A("L_D_w0:")
    g.lds_wait(L_FLAGX0, 1, slp=0)
    A("L_D_w1:")
    g.stamp(11)
    for rg in range(4):
        A(f"ds_read_b32 v{68+rg}, v100 offset:{L_X2U + 32*rg}")
    for rg in range(4):
        at = 80 if rg % 2 == 0 else 84
        A(f"s_waitcnt lgkmcnt({3-rg})")
        for r in range(4):
            A(f"v_and_b32 v{at+r}, v{68+rg}, v{124+r}")
        for sg in range(3):
            b = 8 + 4*(rg*3+sg)
            A(f"s_waitcnt vmcnt({11-(rg*3+sg)})")
            if sg == 0: g.nop(1)
            A(f"v_mfma_f32_16x16x32_bf16 v[{88+4*sg}:{91+4*sg}], v[{at}:{at+3}], v[{b}:{b+3}], v[{88+4*sg}:{91+4*sg}]")
    g.stamp(12)
    A("s_mov_b64 exec, s[78:79]")
    g.nop(5)
    for sg in range(3):
        A(f"ds_write_b128 v101, v[{88+4*sg}:{91+4*sg}] offset:{L_TB + sg*256}")
    A("s_mov_b64 exec, -1")
    A("s_waitcnt lgkmcnt(0)")
    A(f"ds_read_b64 v[24:25], v102 offset:{L_TB}")
    A(f"ds_read_b64 v[26:27], v102 offset:{L_TB+768}")
    A(f"ds_read_b64 v[28:29], v102 offset:{L_TB+512}")
    A(f"ds_read_b64 v[30:31], v102 offset:{L_TB+768+512}")
    A("s_waitcnt lgkmcnt(2)")
    A("v_add_f32 v104, v24, v26"); A("v_add_f32 v106, v25, v27")
    A("buffer_store_dwordx4 v[104:107], v103, s[96:99], s80 offen sc1")
    A("s_waitcnt lgkmcnt(0)")
    A("v_add_f32 v108, v28, v30"); A("v_add_f32 v110, v29, v31")
    A("s_mov_b32 exec_hi, 0")
    A("buffer_store_dwordx4 v[108:111], v103, s[96:99], s80 offen offset:1024 sc1")
    A("s_mov_b64 exec, -1")
    if P.H3WAIT: g.lds_signal(L_CNTDP)
    g.stamp(13)
    A("s_branch L_fin")

    A("L_KV:")
    A("s_sub_u32 s95, s3, 4")
    A("s_setprio 1")
    A("s_cmp_lg_u32 s95, 0"); A("s_cbranch_scc1 L_KV_ni")
    A("v_mov_b32 v5, 0"); A("v_lshlrev_b32 v6, 2, v1")
    A("s_mov_b64 exec, 0xffff")
    A("ds_write_b32 v6, v5")
    A("s_mov_b64 exec, -1")
    A("L_KV_ni:")
    g.srd(28, 6, 7, 0x10000000); g.srd(32, 8, 9, 0x10000000)
    A("s_lshl_b32 s76, s92, 24"); A("s_lshl_b32 s77, s93, 16"); A("s_add_u32 s76, s76, s77"); A(f"s_add_u32 s76, s76, {61440*256}")
    A("s_lshl_b32 s77, s95, 13"); A("s_add_u32 s76, s76, s77")
    A("v_bfe_u32 v3, v1, 2, 2"); A("v_lshlrev_b32 v3, 8, v3"); A("v_lshrrev_b32 v4, 4, v1"); A("v_lshlrev_b32 v4, 6, v4"); A("v_add_u32 v3, v3, v4")
    A("v_and_b32 v4, 3, v1"); A("v_lshlrev_b32 v4, 4, v4"); A("v_add_u32 v3, v3, v4"); A("v_add_u32 v3, s76, v3")
    A("v_lshlrev_b32 v4, 4, v1"); A("v_add_u32 v4, s76, v4")
    A("s_waitcnt lgkmcnt(0)")
    g.tagmul()
    A("s_cmp_lg_u32 s95, 1"); A("s_cbranch_scc1 L_KV_nx")
    A("v_mov_b32 v6, s101"); A("v_mov_b32 v7, s94"); A("s_lshl_b32 s72, s2, 3"); A("v_mov_b32 v5, s72")
    A("s_mov_b64 exec, 1")
    A("buffer_store_dwordx2 v[6:7], v5, s[96:99], s100 offen sc1")
    A("s_mov_b64 exec, -1")
    A("L_KV_nx:")
    A("s_barrier")
    g.stamp(2)
    if P.EARLYB:
        A("s_cmp_eq_u32 s36, 2"); A("s_cbranch_scc1 L_KV_ng2")
        A("s_cmp_eq_u32 s36, 0"); A(f"s_cselect_b32 s79, {P.NG_F}, {P.NG_Q}")
        l = g.lab("LW"); e = g.lab("LWE")
        A("v_mov_b32 v7, 0"); A(f"s_mov_b32 s73, {P.SPIN_L}")
        A(f"{l}:"); A(f"ds_read_b32 v6, v7 offset:{L_CNTP1I}"); A("s_waitcnt lgkmcnt(0)"); A("v_readfirstlane_b32 s72, v6")
        A("s_cmp_ge_u32 s72, s79"); A(f"s_cbranch_scc1 {e}"); A("s_sub_u32 s73, s73, 1"); A("s_cmp_eq_u32 s73, 0"); A(f"s_cbranch_scc1 {e}"); A("s_sleep 1"); A(f"s_branch {l}"); A(f"{e}:")
        A("L_KV_ng2:")
        g.stamp(1)
    if P.QGATE:
        A("s_cmp_lg_u32 s36, 1"); A("s_cbranch_scc1 L_KV_ng")
        if P.QGATE == 1:
            g.lds_wait(L_FLAGQP, 1, slp=1)
        else:
            g.lds_wait(L_CNTP1, P.QGATE, slp=1)
        A("L_KV_ng:")
    if P.TLBW & 2:
        A("s_mov_b64 exec, 1")
        A("buffer_load_dword v112, v4, s[32:35], 0 offen nt")
        A("s_mov_b64 exec, -1")
    A("s_add_u32 s78, s95, s93")
    deps = [P.KVD, P.KVD_Q or P.KVD, P.KVD_O or P.KVD]
    uniq = sorted(set(deps))
    if len(uniq) > 1:
        for ty in (1, 2):
            if deps[ty] != deps[0]:
                A(f"s_cmp_eq_u32 s36, {ty}"); A(f"s_cbranch_scc1 L_KVL_{deps[ty]}")
    order = [deps[0]] + [d for d in uniq if d != deps[0]]
    for dep in order:
        A(f"L_KVL_{dep}:")
        for t in range(16):
            tt = t % 8
            A(f"s_add_u32 s77, s78, {tt}"); A("s_and_b32 s77, s77, 7"); A("s_lshl_b32 s77, s77, 10")
            d = dep
            if P.KD and t < P.KSW: d = P.KD
            if t >= d: A(f"s_waitcnt vmcnt({d-1})")
            if t < 8: A(f"buffer_load_dwordx4 v[{8+4*tt}:{11+4*tt}], v3, s[28:31], s77 offen nt")
            else: A(f"buffer_load_dwordx4 v[{40+4*tt}:{43+4*tt}], v4, s[32:35], s77 offen nt")
        if dep != order[-1]: A("s_branch L_KVL_e")
    A("L_KVL_e:")
    g.lds_signal(L_CNTKVI)
    g.stamp(3)
    A("v_bfe_u32 v3, v1, 3, 1"); A("v_lshlrev_b32 v3, 8, v3"); A("v_lshrrev_b32 v4, 4, v1"); A("v_lshlrev_b32 v4, 6, v4"); A("v_add_u32 v3, v3, v4")
    A("v_and_b32 v4, 3, v1"); A("v_lshlrev_b32 v4, 4, v4"); A("v_add_u32 v3, v3, v4")
    A("v_lshrrev_b32 v120, 5, v1"); A("v_lshlrev_b32 v120, 9, v120"); A("v_and_b32 v4, 15, v1"); A("v_lshlrev_b32 v4, 5, v4"); A("v_add_u32 v120, v120, v4")
    A("v_bfe_u32 v4, v1, 4, 1"); A("v_lshlrev_b32 v4, 4, v4"); A("v_add_u32 v120, v120, v4")
    A("s_lshl_b32 s72, s95, 10"); A("v_add_u32 v120, s72, v120")
    A("v_and_b32 v121, 8, v1"); A("s_lshl_b32 s72, s95, 4"); A("v_add_u32 v121, s72, v121")
    A("v_bfe_u32 v4, v1, 2, 1"); A("v_cmp_eq_u32 s[76:77], 0, v4")
    A("s_lshl_b32 s72, s92, 14"); A("s_lshl_b32 s73, s93, 9"); A("s_add_u32 s80, s72, s73"); A(f"s_add_u32 s80, s80, {WS_AG}"); A(f"s_add_u32 s81, s80, {WS_B}")
    A("s_lshl_b32 s72, s92, 8"); A("s_and_b32 s73, s93, 7"); A("s_lshl_b32 s73, s73, 4"); A("s_add_u32 s72, s72, s73")
    A("s_lshr_b32 s73, s93, 3"); A("s_lshl_b32 s73, s73, 3"); A("s_add_u32 s82, s72, s73"); A(f"s_add_u32 s82, s82, {WS_LG}"); A(f"s_add_u32 s83, s82, {WS_B}")
    g.lds_wait(L_FLAGQ, 1, slp=1)
    g.stamp(4)
    A("s_setprio 2")
    A(f"ds_read_b128 v[76:79], v3 offset:{L_QL}")
    A("s_waitcnt lgkmcnt(0)")
    for r in range(4): A(f"v_cndmask_b32 v{72+r}, 0, v{76+r}, s[76:77]")
    for r in range(4): A(f"v_cndmask_b32 v{76+r}, v{76+r}, 0, s[76:77]")
    g.nop(1)
    for p in range(4):
        A(f"s_waitcnt vmcnt({15-2*p-1})")
        d = 80 + 4*p
        A(f"v_mfma_f32_16x16x32_bf16 v[{d}:{d+3}], v[{8+8*p}:{11+8*p}], v[72:75], 0")
        A(f"v_mfma_f32_16x16x32_bf16 v[{d}:{d+3}], v[{12+8*p}:{15+8*p}], v[76:79], v[{d}:{d+3}]")
    g.stamp(5)
    g.nop(5)
    for p in range(4):
        d = 80 + 4*p
        A(f"v_mov_b32_dpp v{96+p}, v{d} quad_perm:[0,0,0,0] row_mask:0xf bank_mask:0xf")
        if p == 2: g.nop(3)
    for q in range(1, 4):
        for p in range(4):
            d = 80 + 4*p
            g.dpp("v_add_f32", 96+p, d+q, 96+p, f"quad_perm:[{q},{q},{q},{q}]")
    A("v_max3_f32 v116, v96, v97, v98"); A("v_max_f32 v116, v116, v99"); g.nop(2)
    g.dpp("v_max_f32", 116, 116, 116, "row_half_mirror"); g.nop(1)
    g.xrow("v_max_f32", 116, 117)
    c = 128**-0.5 * 1.4426950408889634
    A(f"s_mov_b32 s72, 0x{f32bits(c):08x}")
    A("v_mul_f32 v116, s72, v116")
    for p in range(4): A(f"v_fma_f32 v{96+p}, v{96+p}, s72, -v116")
    for p in range(4): A(f"v_exp_f32 v{96+p}, v{96+p}")
    for p in range(4): A(f"v_cvt_pk_bf16_f32 v{100+p}, v{96+p}, v{96+p}")
    for p in range(4): A(f"v_and_b32 v{96+p}, 0xffff0000, v{100+p}")
    for t in range(8):
        p, u = t // 2, t % 2
        at = 104 if t % 2 == 0 else 108
        for r in range(4):
            direct = (r < 2) if u == 0 else (r >= 2)
            if direct: A(f"v_and_b32 v{at+r}, v{100+p}, v{124+r}")
            else: g.dpp("v_and_b32", at+r, 100+p, 124+r, "row_half_mirror")
        if t == 0:
            A("v_add_f32 v118, v96, v97"); A("v_add_f32 v119, v98, v99"); A("v_add_f32 v118, v118, v119")
        if t == 1:
            g.dpp("v_add_f32", 118, 118, 118, "row_half_mirror")
        if t == 2:
            A("v_mov_b32 v117, v118")
        if t == 3:
            A("v_permlane16_swap_b32 v118, v117")
        if t == 4:
            A("v_add_f32 v118, v118, v117"); A("v_mov_b32 v117, v118")
        if t == 5:
            A("v_permlane32_swap_b32 v118, v117")
        if t == 6:
            A("v_add_f32 v117, v118, v117")
        A(f"s_waitcnt vmcnt({7-t})")
        g.nop(1)
        cin = "0" if t == 0 else "v[112:115]"
        A(f"v_mfma_f32_16x16x32_bf16 v[112:115], v[{at}:{at+3}], v[{40+4*t}:{43+4*t}], {cin}")
    g.stamp(6)
    A("s_mov_b64 exec, 0x101")
    A(f"ds_write_b64 v121, v[116:117] offset:{L_ML}")
    A("s_mov_b64 exec, -1")
    A("v_lshlrev_b32 v3, 4, v1")
    A("v_lshrrev_b32 v4, 5, v1"); A("v_lshlrev_b32 v122, 3, v4")
    A("v_lshlrev_b32 v5, 13, v4"); A("v_and_b32 v123, 31, v1"); A("v_lshlrev_b32 v123, 4, v123"); A("v_add_u32 v5, v5, v123")
    A("v_lshlrev_b32 v123, 7, v4")
    A(f"ds_write_b128 v120, v[112:115] offset:{L_OK}")
    g.lds_arrive(L_CNTKV)
    A("s_cmp_eq_u32 s72, 7"); A("s_cbranch_scc0 L_KV_done")
    A("s_setprio 3")
    for k in range(8):
        A(f"ds_read_b64 v[{8+2*k}:{9+2*k}], v122 offset:{L_ML + 16*k}")
    for k in range(7):
        A(f"ds_read_b128 v[{24+4*k}:{27+4*k}], v3 offset:{L_OK + 1024*k}")
    A("s_waitcnt lgkmcnt(7)")
    A(f"ds_read_b128 v[52:55], v3 offset:{L_OK + 1024*7}")
    A("v_max3_f32 v56, v8, v10, v12"); A("v_max3_f32 v57, v14, v16, v18"); A("v_max3_f32 v56, v56, v20, v22"); A("v_max_f32 v56, v56, v57")
    for k in range(8): A(f"v_sub_f32 v{8+2*k}, v{8+2*k}, v56")
    for k in range(8): A(f"v_exp_f32 v{8+2*k}, v{8+2*k}")
    A("v_mov_b32 v65, s94"); A("v_mov_b32 v67, s94"); A("v_mov_b32 v69, s94")
    A("v_mul_f32 v57, v8, v9")
    for k in range(1, 8): A(f"v_fma_f32 v57, v{8+2*k}, v{9+2*k}, v57")
    A("v_rcp_f32 v58, v57"); A("v_log_f32 v59, v57")
    A("s_waitcnt lgkmcnt(0)")
    for r in range(4): A(f"v_mul_f32 v{60+r}, v{24+r}, v8")
    for k in range(1, 8):
        for r in range(4): A(f"v_fma_f32 v{60+r}, v{24+4*k+r}, v{8+2*k}, v{60+r}")
    for r in range(4): A(f"v_mul_f32 v{60+r}, v{60+r}, v58")
    A("v_add_f32 v68, v56, v59")
    A("v_cvt_pk_bf16_f32 v64, v60, v61"); A("v_cvt_pk_bf16_f32 v66, v62, v63")
    A("buffer_store_dwordx4 v[64:67], v5, s[96:99], s80 offen")
    A("s_mov_b32 exec_lo, 1"); A("s_mov_b32 exec_hi, 1")
    A("buffer_store_dwordx2 v[68:69], v123, s[96:99], s82 offen")
    A("buffer_store_dwordx2 v[68:69], v123, s[96:99], s83 offen sc1")
    A("s_mov_b64 exec, -1")
    if P.FGATE == 1: g.lds_signal(L_FLAGPUB)
    A("buffer_store_dwordx4 v[64:67], v5, s[96:99], s81 offen sc1")
    g.stamp(7)
    A("L_KV_done:")
    A("s_cmp_eq_u32 s36, 2"); A("s_cbranch_scc1 L_h3_kv")
    A("s_cmp_eq_u32 s36, 0"); A("s_cbranch_scc1 L_fin")
    A("s_cmp_eq_u32 s38, 20"); A("s_cselect_b32 s72, 5, 1"); A("s_cmp_ge_u32 s37, s72"); A("s_cbranch_scc1 L_fin")
    A("L_h3_kv:")
    if P.H3WAIT:
        A("s_cmp_eq_u32 s36, 2"); A("s_cbranch_scc1 L_h3_w2")
        A("s_cmp_lg_u32 s38, 20"); A("s_cbranch_scc1 L_h3_w0")
        g.lds_wait(L_CNTDP, 3, slp=1)
        A("s_branch L_h3_w0")
        A("L_h3_w2:")
        g.lds_wait(L_CNTDP, 6, slp=1)
        A("L_h3_w0:")
    A("s_mov_b32 s86, s95"); A("s_add_u32 s87, s95, 9")
    A("s_branch L_h3")
    A("L_h3_slot16:")
    if P.H3WAIT:
        A("s_cmp_eq_u32 s36, 2"); A("s_cbranch_scc1 L_h3_v2")
        A("s_cmp_lg_u32 s38, 20"); A("s_cbranch_scc1 L_h3_v0")
        g.lds_wait(L_CNTDP, 3, slp=1)
        A("s_branch L_h3_v0")
        A("L_h3_v2:")
        g.lds_wait(L_CNTDP, 6, slp=1)
        A("L_h3_v0:")
    A("s_mov_b32 s86, 8"); A("s_mov_b32 s87, 17")
    A("L_h3:")
    A("s_setprio 3")
    A("s_mul_i32 s85, s90, 9")
    A("s_cmp_eq_u32 s38, 20"); A("s_cselect_b32 s72, 4, 8"); A("s_add_u32 s72, s72, s37")
    A("s_cmp_eq_u32 s36, 2"); A("s_cselect_b32 s72, s37, s72"); A("s_add_u32 s85, s85, s72")
    A("s_lshl_b32 s80, s86, 4")
    A("s_cmp_eq_u32 s87, 17"); A("s_cselect_b32 s81, 8, s87"); A("s_lshl_b32 s81, s81, 4")
    A("s_mul_i32 s80, s80, 4608"); A("s_mul_i32 s81, s81, 4608")
    A("s_lshl_b32 s72, s85, 6"); A(f"s_add_u32 s72, s72, {WS_PG}")
    A("s_add_u32 s80, s80, s72"); A("s_add_u32 s81, s81, s72")
    A("v_lshrrev_b32 v8, 2, v1"); A("v_mul_u32_u24 v8, 4608, v8"); A("v_and_b32 v9, 3, v1"); A("v_lshlrev_b32 v9, 4, v9"); A("v_add_u32 v8, v8, v9")
    A("v_lshlrev_b32 v9, 3, v1")
    A("s_lshl_b32 s72, s86, 5"); A("v_add_u32 v10, s72, v9")
    A("s_lshl_b32 s72, s87, 5"); A("v_add_u32 v11, s72, v9")
    g.srd(32, 4, 5, 1152)
    g.srd(28, 22, 23, 1152)
    A("s_lshl_b32 s72, s85, 4")
    A("v_lshlrev_b32 v30, 1, v1"); A("v_add_u32 v30, s72, v30")
    A("v_lshlrev_b32 v31, 2, v1")
    A("s_mov_b64 exec, 0xff")
    A("buffer_load_ushort v32, v30, s[32:35], 0 offen")
    A("s_mov_b64 exec, -1")
    g.stamp(13)
    if P.H3SENT:
        A("s_mov_b32 exec_lo, 0"); A("s_mov_b32 exec_hi, 0x80000000")
        g.poll(["buffer_load_dwordx4 v[12:15], v8, s[96:99], s80 offen sc1"], [13, 15], 2, "FS")
        A("s_mov_b64 exec, -1")
    g.poll(["buffer_load_dwordx4 v[12:15], v8, s[96:99], s80 offen sc1", "buffer_load_dwordx4 v[16:19], v8, s[96:99], s81 offen sc1"],
           [13, 15, 17, 19], P.SLP_F, "FP", masked=True)
    A("s_mov_b64 exec, -1")
    g.stamp(14)
    for ctrl in ("row_ror:4", "row_ror:8"):
        g.nop(1)
        for r in (12, 14, 16, 18): g.dpp("v_add_f32", r, r, r, ctrl)
    g.xrow_multi("v_add_f32", [12, 14, 16, 18], [20, 21, 22, 23])
    A("v_mov_b32 v13, v14"); A("v_mov_b32 v17, v18")
    A("s_mov_b64 exec, 0xf")
    A(f"ds_write_b64 v10, v[12:13] offset:{L_H3S}")
    A(f"ds_write_b64 v11, v[16:17] offset:{L_H3S}")
    A("s_mov_b64 exec, -1")
    g.lds_arrive(L_CNTH3)
    A("s_cmp_eq_u32 s72, 8"); A("s_cbranch_scc0 L_fin")
    A("s_mov_b64 exec, 0xff")
    for sl in range(15):
        A(f"ds_read_b32 v{12+sl}, v31 offset:{L_H3S + 32*sl}")
    A("s_waitcnt lgkmcnt(6)")
    for sl in (15, 16): A(f"ds_read_b32 v{40+sl}, v31 offset:{L_H3S + 32*sl}")
    A("v_add_f32 v12, v12, v13"); A("v_add_f32 v14, v14, v15"); A("v_add_f32 v16, v16, v17"); A("v_add_f32 v18, v18, v19")
    A("v_add_f32 v12, v12, v14"); A("v_add_f32 v16, v16, v18"); A("v_add_f32 v12, v12, v20"); A("v_add_f32 v12, v12, v16")
    g.rne(12)
    g.silu4(12, 13, n=1)
    A("s_waitcnt lgkmcnt(0)")
    A("v_add_f32 v21, v21, v22"); A("v_add_f32 v23, v23, v24"); A("v_add_f32 v25, v25, v26"); A("v_add_f32 v55, v55, v56")
    A("v_add_f32 v21, v21, v23"); A("v_add_f32 v25, v25, v55"); A("v_add_f32 v21, v21, v25")
    g.rne(21)
    A("v_mul_f32 v13, v13, v21")
    g.rne(13)
    A("v_lshlrev_b32 v32, 16, v32")
    A("v_add_f32 v13, v13, v32")
    A("v_cvt_pk_bf16_f32 v13, v13, v13")
    A("buffer_store_short v13, v30, s[28:31], 0 offen")
    A("s_cmp_lg_u32 s85, 0"); A("s_cbranch_scc1 L_fin_x")
    A("s_mov_b64 exec, 1")
    A("v_mov_b32 v14, s94"); A("v_mov_b32 v15, 0")
    A(f"buffer_store_dword v14, v15, s[96:99], 0 offen offset:{WS_EPOCH} sc1")
    A("L_fin_x:")
    A("s_mov_b64 exec, -1")
    g.stamp(15)
    A("L_fin:")
    if stamps:
        A("s_mov_b64 exec, -1")
        A("s_waitcnt lgkmcnt(0)")
        for i in range(16):
            A(f"v_writelane_b32 v8, s{40+2*i}, {i}"); A(f"v_writelane_b32 v9, s{41+2*i}, {i}")
        A("s_lshl_b32 s72, s2, 4"); A("s_add_u32 s72, s72, s3"); A("s_lshl_b32 s72, s72, 7"); A(f"s_add_u32 s72, s72, {WS_STAMP}")
        A("v_lshlrev_b32 v3, 3, v1")
        A("s_mov_b64 exec, 0xffff")
        A("buffer_store_dwordx2 v[8:9], v3, s[96:99], s72 offen")
    A("L_end:"); A("s_endpgm")
    A('.section .rodata,"a"'); A(".p2align 6"); A(f".amdhsa_kernel {NAME}_kernel")
    A("  .amdhsa_next_free_vgpr 128"); A("  .amdhsa_next_free_sgpr 102"); A("  .amdhsa_accum_offset 128")
    A("  .amdhsa_group_segment_fixed_size 0"); A("  .amdhsa_kernarg_size 96"); A("  .amdhsa_user_sgpr_count 2")
    A("  .amdhsa_user_sgpr_kernarg_segment_ptr 1"); A("  .amdhsa_system_sgpr_workgroup_id_x 1")
    A("  .amdhsa_float_denorm_mode_32 3")
    A(".end_amdhsa_kernel")
    return "\n".join(g.L) + "\n"

if __name__ == "__main__":
    ap = argparse.ArgumentParser(); ap.add_argument("-o", default="k6.s"); ap.add_argument("--stamps", action="store_true")
    ap.add_argument("--set", action="append", default=[])
    a = ap.parse_args()
    for kv in a.set:
        k, v = kv.split("="); setattr(P, k, int(v, 0))
    open(a.o, "w").write(gen(a.stamps))
```
